```python
import torch

def _softmax(x, axis=-1):
    return torch.softmax(x, dim=axis)
def _gelu(x):
    return torch.nn.functional.gelu(x, approximate="tanh")
def _silu(x):
    return torch.nn.functional.silu(x)
def _sigmoid(x):
    return torch.sigmoid(x)
def _layernorm(x, axis=-1, eps=1e-5):
    m = x.mean(dim=axis, keepdim=True)
    v = x.var(dim=axis, keepdim=True, unbiased=False)
    return (x - m) / torch.sqrt(v + eps)
def _scatter_add(tgt, idx, src, axis=0):
    return tgt.clone().index_add_(axis, idx, src)
def _segment_sum(src, seg, n):
    out = torch.zeros((n,) + src.shape[1:], dtype=src.dtype)
    return out.index_add_(0, seg, src)
def _pad(x, pw):
    flat = tuple(v for pair in reversed(pw) for v in pair)
    return torch.nn.functional.pad(x, flat)

kernel_name = 'parallel_sum__sliding_block__swiglu_ffn__prompt'

def setup_inputs():

    _w = (lambda a: (lambda t: t.to(torch.bfloat16) if t.is_floating_point() else t)(torch.as_tensor(a)))
    def _A_setup():
        B, S, D = 1, 2048, 640
        return {
            "x": _w((lambda *s: torch.randn(*s, dtype=torch.bfloat16) * 0.05)(B, S, D)),
            "wqkv": _w((lambda *s: torch.randn(*s, dtype=torch.bfloat16) * 0.05)(D, 3 * D)),
            "wo": _w((lambda *s: torch.randn(*s, dtype=torch.bfloat16) * 0.05)(D, D)),
        }
    _A_in = _A_setup()

    def _B_setup():
        B, S, D, F = 1, 2048, 640, 1536
        return {
            "x": _w((lambda *s: torch.randn(*s, dtype=torch.bfloat16) * 0.05)(B, S, D)),
            "w_gate": _w((lambda *s: torch.randn(*s, dtype=torch.bfloat16) * 0.05)(D, F)),
            "w_up": _w((lambda *s: torch.randn(*s, dtype=torch.bfloat16) * 0.05)(D, F)),
            "w_down": _w((lambda *s: torch.randn(*s, dtype=torch.bfloat16) * 0.05)(F, D)),
        }
    _B_in = _B_setup()

    return {
        "A_x": _A_in["x"],
        "A_wqkv": _A_in["wqkv"],
        "A_wo": _A_in["wo"],
        "B_x": _B_in["x"],
        "B_w_gate": _B_in["w_gate"],
        "B_w_up": _B_in["w_up"],
        "B_w_down": _B_in["w_down"],
    }

def reference(A_x, A_wqkv, A_wo, B_x, B_w_gate, B_w_up, B_w_down):
    def _A_ref(x, wqkv, wo):
        B, S, D = x.shape
        H = 32; Dh = D // H; W = 256
        qkv = (lambda x, *d: x.permute(*d))((x @ wqkv).reshape(B, S, 3, H, Dh), 2, 0, 3, 1, 4)
        q, k, v = qkv[0], qkv[1], qkv[2]
        scores = torch.einsum("bhqd,bhkd->bhqk", q, k) * (Dh ** -0.5)
        idx = torch.arange(S)
        mask = (idx[:, None] - idx[None, :] >= 0) & (idx[:, None] - idx[None, :] < W)
        scores = torch.where(mask[None, None], scores, -1e9)
        p = _softmax(scores, axis=-1)
        o = torch.einsum("bhqk,bhkd->bhqd", p, v)
        return (lambda x, *d: x.permute(*d))(o, 0, 2, 1, 3).reshape(B, S, D) @ wo

    def _B_ref(x, w_gate, w_up, w_down):
        g = _silu(x @ w_gate)
        u = x @ w_up
        return (g * u) @ w_down

    x = A_x
    xn = _layernorm(x, axis=-1)
    return x + _A_ref(xn, A_wqkv, A_wo) + _B_ref(xn, B_w_gate, B_w_up, B_w_down)
```

```python
import re

_REG_RE = re.compile(r'^(-|abs\()?\s*([vsa])(\d+)\)?$')
_RNG_RE = re.compile(r'^(-)?([vsa])\[(\d+):(\d+)\]$')


def regs_of(tok):
    tok = tok.strip()
    m = _REG_RE.match(tok)
    if m:
        return [(m.group(2), int(m.group(3)))]
    m = _RNG_RE.match(tok)
    if m:
        return [(m.group(2), i) for i in range(int(m.group(3)), int(m.group(4)) + 1)]
    if tok in ('vcc', 'vcc_lo', 'vcc_hi'):
        return [('vcc', 0)]
    if tok in ('exec', 'exec_lo', 'exec_hi'):
        return [('exec', 0)]
    if tok == 'm0':
        return [('m0', 0)]
    return []


TRANS = ('v_exp_f32', 'v_log_f32', 'v_rcp_f32', 'v_rsq_f32', 'v_sqrt_f32', 'v_sin_f32', 'v_cos_f32')


class Ins:
    __slots__ = ('text', 'mn', 'rd', 'wr', 'kind', 'passes', 'srcc', 'states', 'ab')

    def __init__(self, text):
        self.text = text
        t = text.split(';')[0].strip()
        parts = t.split(None, 1)
        mn = parts[0]
        self.mn = mn
        ops = []
        if len(parts) > 1:
            rest = parts[1]
            depth = 0
            cur = ''
            for ch in rest:
                if ch == '[':
                    depth += 1
                if ch == ']':
                    depth -= 1
                if ch == ',' and depth == 0:
                    ops.append(cur.strip())
                    cur = ''
                else:
                    cur += ch
            ops.append(cur.strip())
        mods = []
        if ops:
            w = ops[-1].split()
            ops[-1] = w[0] if w else ''
            mods = w[1:]
        rd, wr = [], []
        self.kind = 'other'
        self.passes = 0
        self.srcc = []
        self.ab = []
        self.states = 1
        R = [regs_of(o) for o in ops]
        if mn.startswith('v_mfma'):
            self.kind = 'mfma'
            self.passes = 8 if '32x32' in mn else 4
            wr = R[0]
            rd = R[1] + R[2] + R[3]
            self.srcc = R[3]
            self.ab = R[1] + R[2]
        elif mn.startswith('v_cmpx'):
            self.kind = 'valu'
            wr = R[0] + [('exec', 0)]
            rd = sum(R[1:], [])
        elif mn.startswith('v_cmp'):
            self.kind = 'valu'
            wr = R[0]
            rd = sum(R[1:], [])
        elif mn in ('v_readfirstlane_b32', 'v_readlane_b32'):
            self.kind = 'valu'
            wr = R[0]
            rd = sum(R[1:], [])
        elif mn.startswith('v_permlane') and 'swap' in mn:
            self.kind = 'valu'
            wr = R[0] + R[1]
            rd = R[0] + R[1]
        elif mn.startswith('v_'):
            self.kind = 'valu'
            wr = R[0]
            if '_co_' in mn:
                wr = R[0] + R[1]
                rd = sum(R[2:], [])
            else:
                rd = sum(R[1:], [])
            if mn.startswith(('v_fmac', 'v_dot2c', 'v_mac', 'v_pk_fmac')):
                rd = rd + R[0]
            if mn.startswith('v_cndmask') and len(ops) == 3:
                rd = rd + [('vcc', 0)]
        elif mn.startswith('buffer_load') or mn.startswith('global_load'):
            self.kind = 'vmem'
            if 'lds' in mods or '_lds_' in mn:
                rd = sum(R, []) + [('m0', 0)]
                self.kind = 'vmem_lds'
            else:
                wr = R[0]
                rd = sum(R[1:], [])
        elif mn.startswith('buffer_store') or mn.startswith('global_store'):
            self.kind = 'vstore'
            rd = sum(R, [])
        elif mn.startswith('ds_read') or mn.startswith('ds_bpermute') or mn.startswith('ds_permute') or mn.startswith('ds_swizzle'):
            self.kind = 'ds'
            wr = R[0]
            rd = sum(R[1:], [])
        elif mn.startswith('ds_'):
            self.kind = 'ds'
            rd = sum(R, [])
        elif mn == 's_nop':
            self.kind = 'nop'
            self.states = int(ops[0], 0) + 1
        elif mn.startswith('s_load') or mn.startswith('s_memtime'):
            self.kind = 'smem'
            wr = R[0]
            rd = sum(R[1:], [])
        elif mn.startswith(('s_waitcnt', 's_barrier', 's_branch', 's_cbranch', 's_endpgm', 's_setprio', 's_sleep')):
            self.kind = 'sctl'
        elif mn.startswith('s_cmp'):
            self.kind = 'salu'
            rd = sum(R, [])
        elif mn.startswith('s_'):
            self.kind = 'salu'
            wr = R[0]
            rd = sum(R[1:], [])
            if 'saveexec' in mn:
                wr = wr + [('exec', 0)]
        self.rd = set(rd)
        self.wr = set(wr)


def is_v(r):
    return r[0] in ('v', 'a')


def required(p, c):
    need = 0
    if p.kind == 'valu':
        pw_v = {r for r in p.wr if is_v(r)}
        pw_s = {r for r in p.wr if r[0] in ('s', 'vcc')}
        if c.kind == 'mfma' and (pw_v & c.rd):
            need = max(need, 2)
        if c.kind in ('vmem', 'vmem_lds', 'vstore') and (pw_s & c.rd):
            need = max(need, 5)
        if c.kind == 'valu' and (pw_s & c.rd):
            if c.mn in ('v_readlane_b32', 'v_writelane_b32'):
                need = max(need, 4)
            else:
                need = max(need, 2)
        if c.kind == 'valu' and c.mn in ('v_readfirstlane_b32', 'v_readlane_b32') and (pw_v & c.rd):
            need = max(need, 1)
        if c.kind == 'valu' and c.mn.startswith('v_permlane') and (pw_v & c.rd):
            need = max(need, 2)
        if c.kind == 'valu' and 'dpp' in c.text and (pw_v & c.rd):
            need = max(need, 2)
        if p.mn in TRANS and c.kind == 'valu' and c.mn not in TRANS and (pw_v & c.rd):
            need = max(need, 1)
        if p.mn.startswith('v_dot') and (pw_v & (c.rd | c.wr)):
            if c.mn == p.mn:
                need = max(need, 0 if c.kind == 'valu' and (pw_v & c.wr) else 3)
            else:
                need = max(need, 3)
        if ('exec', 0) in p.wr:
            if c.kind == 'mfma':
                need = max(need, 4)
            if c.kind == 'valu' and ('dpp' in c.text):
                need = max(need, 5)
            if c.kind == 'valu' and c.mn in ('v_readfirstlane_b32', 'v_readlane_b32', 'v_writelane_b32'):
                need = max(need, 4)
            if c.kind == 'valu' and c.mn.startswith('v_permlane'):
                need = max(need, 4)
    if p.kind == 'salu':
        if ('m0', 0) in p.wr and c.kind == 'vmem_lds':
            need = max(need, 1)
    if p.kind == 'mfma':
        d = p.wr
        P = p.passes
        tab_c_overlap = {4: 6, 8: 10}[P]
        tab_ab = {4: 8, 8: 12}[P]
        if c.kind == 'mfma':
            if d & set(c.ab):
                need = max(need, tab_ab)
            if d & set(c.srcc):
                if set(c.srcc) == d and c.passes == P:
                    pass
                else:
                    need = max(need, tab_c_overlap)
            elif d & c.wr:
                need = max(need, tab_c_overlap)
        elif c.kind in ('valu', 'vmem', 'vmem_lds', 'vstore', 'ds'):
            if d & (c.rd | c.wr):
                need = max(need, tab_ab)
        if c.kind == 'valu' and (set(p.srcc) & c.wr):
            need = max(need, {4: 3, 8: 7}[P])
    if p.kind == 'vstore' and ('x4' in p.mn or 'x3' in p.mn):
        if c.kind in ('valu', 'mfma', 'ds', 'vmem') and (p.rd & c.wr):
            need = max(need, 2)
    return need


class Asm:
    def __init__(self):
        self.lines = []
        self.hist = []
        self.vm = []
        self.lg = []
        self.smem_out = False
        self.nlabel = 0

    def raw(self, s):
        self.lines.append(s)

    def comment(self, s):
        self.lines.append('    ; ' + s)

    def __call__(self, text, tag=None):
        ins = Ins(text)
        need = 0
        dist = 0
        for p in reversed(self.hist):
            r = required(p, ins)
            if r > dist:
                need = max(need, r - dist)
            dist += p.states
            if dist > 24:
                break
        while need > 0:
            n = min(need, 16)
            nop = Ins('s_nop %d' % (n - 1))
            self.lines.append('    s_nop %d' % (n - 1))
            self.hist.append(nop)
            need -= n
        self.lines.append('    ' + text)
        self.hist.append(ins)
        if len(self.hist) > 64:
            self.hist = self.hist[-40:]
        if ins.kind in ('vmem', 'vmem_lds', 'vstore'):
            self.vm.append(tag)
        elif ins.kind == 'ds':
            self.lg.append(tag)
        elif ins.kind == 'smem':
            self.smem_out = True
        return ins

    def flush_hazards(self):
        need = 0
        dist = 0
        for p in reversed(self.hist):
            w = 0
            if p.kind == 'mfma':
                w = {4: 8, 8: 12}[p.passes]
            elif p.kind == 'valu':
                w = 5
            elif p.kind == 'salu':
                w = 1
            elif p.kind == 'vstore':
                w = 2
            if w > dist:
                need = max(need, w - dist)
            dist += p.states
            if dist > 24:
                break
        if need > 0:
            self('s_nop %d' % (need - 1))

    def label(self, name):
        self.flush_hazards()
        self.lines.append(name + ':')

    def newlabel(self, base='L'):
        self.nlabel += 1
        return '.%s_%d' % (base, self.nlabel)

    def branch(self, text):
        self.flush_hazards()
        self(text)

    def wait_vm(self, tag):
        idx = None
        for i in range(len(self.vm) - 1, -1, -1):
            if self.vm[i] == tag:
                idx = i
                break
        if idx is None:
            return
        n = len(self.vm) - 1 - idx
        assert n <= 63, n
        self('s_waitcnt vmcnt(%d)' % n)
        self.vm = self.vm[idx + 1:]

    def wait_vm_all(self):
        self('s_waitcnt vmcnt(0)')
        self.vm = []

    def wait_lg(self, tag):
        idx = None
        for i in range(len(self.lg) - 1, -1, -1):
            if self.lg[i] == tag:
                idx = i
                break
        if idx is None:
            return
        n = len(self.lg) - 1 - idx
        if n > 15 or self.smem_out:
            n = 0 if self.smem_out else 15
            if n == 15:
                self('s_waitcnt lgkmcnt(15)')
                self.lg = self.lg[len(self.lg) - 15:]
                return
            self('s_waitcnt lgkmcnt(0)')
            self.lg = []
            self.smem_out = False
            return
        self('s_waitcnt lgkmcnt(%d)' % n)
        self.lg = self.lg[idx + 1:]

    def wait_lg_all(self):
        self('s_waitcnt lgkmcnt(0)')
        self.lg = []
        self.smem_out = False

    def text(self):
        return '\n'.join(self.lines) + '\n'


def vr(base, n=1):
    return 'v%d' % base if n == 1 else 'v[%d:%d]' % (base, base + n - 1)


def sr(base, n=1):
    return 's%d' % base if n == 1 else 's[%d:%d]' % (base, base + n - 1)
```

```python
from asmlib import Asm, vr, sr
from gen import (WS_Q, WS_K, WS_VT, WS_H, WS_O, WS_F, WS_END, LOG2E, f32hex, make_srd, bf16r_pair,
                 kernel_desc)

G_SLOT = 20480
G_RING = 3
G_LDS = G_SLOT * G_RING


def gemm2(a, kind, wg_sreg):
    K = 1536 if kind == 'down' else 640
    nst = K // 128
    a_stride = K * 2
    a_base = WS_H if kind == 'down' else WS_O
    V_DMA = 1
    V_RD = 6
    V_AO = 7
    V_EO = 8
    V_B = 16
    V_ACC = 56
    V_A = 80
    V_X = 144
    if kind == 'down':
        a('s_load_dwordx2 s[4:5], s[0:1], 48')
    else:
        a('s_load_dwordx2 s[4:5], s[0:1], 16')
        a('s_load_dwordx2 s[6:7], s[0:1], 0')
        a('s_load_dwordx2 s[8:9], s[0:1], 56')
    a('s_load_dwordx2 s[12:13], s[0:1], 72')
    a('s_and_b32 s32, s%d, 7' % wg_sreg)
    a('s_lshr_b32 s33, s%d, 3' % wg_sreg)
    a('s_lshl_b32 s34, s32, 2')
    a('s_and_b32 s35, s33, 3')
    a('s_add_u32 s34, s34, s35')
    a('s_lshr_b32 s35, s33, 2')
    a('v_lshrrev_b32 v9, 6, v0')
    a('v_readfirstlane_b32 s36, v9')
    a('v_and_b32 v0, 63, v0')
    a('v_and_b32 v9, 15, v0')
    a('v_lshrrev_b32 v10, 4, v0')
    a('s_lshl_b32 s39, s34, 6')
    a('s_lshl_b32 s40, s36, 4')
    a('s_add_u32 s39, s39, s40')
    a.wait_lg_all()
    make_srd(a, 16, 's4', 's5', K * 1280)
    make_srd(a, 28, 's12', 's13', WS_END)
    if kind == 'out':
        make_srd(a, 20, 's6', 's7', 2048 * 1280)
        make_srd(a, 24, 's8', 's9', 2048 * 1280)
    a('v_mul_u32_u24 v%d, %d, v9' % (V_AO, a_stride))
    a('v_lshl_add_u32 v%d, v10, 4, v%d' % (V_AO, V_AO))
    a('s_mul_i32 s41, s39, %d' % a_stride)
    a('s_add_u32 s41, s41, %d' % a_base)
    a('s_mul_i32 s42, s36, 320')
    a('s_mul_i32 s43, s35, 160')
    for i in range(5):
        a('v_add_u32 v11, s42, v0')
        if i:
            a('v_add_u32 v11, %d, v11' % (64 * i))
        a('v_mul_u32_u24 v12, 52429, v11')
        a('v_lshrrev_b32 v12, 19, v12')
        a('v_mul_u32_u24 v13, 10, v12')
        a('v_sub_u32 v13, v11, v13')
        a('v_mul_u32_u24 v12, 1280, v12')
        a('v_lshl_add_u32 v12, v13, 4, v12')
        a('v_add_u32 v%d, s43, v12' % (V_DMA + i))
    a('s_mul_i32 s44, s36, 5120')
    a('v_bfe_u32 v11, v0, 2, 2')
    a('v_lshl_add_u32 v11, v10, 2, v11')
    a('v_mul_u32_u24 v11, 160, v11')
    a('v_and_b32 v12, 3, v0')
    a('v_lshl_add_u32 v%d, v12, 3, v11' % V_RD)
    a('v_add_u32 v11, s39, v9')
    a('v_mul_u32_u24 v11, 1280, v11')
    a('v_lshl_add_u32 v11, v10, 3, v11')
    a('v_add_u32 v%d, s43, v11' % V_EO)

    def areg(t, ks):
        return V_A + ((t % 4) * 4 + ks) * 4

    def issue_stage(t):
        slot = t % G_RING
        a('s_add_u32 s45, s41, %d' % (t * 256))
        for ks in range(4):
            a('buffer_load_dwordx4 %s, v%d, s[28:31], s45 offen offset:%d' % (vr(areg(t, ks), 4), V_AO, ks * 64),
              tag=('A', t))
        a('s_mov_b32 s46, %d' % (t * 128 * 1280))
        for i in range(5):
            a('s_add_u32 m0, s44, %d' % (slot * G_SLOT + i * 1024))
            a('buffer_load_dwordx4 v%d, s[16:19], s46 offen lds' % (V_DMA + i), tag=('D', t))

    for t in range(min(3, nst)):
        issue_stage(t)
    if kind == 'out':
        a('s_mov_b32 s47, %d' % WS_F)
        for j in range(5):
            a('buffer_load_dwordx2 %s, v%d, s[20:23], 0 offen offset:%d' % (vr(V_X + j * 4, 2), V_EO, j * 32), tag='X')
            a('buffer_load_dwordx2 %s, v%d, s[28:31], s47 offen offset:%d' % (vr(V_X + j * 4 + 2, 2), V_EO, j * 32), tag='X')

    def read_unit(n, j):
        t, ks = divmod(n, 4)
        b = V_B + (n % 2) * 20 + j * 4
        o = (t % G_RING) * G_SLOT + ks * 32 * 160 + j * 32
        a('ds_read_b64_tr_b16 %s, v%d offset:%d' % (vr(b, 2), V_RD, o), tag=('B', n, j))
        a('ds_read_b64_tr_b16 %s, v%d offset:%d' % (vr(b + 2, 2), V_RD, o + 16 * 160), tag=('B', n, j))

    def stage_enter(t):
        a.wait_lg_all()
        a.wait_vm(('D', t))
        a('s_barrier')
        if t >= 1 and t + 2 < nst:
            issue_stage(t + 2)

    nk = nst * 4
    stage_enter(0)
    for j in range(5):
        read_unit(0, j)
    for n in range(nk):
        nxt = n + 1
        if nxt < nk and nxt % 4 == 0:
            stage_enter(nxt // 4)
        t, ks = divmod(n, 4)
        for j in range(5):
            a.wait_lg(('B', n, j))
            b = V_B + (n % 2) * 20 + j * 4
            acc = vr(V_ACC + j * 4, 4)
            a('v_mfma_f32_16x16x32_bf16 %s, %s, %s, %s' % (acc, vr(b, 4), vr(areg(t, ks), 4), acc if n else '0'))
            if nxt < nk:
                read_unit(nxt, j)
    T = 16
    if kind == 'down':
        a('s_mov_b32 s47, %d' % WS_F)
        for j in range(5):
            ac = V_ACC + j * 4
            d = T + j * 2
            a('v_cvt_pk_bf16_f32 v%d, v%d, v%d' % (d, ac, ac + 1))
            a('v_cvt_pk_bf16_f32 v%d, v%d, v%d' % (d + 1, ac + 2, ac + 3))
            a('buffer_store_dwordx2 %s, v%d, s[28:31], s47 offen offset:%d' % (vr(d, 2), V_EO, j * 32), tag='st')
    else:
        a.wait_vm('X')
        for j in range(5):
            ac = V_ACC + j * 4
            xs = V_X + j * 4
            t = T + (j % 2) * 16
            bf16r_pair(a, t, t + 1, ac, ac + 1, t + 8)
            bf16r_pair(a, t + 2, t + 3, ac + 2, ac + 3, t + 9)
            a('v_lshlrev_b32 v%d, 16, v%d' % (t + 4, xs))
            a('v_and_b32 v%d, 0xffff0000, v%d' % (t + 5, xs))
            a('v_lshlrev_b32 v%d, 16, v%d' % (t + 6, xs + 1))
            a('v_and_b32 v%d, 0xffff0000, v%d' % (t + 7, xs + 1))
            for r in range(4):
                a('v_add_f32 v%d, v%d, v%d' % (t + r, t + r, t + 4 + r))
            bf16r_pair(a, t, t + 1, t, t + 1, t + 8)
            bf16r_pair(a, t + 2, t + 3, t + 2, t + 3, t + 9)
            a('v_lshlrev_b32 v%d, 16, v%d' % (t + 4, xs + 2))
            a('v_and_b32 v%d, 0xffff0000, v%d' % (t + 5, xs + 2))
            a('v_lshlrev_b32 v%d, 16, v%d' % (t + 6, xs + 3))
            a('v_and_b32 v%d, 0xffff0000, v%d' % (t + 7, xs + 3))
            for r in range(4):
                a('v_add_f32 v%d, v%d, v%d' % (t + r, t + r, t + 4 + r))
            a('v_cvt_pk_bf16_f32 v%d, v%d, v%d' % (t + 10, t, t + 1))
            a('v_cvt_pk_bf16_f32 v%d, v%d, v%d' % (t + 11, t + 2, t + 3))
            a('buffer_store_dwordx2 %s, v%d, s[24:27], 0 offen offset:%d' % (vr(t + 10, 2), V_EO, j * 32), tag='st')


def attention(a, wg_sreg):
    V_Q = 16
    V_K = 24
    V_S = 96
    V_O = 240

    def S(qt, t):
        return V_S + (qt * 18 + t) * 4

    a('s_load_dwordx2 s[12:13], s[0:1], 72')
    a('s_and_b32 s32, s%d, 7' % wg_sreg)
    a('s_lshr_b32 s33, s%d, 3' % wg_sreg)
    a('s_lshl_b32 s34, s32, 2')
    a('s_and_b32 s35, s33, 3')
    a('s_add_u32 s34, s34, s35')
    a('s_lshr_b32 s35, s33, 2')
    a('v_lshrrev_b32 v1, 6, v0')
    a('v_readfirstlane_b32 s36, v1')
    a('v_and_b32 v0, 63, v0')
    a('v_and_b32 v1, 15, v0')
    a('v_lshrrev_b32 v2, 4, v0')
    a('s_lshl_b32 s37, s35, 3')
    a('s_lshl_b32 s38, s36, 1')
    a('s_add_u32 s37, s37, s38')
    a('s_lshl_b32 s37, s37, 5')
    a.wait_lg_all()
    a('s_mul_i32 s38, s34, 81920')
    for d, base in ((16, WS_Q), (20, WS_K), (24, WS_VT)):
        a('s_add_u32 s39, s38, %d' % base)
        a('s_add_u32 s%d, s12, s39' % d)
        a('s_addc_u32 s%d, s13, 0' % (d + 1))
        a('s_and_b32 s%d, s%d, 0xffff' % (d + 1, d + 1))
        a('s_mov_b32 s%d, 81920' % (d + 2))
        a('s_mov_b32 s%d, 0x00020000' % (d + 3))
    make_srd(a, 28, 's12', 's13', WS_END)
    a('v_lshlrev_b32 v3, 2, v2')
    for r in range(4):
        a('v_add_u32 v4, %d, v3' % r)
        a('v_cmp_gt_u32 s[%d:%d], v4, v1' % (48 + 2 * r, 49 + 2 * r))
        a('v_cmp_le_u32 s[%d:%d], v4, v1' % (56 + 2 * r, 57 + 2 * r))
    a('v_mov_b32 v15, %s' % f32hex(-1e30))
    a('v_cmp_eq_u32 s[66:67], 4, v1')
    a('v_mov_b32 v14, 0x3f803f80')
    a('v_cmp_eq_u32 s[64:65], 0, v2')
    a('v_mul_u32_u24 v3, 40, v1')
    a('v_lshl_add_u32 v3, v2, 3, v3')
    a('v_lshlrev_b32 v4, 12, v1')
    a('v_lshl_add_u32 v4, v2, 4, v4')
    a('v_xor_b32 v5, 16, v0')
    a('v_lshlrev_b32 v5, 2, v5')
    a('v_xor_b32 v6, 32, v0')
    a('v_lshlrev_b32 v6, 2, v6')
    a('v_add_u32 v7, 16, v1')
    a('v_lshlrev_b32 v7, 2, v7')
    a('s_mul_i32 s39, s34, 5')
    a('v_add_u32 v8, s39, v2')

    def gpos(dst, G, t1, t2):
        a('v_lshrrev_b32 v%d, 3, v%d' % (t1, G))
        a('v_lshlrev_b32 v%d, 6, v%d' % (t1, t1))
        a('v_and_b32 v%d, 3, v%d' % (t2, G))
        a('v_lshl_add_u32 v%d, v%d, 4, v%d' % (t1, t2, t1))
        a('v_bfe_u32 v%d, v%d, 2, 1' % (t2, G))
        a('v_lshl_add_u32 v%d, v%d, 3, v%d' % (dst, t2, t1))
    gpos(8, 8, 10, 11)
    a('s_add_u32 s39, s39, 4')
    a('v_mov_b32 v9, s39')
    gpos(9, 9, 10, 11)
    a('v_mov_b32 v10, 0x40000000')
    a('v_cndmask_b32 v9, v10, v9, s[64:65]')
    a('v_mul_u32_u24 v10, 1280, v1')
    a('v_add_u32 v8, v8, v10')
    a('v_add_u32 v9, v9, v10')
    a('s_mov_b32 s40, %s' % f32hex(20 ** -0.5 * LOG2E))
    a('s_mov_b32 s41, 65536')
    a('s_mov_b32 s42, 0')

    L_loop = a.newlabel('att')
    a.wait_vm_all()
    a.label(L_loop)
    a('s_mul_i32 s43, s37, 40')
    a('v_add_u32 v10, s43, v3')
    a('v_add_u32 v11, 32, v10')
    a('v_mov_b32 v12, 0x40000000')
    a('v_cndmask_b32 v11, v12, v11, s[64:65]')
    for qt in range(2):
        a('buffer_load_dwordx2 %s, v10, s[16:19], 0 offen offset:%d' % (vr(V_Q + qt * 4, 2), qt * 640), tag='Q')
        a('buffer_load_dwordx2 %s, v11, s[16:19], 0 offen offset:%d' % (vr(V_Q + qt * 4 + 2, 2), qt * 640), tag='Q')
    a('s_sub_u32 s43, s43, %d' % (256 * 40))
    a('v_add_u32 v10, s43, v3')
    a('v_add_u32 v11, 32, v10')
    a('v_cndmask_b32 v11, v12, v11, s[64:65]')
    for t in range(18):
        if t:
            a('v_add_u32 v12, %d, v10' % (640 * t))
            a('v_add_u32 v13, %d, v11' % (640 * t))
            a('buffer_load_dwordx2 %s, v12, s[20:23], 0 offen' % vr(V_K + t * 4, 2), tag=('K', t))
            a('buffer_load_dwordx2 %s, v13, s[20:23], 0 offen' % vr(V_K + t * 4 + 2, 2), tag=('K', t))
        else:
            a('buffer_load_dwordx2 %s, v10, s[20:23], 0 offen' % vr(V_K, 2), tag=('K', t))
            a('buffer_load_dwordx2 %s, v11, s[20:23], 0 offen' % vr(V_K + 2, 2), tag=('K', t))
    for t in range(18):
        a.wait_vm(('K', t))
        for qt in range(2):
            if (qt == 0 and t == 17) or (qt == 1 and t == 0):
                continue
            a('v_mfma_f32_16x16x32_bf16 %s, %s, %s, 0' % (vr(S(qt, t), 4), vr(V_K + t * 4, 4), vr(V_Q + qt * 4, 4)))
    a('s_lshl_b32 s43, s37, 1')
    a('s_sub_u32 s43, s43, 512')
    a('v_add_u32 v10, s43, v4')
    for b in range(9):
        a('v_add_u32 v12, %d, v10' % (64 * b))
        a('buffer_load_dwordx4 %s, v12, s[24:27], 0 offen' % vr(V_K + b * 8, 4), tag=('V', b))
        a('buffer_load_dwordx4 %s, v12, s[24:27], s41 offen' % vr(V_K + b * 8 + 4, 4), tag=('V', b))
    for qt in range(2):
        tf, tl = qt, 16 + qt
        for r in range(4):
            a('v_cndmask_b32 v%d, v15, v%d, s[%d:%d]' % (S(qt, tf) + r, S(qt, tf) + r, 48 + 2 * r, 49 + 2 * r))
            a('v_cndmask_b32 v%d, v15, v%d, s[%d:%d]' % (S(qt, tl) + r, S(qt, tl) + r, 56 + 2 * r, 57 + 2 * r))
    L_noneg = a.newlabel('noneg')
    a('s_cmp_ge_u32 s37, 256')
    a.branch('s_cbranch_scc1 %s' % L_noneg)
    a('s_sub_u32 s43, 256, s37')
    a('s_lshr_b32 s43, s43, 4')
    for t in range(16):
        a('s_cmp_le_u32 s43, %d' % t)
        a.branch('s_cbranch_scc1 %s' % L_noneg)
        for qt in range(2):
            if qt == 1 and t == 0:
                continue
            for r in range(4):
                a('v_mov_b32 v%d, v15' % (S(qt, t) + r))
    a.label(L_noneg)
    for qt in range(2):
        regs = [S(qt, t) + r for t in range(qt, 17 + qt) for r in range(4)]
        m = 10 + qt
        a('v_max3_f32 v%d, v%d, v%d, v%d' % (m, regs[0], regs[1], regs[2]))
        k = 3
        m2 = 12 + qt
        a('v_max3_f32 v%d, v%d, v%d, v%d' % (m2, regs[3], regs[4], regs[5]))
        k = 6
        tog = 0
        while k + 1 < len(regs):
            mm = m if tog == 0 else m2
            a('v_max3_f32 v%d, v%d, v%d, v%d' % (mm, mm, regs[k], regs[k + 1]))
            k += 2
            tog ^= 1
        if k < len(regs):
            a('v_max_f32 v%d, v%d, v%d' % (m, m, regs[k]))
        a('v_max_f32 v%d, v%d, v%d' % (m, m, m2))
    for addr in (5, 6):
        for qt in range(2):
            a('ds_bpermute_b32 v%d, v%d, v%d' % (12 + qt, addr, 10 + qt), tag='bp')
        a.wait_lg_all()
        for qt in range(2):
            a('v_max_f32 v%d, v%d, v%d' % (10 + qt, 10 + qt, 12 + qt))
    for qt in range(2):
        a('v_mul_f32 v%d, s40, v%d' % (10 + qt, 10 + qt))
    for qt in range(2):
        for t in range(qt, 17 + qt):
            for r in range(4):
                a('v_fma_f32 v%d, v%d, s40, -v%d' % (S(qt, t) + r, S(qt, t) + r, 10 + qt))
            for r in range(4):
                a('v_exp_f32 v%d, v%d' % (S(qt, t) + r, S(qt, t) + r))
        for b in range(9):
            p = S(qt, 2 * b)
            q = S(qt, 2 * b + 1)
            if qt == 1 and b == 0:
                a('v_cvt_pk_bf16_f32 v%d, v%d, v%d' % (p + 2, q, q + 1))
                a('v_cvt_pk_bf16_f32 v%d, v%d, v%d' % (p + 3, q + 2, q + 3))
                a('v_mov_b32 v%d, 0' % p)
                a('v_mov_b32 v%d, 0' % (p + 1))
            else:
                a('v_cvt_pk_bf16_f32 v%d, v%d, v%d' % (p, p, p + 1))
                a('v_cvt_pk_bf16_f32 v%d, v%d, v%d' % (p + 1, p + 2, p + 3))
                if qt == 0 and b == 8:
                    a('v_mov_b32 v%d, 0' % (p + 2))
                    a('v_mov_b32 v%d, 0' % (p + 3))
                else:
                    a('v_cvt_pk_bf16_f32 v%d, v%d, v%d' % (p + 2, q, q + 1))
                    a('v_cvt_pk_bf16_f32 v%d, v%d, v%d' % (p + 3, q + 2, q + 3))
    for b in range(9):
        a.wait_vm(('V', b))
        for r in range(4):
            a('v_cndmask_b32 v%d, v%d, v14, s[66:67]' % (V_K + b * 8 + 4 + r, V_K + b * 8 + 4 + r))
        for qt in range(2):
            for dt in range(2):
                o = vr(V_O + (qt * 2 + dt) * 4, 4)
                a('v_mfma_f32_16x16x32_bf16 %s, %s, %s, %s' % (o, vr(V_K + b * 8 + dt * 4, 4), vr(S(qt, 2 * b), 4), o if b else '0'))
    for qt in range(2):
        a('ds_bpermute_b32 v%d, v7, v%d' % (10 + qt, V_O + (qt * 2 + 1) * 4), tag='bp')
    a.wait_lg_all()
    a('s_mul_i32 s43, s37, 1280')
    a('s_add_u32 s43, s43, %d' % WS_O)
    a('s_add_u32 s44, s43, %d' % (16 * 1280))
    for qt in range(2):
        a('v_rcp_f32 v%d, v%d' % (10 + qt, 10 + qt))
        for dt in range(2):
            o = V_O + (qt * 2 + dt) * 4
            for r in range(4):
                a('v_mul_f32 v%d, v%d, v%d' % (o + r, o + r, 10 + qt))
            a('v_cvt_pk_bf16_f32 v%d, v%d, v%d' % (o, o, o + 1))
            a('v_cvt_pk_bf16_f32 v%d, v%d, v%d' % (o + 1, o + 2, o + 3))
            a('buffer_store_dwordx2 %s, v%d, s[28:31], s%d offen' % (vr(o, 2), 8 + dt, 43 + qt), tag='st')
    a.wait_vm_all()
    a('s_add_u32 s37, s37, 32')
    a('s_add_u32 s42, s42, 1')
    a('s_cmp_lt_u32 s42, 2')
    a.branch('s_cbranch_scc1 %s' % L_loop)


def emit(a, launches, descs, which):
    if '2' in which:
        name = 'k2_kernel'
        a.raw('.globl %s' % name)
        a.raw('.p2align 8')
        a.raw('.type %s,@function' % name)
        a.raw('%s:' % name)
        a.hist = []
        a.vm = []
        a.lg = []
        a('s_cmp_ge_u32 s2, 512')
        a.branch('s_cbranch_scc1 .k2_end')
        a('s_cmp_ge_u32 s2, 256')
        a.branch('s_cbranch_scc1 .k2_gemm')
        attention(a, 2)
        a.branch('s_branch .k2_end')
        a.label('.k2_gemm')
        a.vm = []
        a.lg = []
        a('s_sub_u32 s3, s2, 256')
        gemm2(a, 'down', 3)
        a.label('.k2_end')
        a('s_endpgm')
        launches.append('; @launch kernel=k2_kernel grid=(512,1,1) block=(256,1,1) lds=%d' % G_LDS)
        descs.append(kernel_desc('k2_kernel', 256))
    if '3' in which:
        name = 'k3_kernel'
        a.raw('.globl %s' % name)
        a.raw('.p2align 8')
        a.raw('.type %s,@function' % name)
        a.raw('%s:' % name)
        a.hist = []
        a.vm = []
        a.lg = []
        a('s_cmp_ge_u32 s2, 256')
        a.branch('s_cbranch_scc1 .k3_end')
        gemm2(a, 'out', 2)
        a.label('.k3_end')
        a('s_endpgm')
        launches.append('; @launch kernel=k3_kernel grid=(256,1,1) block=(256,1,1) lds=%d' % G_LDS)
        descs.append(kernel_desc('k3_kernel', 164))
```

```python
import sys
import os
sys.path.insert(0, os.path.dirname(os.path.abspath(__file__)))
from asmlib import Asm, vr, sr

WS_Q = 0
WS_K = 0x280000
WS_VT = 0x500000
WS_H = 0x780000
WS_O = 0xD80000
WS_F = 0x1000000
WS_END = 0x1280000

LOG2E = 1.4426950408889634


def f32hex(x):
    import struct
    return '0x%08x' % struct.unpack('<I', struct.pack('<f', x))[0]


def make_srd(a, d, base_lo, base_hi, nrec):
    a('s_mov_b32 s%d, %s' % (d, base_lo))
    a('s_and_b32 s%d, %s, 0xffff' % (d + 1, base_hi))
    a('s_mov_b32 s%d, %s' % (d + 2, nrec if isinstance(nrec, str) else '0x%x' % nrec))
    a('s_mov_b32 s%d, 0x00020000' % (d + 3))


def bf16r_pair(a, dst_lo, dst_hi, src_lo, src_hi, tmp):
    a('v_cvt_pk_bf16_f32 v%d, v%d, v%d' % (tmp, src_lo, src_hi))
    a('v_lshlrev_b32 v%d, 16, v%d' % (dst_lo, tmp))
    a('v_and_b32 v%d, 0xffff0000, v%d' % (dst_hi, tmp))


K1_SLOT = 40960
K1_R2 = 24576
K1_STASH = 3 * K1_SLOT
K1_LDS = K1_STASH + 8 * 2048

V_DMA = 1
V_RD = 6
V_T = 11
V_B = 16
V_ACC = 56
V_A = 96


def k1_areg(tile, s):
    return V_A + (tile * 20 + s) * 4


def k1_acc(j, tile):
    return V_ACC + (j * 2 + tile) * 4


def gen_k1(a):
    name = 'k1_kernel'
    a.raw('.globl %s' % name)
    a.raw('.p2align 8')
    a.raw('.type %s,@function' % name)
    a.raw('%s:' % name)
    L_end = '.k1_end'
    a('s_cmp_ge_u32 s2, 256')
    a.branch('s_cbranch_scc1 %s' % L_end)
    a('s_load_dwordx4 s[4:7], s[0:1], 0')
    a('s_load_dwordx4 s[8:11], s[0:1], 32')
    a('s_load_dwordx2 s[12:13], s[0:1], 72')
    a('s_and_b32 s32, s2, 7')
    a('s_lshr_b32 s33, s2, 3')
    a('s_and_b32 s34, s32, 1')
    a('s_lshl_b32 s34, s34, 3')
    a('s_and_b32 s35, s33, 7')
    a('s_add_u32 s34, s34, s35')
    a('s_lshr_b32 s35, s32, 1')
    a('s_lshl_b32 s35, s35, 2')
    a('s_lshr_b32 s36, s33, 3')
    a('s_add_u32 s35, s35, s36')
    a('v_lshrrev_b32 v11, 6, v0')
    a('v_readfirstlane_b32 s36, v11')
    a('v_and_b32 v0, 63, v0')
    a('s_and_b32 s37, s36, 3')
    a('s_lshr_b32 s38, s36, 2')
    a('s_lshl_b32 s39, s34, 7')
    a('s_lshl_b32 s40, s37, 5')
    a('s_add_u32 s39, s39, s40')
    a.wait_lg_all()
    make_srd(a, 24, 's4', 's5', 2048 * 1280)
    make_srd(a, 28, 's12', 's13', WS_END)
    a('v_and_b32 v11, 15, v0')
    a('v_lshrrev_b32 v12, 4, v0')
    a('v_mul_u32_u24 v13, 1280, v11')
    a('v_lshl_add_u32 v13, v12, 4, v13')
    a('s_mul_i32 s40, s39, 1280')
    a('s_add_u32 s41, s40, 20480')
    for s in range(20):
        for tile in range(2):
            a('buffer_load_dwordx4 %s, v13, s[24:27], s%d offen offset:%d' % (vr(k1_areg(tile, s), 4), 40 + tile, s * 64),
              tag=('A', tile, s))
    L_gu = a.newlabel('k1gu')
    L_par = a.newlabel('k1par')
    a('s_cmp_ge_u32 s35, 6')
    a.branch('s_cbranch_scc1 %s' % L_gu)
    a('s_movk_i32 s42, 3840')
    a('s_mul_i32 s43, s35, 640')
    a('s_add_u32 s16, s6, s43')
    a('s_addc_u32 s17, s7, 0')
    a('s_sub_u32 s18, %d, s43' % (640 * 3840))
    a('s_add_u32 s43, s43, 320')
    a('s_add_u32 s20, s6, s43')
    a('s_addc_u32 s21, s7, 0')
    a('s_sub_u32 s22, %d, s43' % (640 * 3840))
    a('s_mov_b32 s44, 0')
    a('s_mov_b32 s45, 10')
    a.branch('s_branch %s' % L_par)
    a.label(L_gu)
    a('s_movk_i32 s42, 3072')
    a('s_sub_u32 s43, s35, 6')
    a('s_mul_i32 s44, s43, 10')
    a('s_mov_b32 s45, 10')
    L_j6 = a.newlabel('k1j6')
    a('s_cmp_lt_u32 s43, 6')
    a.branch('s_cbranch_scc1 %s' % L_j6)
    a('s_mul_i32 s44, s43, 9')
    a('s_add_u32 s44, s44, 6')
    a('s_mov_b32 s45, 9')
    a.label(L_j6)
    a('s_lshl_b32 s43, s44, 5')
    a('s_add_u32 s16, s8, s43')
    a('s_addc_u32 s17, s9, 0')
    a('s_sub_u32 s18, %d, s43' % (640 * 3072))
    a('s_add_u32 s20, s10, s43')
    a('s_addc_u32 s21, s11, 0')
    a('s_sub_u32 s22, %d, s43' % (640 * 3072))
    a.label(L_par)
    a('s_and_b32 s17, s17, 0xffff')
    a('s_and_b32 s21, s21, 0xffff')
    a('s_mov_b32 s19, 0x00020000')
    a('s_mov_b32 s23, 0x00020000')
    a('s_lshl_b32 s46, s42, 7')
    a('s_mul_i32 s47, s36, 3072')
    a('s_lshl_b32 s48, s36, 11')
    a('s_add_u32 s48, s48, %d' % K1_R2)
    a('s_mul_i32 s49, s36, 192')
    for i in range(3):
        a('v_add_u32 v16, s49, v0')
        if i:
            a('v_add_u32 v16, %d, v16' % (64 * i))
        a('v_mul_u32_u24 v17, 43691, v16')
        a('v_lshrrev_b32 v17, 19, v17')
        a('v_mul_u32_u24 v18, 12, v17')
        a('v_sub_u32 v18, v16, v18')
        a('v_lshrrev_b32 v19, 1, v18')
        a('v_bfe_u32 v20, v17, 3, 1')
        a('v_xor_b32 v19, v19, v20')
        a('v_cmp_le_u32 vcc, 3, v19')
        a('v_cndmask_b32 v20, 0, 2, vcc')
        a('v_add_u32 v19, v19, v20')
        a('v_and_b32 v18, 1, v18')
        a('v_lshlrev_b32 v18, 4, v18')
        a('v_lshl_add_u32 v18, v19, 5, v18')
        a('v_mul_lo_u32 v17, v17, s42')
        a('v_add_u32 v%d, v17, v18' % (V_DMA + i))
    a('s_lshl_b32 s49, s36, 7')
    for i in range(2):
        a('v_add_u32 v16, s49, v0')
        if i:
            a('v_add_u32 v16, %d, v16' % (64 * i))
        a('v_lshrrev_b32 v17, 3, v16')
        a('v_and_b32 v18, 7, v16')
        a('v_lshrrev_b32 v19, 1, v18')
        a('v_bfe_u32 v20, v17, 1, 1')
        a('v_bfe_u32 v21, v17, 3, 1')
        a('v_lshl_or_b32 v20, v21, 1, v20')
        a('v_xor_b32 v19, v19, v20')
        a('v_cmp_le_u32 vcc, 2, v19')
        a('v_cndmask_b32 v20, 0, 3, vcc')
        a('v_add_u32 v19, v19, v20')
        a('v_and_b32 v18, 1, v18')
        a('v_lshlrev_b32 v18, 4, v18')
        a('v_lshl_add_u32 v18, v19, 5, v18')
        a('v_mul_lo_u32 v17, v17, s42')
        a('v_add_u32 v%d, v17, v18' % (V_DMA + 3 + i))

    def issue_dma(t):
        p, st = divmod(t, 5)
        slot = t % 3
        a('s_mul_i32 s50, s46, %d' % st)
        a('s_add_u32 s51, s50, %d' % (p * 96))
        a('s_add_u32 s50, s50, %d' % (p * 64))
        srd1, srd2 = (16, 20) if p == 0 else (20, 16)
        for i in range(3):
            a('s_add_u32 m0, s47, %d' % (slot * K1_SLOT + i * 1024))
            a('buffer_load_dwordx4 v%d, %s, s50 offen lds' % (V_DMA + i, sr(srd1, 4)), tag=('D', t))
        for i in range(2):
            a('s_add_u32 m0, s48, %d' % (slot * K1_SLOT + i * 1024))
            a('buffer_load_dwordx4 v%d, %s, s51 offen lds' % (V_DMA + 3 + i, sr(srd2, 4)), tag=('D', t))

    for t in range(3):
        issue_dma(t)

    a('v_bfe_u32 v16, v0, 2, 2')
    a('v_and_b32 v17, 3, v0')
    a('v_lshl_add_u32 v18, v12, 3, v16')
    a('v_and_b32 v19, 1, v12')
    a('s_mul_i32 s49, s38, 3')
    for j in range(3):
        a('s_add_u32 s50, s49, %d' % j)
        a('v_xor_b32 v20, s50, v19')
        a('v_lshlrev_b32 v20, 5, v20')
        a('v_lshl_add_u32 v20, v17, 3, v20')
        a('v_mul_u32_u24 v21, 192, v18')
        a('v_add_u32 v%d, v20, v21' % (V_RD + j))
    a('v_lshrrev_b32 v20, 1, v16')
    a('v_lshl_or_b32 v19, v19, 1, v20')
    a('s_lshl_b32 s49, s38, 1')
    for j in range(2):
        a('s_add_u32 s50, s49, %d' % j)
        a('v_xor_b32 v20, s50, v19')
        a('v_lshlrev_b32 v20, 5, v20')
        a('v_lshl_add_u32 v20, v17, 3, v20')
        a('v_lshl_add_u32 v20, v18, 7, v20')
        a('v_add_u32 v%d, %d, v20' % (V_RD + 3 + j, K1_R2))

    for r in range(16, 20):
        a('v_mov_b32 v%d, 0' % r)
    a('v_mov_b32 v20, 0x3f803f80')
    for s in range(20):
        for tile in range(2):
            a.wait_vm(('A', tile, s))
            base = k1_areg(tile, s)
            for q in range(4):
                a('v_dot2_f32_bf16 v%d, v%d, v20, v%d' % (16 + tile * 2, base + q, 16 + tile * 2))
                a('v_dot2_f32_bf16 v%d, v%d, v%d, v%d' % (17 + tile * 2, base + q, base + q, 17 + tile * 2))
    a('v_xor_b32 v21, 16, v0')
    a('v_lshlrev_b32 v21, 2, v21')
    a('v_xor_b32 v22, 32, v0')
    a('v_lshlrev_b32 v22, 2, v22')
    for addr in (21, 22):
        for r in range(4):
            a('ds_bpermute_b32 v%d, v%d, v%d' % (24 + r, addr, 16 + r), tag='bp')
        a.wait_lg_all()
        for r in range(4):
            a('v_add_f32 v%d, v%d, v%d' % (16 + r, 16 + r, 24 + r))
    inv = f32hex(1.0 / 640.0)
    for tile in range(2):
        su, sq = 16 + tile * 2, 17 + tile * 2
        R, C = 28 + 4 * tile, 30 + 4 * tile
        a('v_mul_f32 v24, %s, v%d' % (inv, su))
        a('v_mul_f32 v25, %s, v%d' % (inv, sq))
        a('v_fma_f32 v25, -v24, v24, v25')
        a('v_max_f32 v25, 0, v25')
        bf16r_pair(a, 24, 25, 24, 25, 26)
        a('v_add_f32 v25, %s, v25' % f32hex(1e-5))
        a('v_cvt_pk_bf16_f32 v26, v25, v25')
        a('v_lshlrev_b32 v25, 16, v26')
        a('v_sqrt_f32 v25, v25')
        a('v_cvt_pk_bf16_f32 v26, v25, v25')
        a('v_lshlrev_b32 v25, 16, v26')
        a('v_rcp_f32 v%d, v25' % R)
        a('v_mul_f32 v%d, v24, v%d' % (C, R))
        a('v_sub_f32 v%d, 0, v%d' % (C, C))
        a('v_mov_b32 v%d, v%d' % (R + 1, R))
        a('v_mov_b32 v%d, v%d' % (C + 1, C))
    n = 0
    for s in range(20):
        for tile in range(2):
            R, C = 28 + 4 * tile, 30 + 4 * tile
            base = k1_areg(tile, s)
            tp = [40 + 2 * ((n + q) % 8) for q in range(4)]
            n += 4
            for q in range(4):
                a('v_lshlrev_b32 v%d, 16, v%d' % (tp[q], base + q))
                a('v_and_b32 v%d, 0xffff0000, v%d' % (tp[q] + 1, base + q))
            for q in range(4):
                a('v_pk_fma_f32 %s, %s, %s, %s' % (vr(tp[q], 2), vr(tp[q], 2), vr(R, 2), vr(C, 2)))
            for q in range(4):
                a('v_cvt_pk_bf16_f32 v%d, v%d, v%d' % (base + q, tp[q], tp[q] + 1))

    L_v = a.newlabel('k1v')
    L_g = a.newlabel('k1g')
    a('s_cmp_ge_u32 s35, 6')
    a.branch('s_cbranch_scc1 %s' % L_g)
    a('s_cmp_ge_u32 s35, 4')
    a.branch('s_cbranch_scc1 %s' % L_v)
    saved = (list(a.vm), list(a.lg))
    k1_body(a, 'qk')
    a.branch('s_branch %s' % L_end)
    a.label(L_v)
    a.vm, a.lg = list(saved[0]), list(saved[1])
    k1_body(a, 'v')
    a.branch('s_branch %s' % L_end)
    a.label(L_g)
    a.vm, a.lg = list(saved[0]), list(saved[1])
    k1_body(a, 'gu')
    a.label(L_end)
    a('s_endpgm')


def k1_body(a, kind):
    def issue_dma(t):
        p, st = divmod(t, 5)
        slot = t % 3
        a('s_mul_i32 s50, s46, %d' % st)
        a('s_add_u32 s51, s50, %d' % (p * 96))
        a('s_add_u32 s50, s50, %d' % (p * 64))
        srd1, srd2 = (16, 20) if p == 0 else (20, 16)
        for i in range(3):
            a('s_add_u32 m0, s47, %d' % (slot * K1_SLOT + i * 1024))
            a('buffer_load_dwordx4 v%d, %s, s50 offen lds' % (V_DMA + i, sr(srd1, 4)), tag=('D', t))
        for i in range(2):
            a('s_add_u32 m0, s48, %d' % (slot * K1_SLOT + i * 1024))
            a('buffer_load_dwordx4 v%d, %s, s51 offen lds' % (V_DMA + 3 + i, sr(srd2, 4)), tag=('D', t))

    cur_slot = [0]

    def set_slot(slot):
        d = (slot - cur_slot[0]) * K1_SLOT
        if d:
            for j in range(5):
                if d > 0:
                    a('v_add_u32 v%d, %d, v%d' % (V_RD + j, d, V_RD + j))
                else:
                    a('v_subrev_u32 v%d, %d, v%d' % (V_RD + j, -d, V_RD + j))
        cur_slot[0] = slot

    def read_unit(n, j):
        ks = n % 4
        b = V_B + (n % 2) * 20 + j * 4
        if j < 3:
            o = ks * 6144
            a('ds_read_b64_tr_b16 %s, v%d offset:%d' % (vr(b, 2), V_RD + j, o), tag=('B', n, j))
            a('ds_read_b64_tr_b16 %s, v%d offset:%d' % (vr(b + 2, 2), V_RD + j, o + 768), tag=('B', n, j))
        else:
            o = ks * 4096
            a('ds_read_b64_tr_b16 %s, v%d offset:%d' % (vr(b, 2), V_RD + j, o), tag=('B', n, j))
            a('ds_read_b64_tr_b16 %s, v%d offset:%d' % (vr(b + 2, 2), V_RD + j, o + 512), tag=('B', n, j))

    def stage_enter(t):
        a.wait_lg_all()
        a.wait_vm(('D', t))
        a('s_barrier')
        if t + 2 <= 9 and t >= 1:
            issue_dma(t + 2)
        set_slot(t % 3)

    a('v_and_b32 v11, 15, v0')
    a('v_lshrrev_b32 v12, 4, v0')
    stage_enter(0)
    for j in range(5):
        read_unit(0, j)
    for n in range(40):
        p, s = divmod(n, 20)
        nxt = n + 1
        if nxt < 40 and nxt % 4 == 0:
            stage_enter(nxt // 4)
        for j in range(5):
            a.wait_lg(('B', n, j))
            b = V_B + (n % 2) * 20 + j * 4
            for tile in range(2):
                acc = vr(k1_acc(j, tile), 4)
                c = acc if s else '0'
                A = vr(k1_areg(tile, s), 4)
                B = vr(b, 4)
                if kind == 'v':
                    a('v_mfma_f32_16x16x32_bf16 %s, %s, %s, %s' % (acc, A, B, c))
                else:
                    a('v_mfma_f32_16x16x32_bf16 %s, %s, %s, %s' % (acc, B, A, c))
            if nxt < 40:
                read_unit(nxt, j)
        if s == 19:
            k1_epilogue(a, kind, p)


def k1_epilogue(a, kind, p):
    T = 36
    if p == 0:
        units = [0, 1, 2, 10, 11]
    else:
        units = [12, 13, 14, 3, 4]
    if kind == 'qk':
        a('s_and_b32 s52, s35, 1')
        a('s_mul_i32 s52, s52, 80')
        a('s_mul_i32 s53, s38, 20')
        a('s_add_u32 s52, s52, s53')
        a('s_lshr_b32 s53, s35, 1')
        a('s_mul_i32 s53, s53, %d' % WS_K)
        a('v_add_u32 v13, s39, v11')
        a('v_mul_u32_u24 v13, 40, v13')
        for j in range(5):
            a('s_add_u32 s54, s52, %d' % (units[j] * 4))
            a('v_add_u32 v%d, s54, v12' % T)
            a('v_mul_u32_u24 v%d, 205, v%d' % (T + 1, T))
            a('v_lshrrev_b32 v%d, 10, v%d' % (T + 1, T + 1))
            a('v_mul_u32_u24 v%d, 5, v%d' % (T + 2, T + 1))
            a('v_sub_u32 v%d, v%d, v%d' % (T + 2, T, T + 2))
            a('v_mul_u32_u24 v%d, 81920, v%d' % (T + 1, T + 1))
            a('v_lshl_add_u32 v%d, v%d, 3, v%d' % (T + 1, T + 2, T + 1))
            a('v_add_u32 v%d, v%d, v13' % (T + 1, T + 1))
            for tile in range(2):
                ac = k1_acc(j, tile)
                d = T + 4 + tile * 2
                a('v_cvt_pk_bf16_f32 v%d, v%d, v%d' % (d, ac, ac + 1))
                a('v_cvt_pk_bf16_f32 v%d, v%d, v%d' % (d + 1, ac + 2, ac + 3))
                a('buffer_store_dwordx2 %s, v%d, s[28:31], s53 offen offset:%d' % (vr(d, 2), T + 1, tile * 640), tag='st')
            T = 36 + ((T - 36 + 8) % 16)
    elif kind == 'v':
        a('v_lshlrev_b32 v13, 12, v11')
        a('v_lshl_add_u32 v13, v12, 4, v13')
        a('s_sub_u32 s52, s35, 4')
        a('s_mul_i32 s52, s52, 320')
        a('s_mul_i32 s53, s38, 80')
        a('s_add_u32 s52, s52, s53')
        a('s_lshl_b32 s52, s52, 12')
        a('s_lshl_b32 s53, s39, 1')
        a('s_add_u32 s52, s52, s53')
        a('s_add_u32 s52, s52, %d' % WS_VT)
        for j in range(5):
            a('s_add_u32 s54, s52, %d' % (units[j] * 16 * 4096))
            d = T
            for tile in range(2):
                ac = k1_acc(j, tile)
                a('v_cvt_pk_bf16_f32 v%d, v%d, v%d' % (d + tile * 2, ac, ac + 1))
                a('v_cvt_pk_bf16_f32 v%d, v%d, v%d' % (d + tile * 2 + 1, ac + 2, ac + 3))
            a('buffer_store_dwordx4 %s, v13, s[28:31], s54 offen' % vr(d, 4), tag='st')
            T = 36 + ((T - 36 + 4) % 16)
    else:
        a('v_mul_u32_u24 v13, 3072, v11')
        a('v_lshl_add_u32 v13, v12, 4, v13')
        a('s_mul_i32 s52, s39, 3072')
        a('s_add_u32 s52, s52, %d' % WS_H)
        a('s_mul_i32 s53, s38, 5')
        a('s_add_u32 s53, s53, s44')
        a('v_lshlrev_b32 v14, 4, v0')
        a('s_lshl_b32 s55, s36, 11')
        a('s_add_u32 s55, s55, %d' % K1_STASH)
        a('v_add_u32 v14, s55, v14')
        if p == 0:
            work = [(0, k1_acc(0, 0), k1_acc(3, 0)), (1, k1_acc(1, 0), k1_acc(4, 0))]
            a('ds_write_b128 v14, %s offset:%d' % (vr(k1_acc(2, 0), 4), 0), tag='stash')
            a('ds_write_b128 v14, %s offset:%d' % (vr(k1_acc(2, 1), 4), 1024), tag='stash')
        else:
            a('ds_read_b128 v[48:51], v14 offset:0', tag='stash')
            a('ds_read_b128 v[52:55], v14 offset:1024', tag='stash')
            work = [(3, k1_acc(3, 0), k1_acc(1, 0)), (2, 48, k1_acc(0, 0)), (4, k1_acc(4, 0), k1_acc(2, 0))]
        for (pa, gbase, ubase) in work:
            L_skip = None
            if pa == 4:
                L_skip = a.newlabel('k1skip')
                a('s_mul_i32 s54, s38, 5')
                a('s_add_u32 s54, s54, 4')
                a('s_cmp_ge_u32 s54, s45')
                a.branch('s_cbranch_scc1 %s' % L_skip)
                saved = (list(a.vm), list(a.lg))
            if pa == 2:
                a.wait_lg('stash')
            a('s_add_u32 s54, s53, %d' % pa)
            a('s_lshr_b32 s55, s54, 1')
            a('s_lshl_b32 s55, s55, 6')
            a('s_and_b32 s54, s54, 1')
            a('s_lshl_b32 s54, s54, 3')
            a('s_add_u32 s54, s54, s55')
            a('s_add_u32 s54, s54, s52')
            a('s_add_u32 s55, s54, %d' % (16 * 3072))
            for tile in range(2):
                g0 = gbase + tile * 4
                u0 = ubase + tile * 4
                t = 36
                bf16r_pair(a, t, t + 1, g0, g0 + 1, t + 8)
                bf16r_pair(a, t + 2, t + 3, g0 + 2, g0 + 3, t + 9)
                bf16r_pair(a, t + 4, t + 5, u0, u0 + 1, t + 10)
                bf16r_pair(a, t + 6, t + 7, u0 + 2, u0 + 3, t + 11)
                for r in range(4):
                    a('v_mul_f32 v%d, %s, v%d' % (t + 8 + r, f32hex(-LOG2E), t + r))
                for r in range(4):
                    a('v_exp_f32 v%d, v%d' % (t + 8 + r, t + 8 + r))
                for r in range(4):
                    a('v_add_f32 v%d, 1.0, v%d' % (t + 8 + r, t + 8 + r))
                for r in range(4):
                    a('v_rcp_f32 v%d, v%d' % (t + 8 + r, t + 8 + r))
                for r in range(4):
                    a('v_mul_f32 v%d, v%d, v%d' % (t + r, t + r, t + 8 + r))
                bf16r_pair(a, t, t + 1, t, t + 1, t + 8)
                bf16r_pair(a, t + 2, t + 3, t + 2, t + 3, t + 9)
                for r in range(4):
                    a('v_mul_f32 v%d, v%d, v%d' % (t + r, t + r, t + 4 + r))
                d = 13 + 0
                o = 14 + 0
                a('v_cvt_pk_bf16_f32 v%d, v%d, v%d' % (t + 8, t, t + 1))
                a('v_cvt_pk_bf16_f32 v%d, v%d, v%d' % (t + 9, t + 2, t + 3))
                a('buffer_store_dwordx2 %s, v13, s[28:31], s%d offen' % (vr(t + 8, 2), 54 + tile), tag='st')
            if L_skip:
                a.label(L_skip)


def kernel_desc(name, vgpr, sgpr=96):
    return '''.section .rodata,"a"
.p2align 6
.amdhsa_kernel %s
  .amdhsa_next_free_vgpr %d
  .amdhsa_next_free_sgpr %d
  .amdhsa_accum_offset %d
  .amdhsa_group_segment_fixed_size 0
  .amdhsa_kernarg_size 80
  .amdhsa_user_sgpr_count 2
  .amdhsa_user_sgpr_kernarg_segment_ptr 1
  .amdhsa_system_sgpr_workgroup_id_x 1
.end_amdhsa_kernel
.text
''' % (name, vgpr, sgpr, (vgpr + 3) // 4 * 4)


HEADER = '''; Kernarg layout (80 bytes): A_x, A_wqkv, A_wo, B_x, B_w_gate, B_w_up, B_w_down, d_out, d_debug, d_ws
'''


def main():
    launches = []
    a = Asm()
    a.raw('.amdgcn_target "amdgcn-amd-amdhsa--gfx950"')
    a.raw('.text')
    which = os.environ.get('GEN_KERNELS', '123')
    descs = []
    if '1' in which:
        gen_k1(a)
        launches.append('; @launch kernel=k1_kernel grid=(256,1,1) block=(512,1,1) lds=%d' % K1_LDS)
        descs.append(kernel_desc('k1_kernel', 256))
    try:
        import gen2
        gen2.emit(a, launches, descs, which)
    except ImportError:
        pass
    out = HEADER + '\n'.join(launches) + '\n' + a.text() + ''.join(descs)
    path = sys.argv[1] if len(sys.argv) > 1 else 'parallel_sum__sliding_block__swiglu_ffn__prompt.s'
    open(path, 'w').write(out)
    print('wrote', path, len(out), 'bytes')


if __name__ == '__main__':
    main()
```

```python
from asmlib import Asm, vr, sr
from gen import (WS_Q, WS_K, WS_VT, WS_H, WS_O, WS_F, WS_END, LOG2E, f32hex, make_srd, bf16r_pair,
                 kernel_desc)

G_SLOT = 20480
G_RING = 3
G_LDS = G_SLOT * G_RING


def gemm2(a, kind, wg_sreg):
    K = 1536 if kind == 'down' else 640
    nst = K // 128
    a_stride = K * 2
    a_base = WS_H if kind == 'down' else WS_O
    V_DMA = 1
    V_RD = 6
    V_AO = 7
    V_EO = 8
    V_B = 16
    V_ACC = 56
    V_A = 80
    V_X = 144
    if kind == 'down':
        a('s_load_dwordx2 s[4:5], s[0:1], 48')
    else:
        a('s_load_dwordx2 s[4:5], s[0:1], 16')
        a('s_load_dwordx2 s[6:7], s[0:1], 0')
        a('s_load_dwordx2 s[8:9], s[0:1], 56')
    a('s_load_dwordx2 s[12:13], s[0:1], 72')
    a('s_and_b32 s32, s%d, 7' % wg_sreg)
    a('s_lshr_b32 s33, s%d, 3' % wg_sreg)
    a('s_lshl_b32 s34, s32, 2')
    a('s_and_b32 s35, s33, 3')
    a('s_add_u32 s34, s34, s35')
    a('s_lshr_b32 s35, s33, 2')
    a('v_lshrrev_b32 v9, 6, v0')
    a('v_readfirstlane_b32 s36, v9')
    a('v_and_b32 v0, 63, v0')
    a('v_and_b32 v9, 15, v0')
    a('v_lshrrev_b32 v10, 4, v0')
    a('s_lshl_b32 s39, s34, 6')
    a('s_lshl_b32 s40, s36, 4')
    a('s_add_u32 s39, s39, s40')
    a.wait_lg_all()
    make_srd(a, 16, 's4', 's5', K * 1280)
    make_srd(a, 28, 's12', 's13', WS_END)
    if kind == 'out':
        make_srd(a, 20, 's6', 's7', 2048 * 1280)
        make_srd(a, 24, 's8', 's9', 2048 * 1280)
    a('v_lshlrev_b32 v%d, 4, v0' % V_AO)
    a('s_lshr_b32 s41, s39, 4')
    a('s_mul_i32 s41, s41, %d' % (K // 32 * 1024))
    a('s_add_u32 s41, s41, %d' % a_base)
    a('s_mul_i32 s42, s36, 320')
    a('s_mul_i32 s43, s35, 160')
    for i in range(5):
        a('v_add_u32 v11, s42, v0')
        if i:
            a('v_add_u32 v11, %d, v11' % (64 * i))
        a('v_mul_u32_u24 v12, 52429, v11')
        a('v_lshrrev_b32 v12, 19, v12')
        a('v_mul_u32_u24 v13, 10, v12')
        a('v_sub_u32 v13, v11, v13')
        a('v_mul_u32_u24 v12, 1280, v12')
        a('v_lshl_add_u32 v12, v13, 4, v12')
        a('v_add_u32 v%d, s43, v12' % (V_DMA + i))
    a('s_mul_i32 s44, s36, 5120')
    a('v_bfe_u32 v11, v0, 2, 2')
    a('v_lshl_add_u32 v11, v10, 2, v11')
    a('v_mul_u32_u24 v11, 160, v11')
    a('v_and_b32 v12, 3, v0')
    a('v_lshl_add_u32 v%d, v12, 3, v11' % V_RD)
    a('v_add_u32 v11, s39, v9')
    a('v_mul_u32_u24 v11, 1280, v11')
    a('v_lshl_add_u32 v11, v10, 3, v11')
    a('v_add_u32 v%d, s43, v11' % V_EO)
    a('v_lshlrev_b32 v14, 3, v0')
    a('s_lshl_b32 s47, s34, 3')
    a('s_add_u32 s47, s47, s35')
    a('s_lshl_b32 s47, s47, 2')
    a('s_add_u32 s47, s47, s36')
    a('s_mul_i32 s47, s47, 2560')
    a('s_add_u32 s47, s47, %d' % WS_F)

    def areg(t, ks):
        return V_A + ((t % 4) * 4 + ks) * 4

    def issue_stage(t):
        slot = t % G_RING
        a('s_add_u32 s45, s41, %d' % (t * 4096))
        for ks in range(4):
            a('buffer_load_dwordx4 %s, v%d, s[28:31], s45 offen offset:%d' % (vr(areg(t, ks), 4), V_AO, ks * 1024),
              tag=('A', t))
        a('s_mov_b32 s46, %d' % (t * 128 * 1280))
        for i in range(5):
            a('s_add_u32 m0, s44, %d' % (slot * G_SLOT + i * 1024))
            a('buffer_load_dwordx4 v%d, s[16:19], s46 offen lds' % (V_DMA + i), tag=('D', t))

    for t in range(min(3, nst)):
        issue_stage(t)
    if kind == 'out':
        for j in range(5):
            a('buffer_load_dwordx2 %s, v%d, s[20:23], 0 offen offset:%d' % (vr(V_X + j * 4, 2), V_EO, j * 32), tag='X')
            a('buffer_load_dwordx2 %s, v14, s[28:31], s47 offen offset:%d' % (vr(V_X + j * 4 + 2, 2), j * 512), tag='X')

    def read_unit(n, j):
        t, ks = divmod(n, 4)
        b = V_B + (n % 2) * 20 + j * 4
        o = (t % G_RING) * G_SLOT + ks * 32 * 160 + j * 32
        a('ds_read_b64_tr_b16 %s, v%d offset:%d' % (vr(b, 2), V_RD, o), tag=('B', n, j))
        a('ds_read_b64_tr_b16 %s, v%d offset:%d' % (vr(b + 2, 2), V_RD, o + 16 * 160), tag=('B', n, j))

    def stage_enter(t):
        a.wait_lg_all()
        a.wait_vm(('D', t))
        a('s_barrier')
        if t >= 1 and t + 2 < nst:
            issue_stage(t + 2)

    nk = nst * 4
    stage_enter(0)
    for j in range(5):
        read_unit(0, j)
    for n in range(nk):
        nxt = n + 1
        if nxt < nk and nxt % 4 == 0:
            stage_enter(nxt // 4)
        t, ks = divmod(n, 4)
        for j in range(5):
            a.wait_lg(('B', n, j))
            b = V_B + (n % 2) * 20 + j * 4
            acc = vr(V_ACC + j * 4, 4)
            a('v_mfma_f32_16x16x32_bf16 %s, %s, %s, %s' % (acc, vr(b, 4), vr(areg(t, ks), 4), acc if n else '0'))
            if nxt < nk:
                read_unit(nxt, j)
    T = 16
    if kind == 'down':
        for j in range(5):
            ac = V_ACC + j * 4
            d = T + j * 2
            a('v_cvt_pk_bf16_f32 v%d, v%d, v%d' % (d, ac, ac + 1))
            a('v_cvt_pk_bf16_f32 v%d, v%d, v%d' % (d + 1, ac + 2, ac + 3))
            a('buffer_store_dwordx2 %s, v14, s[28:31], s47 offen offset:%d' % (vr(d, 2), j * 512), tag='st')
    else:
        a.wait_vm('X')
        for j in range(5):
            ac = V_ACC + j * 4
            xs = V_X + j * 4
            t = T + (j % 2) * 16
            bf16r_pair(a, t, t + 1, ac, ac + 1, t + 8)
            bf16r_pair(a, t + 2, t + 3, ac + 2, ac + 3, t + 9)
            a('v_lshlrev_b32 v%d, 16, v%d' % (t + 4, xs))
            a('v_and_b32 v%d, 0xffff0000, v%d' % (t + 5, xs))
            a('v_lshlrev_b32 v%d, 16, v%d' % (t + 6, xs + 1))
            a('v_and_b32 v%d, 0xffff0000, v%d' % (t + 7, xs + 1))
            for r in range(4):
                a('v_add_f32 v%d, v%d, v%d' % (t + r, t + r, t + 4 + r))
            bf16r_pair(a, t, t + 1, t, t + 1, t + 8)
            bf16r_pair(a, t + 2, t + 3, t + 2, t + 3, t + 9)
            a('v_lshlrev_b32 v%d, 16, v%d' % (t + 4, xs + 2))
            a('v_and_b32 v%d, 0xffff0000, v%d' % (t + 5, xs + 2))
            a('v_lshlrev_b32 v%d, 16, v%d' % (t + 6, xs + 3))
            a('v_and_b32 v%d, 0xffff0000, v%d' % (t + 7, xs + 3))
            for r in range(4):
                a('v_add_f32 v%d, v%d, v%d' % (t + r, t + r, t + 4 + r))
            a('v_cvt_pk_bf16_f32 v%d, v%d, v%d' % (t + 10, t, t + 1))
            a('v_cvt_pk_bf16_f32 v%d, v%d, v%d' % (t + 11, t + 2, t + 3))
            a('buffer_store_dwordx2 %s, v%d, s[24:27], 0 offen offset:%d' % (vr(t + 10, 2), V_EO, j * 32), tag='st')


def attention(a, wg_sreg):
    V_Q = 16
    V_K = 24
    V_S = 96
    V_O = 240

    def S(qt, t):
        return V_S + (qt * 18 + t) * 4

    a('s_load_dwordx2 s[12:13], s[0:1], 72')
    a('s_and_b32 s32, s%d, 7' % wg_sreg)
    a('s_lshr_b32 s33, s%d, 3' % wg_sreg)
    a('s_lshl_b32 s34, s32, 2')
    a('s_and_b32 s35, s33, 3')
    a('s_add_u32 s34, s34, s35')
    a('s_lshr_b32 s35, s33, 2')
    a('v_lshrrev_b32 v1, 6, v0')
    a('v_readfirstlane_b32 s36, v1')
    a('v_and_b32 v0, 63, v0')
    a('v_and_b32 v1, 15, v0')
    a('v_lshrrev_b32 v2, 4, v0')
    a('s_lshl_b32 s37, s35, 3')
    a('s_lshl_b32 s38, s36, 1')
    a('s_add_u32 s37, s37, s38')
    a('s_lshl_b32 s37, s37, 5')
    a.wait_lg_all()
    a('s_lshl_b32 s38, s34, 17')
    for d, base in ((16, WS_Q), (20, WS_K), (24, WS_VT)):
        a('s_add_u32 s39, s38, %d' % base)
        a('s_add_u32 s%d, s12, s39' % d)
        a('s_addc_u32 s%d, s13, 0' % (d + 1))
        a('s_and_b32 s%d, s%d, 0xffff' % (d + 1, d + 1))
        a('s_mov_b32 s%d, 131072' % (d + 2))
        a('s_mov_b32 s%d, 0x00020000' % (d + 3))
    make_srd(a, 28, 's12', 's13', WS_END)
    a('v_lshlrev_b32 v3, 2, v2')
    for r in range(4):
        a('v_add_u32 v4, %d, v3' % r)
        a('v_cmp_gt_u32 s[%d:%d], v4, v1' % (48 + 2 * r, 49 + 2 * r))
        a('v_cmp_le_u32 s[%d:%d], v4, v1' % (56 + 2 * r, 57 + 2 * r))
    a('v_mov_b32 v15, %s' % f32hex(-1e30))
    a('v_cmp_eq_u32 s[66:67], 4, v1')
    a('v_mov_b32 v14, 0x3f803f80')
    a('v_cmp_eq_u32 s[64:65], 0, v2')
    a('v_lshlrev_b32 v3, 4, v0')
    a('v_xor_b32 v5, 16, v0')
    a('v_lshlrev_b32 v5, 2, v5')
    a('v_xor_b32 v6, 32, v0')
    a('v_lshlrev_b32 v6, 2, v6')
    a('v_add_u32 v7, 16, v1')
    a('v_lshlrev_b32 v7, 2, v7')
    a('s_mul_i32 s39, s34, 5')
    a('v_add_u32 v8, s39, v2')

    def gpos(dst, G, t1, t2):
        a('v_lshrrev_b32 v%d, 3, v%d' % (t1, G))
        a('v_lshlrev_b32 v%d, 10, v%d' % (t1, t1))
        a('v_and_b32 v%d, 3, v%d' % (t2, G))
        a('v_lshl_add_u32 v%d, v%d, 8, v%d' % (t1, t2, t1))
        a('v_bfe_u32 v%d, v%d, 2, 1' % (t2, G))
        a('v_lshl_add_u32 v%d, v%d, 3, v%d' % (dst, t2, t1))
    gpos(8, 8, 10, 11)
    a('s_add_u32 s39, s39, 4')
    a('v_mov_b32 v9, s39')
    gpos(9, 9, 10, 11)
    a('v_mov_b32 v10, 0x40000000')
    a('v_cndmask_b32 v9, v10, v9, s[64:65]')
    a('v_lshlrev_b32 v10, 4, v1')
    a('v_add_u32 v8, v8, v10')
    a('v_add_u32 v9, v9, v10')
    a('s_mov_b32 s40, %s' % f32hex(20 ** -0.5 * LOG2E))
    a('s_mov_b32 s41, 65536')
    a('s_mov_b32 s42, 0')

    L_loop = a.newlabel('att')
    a.wait_vm_all()
    a.label(L_loop)
    a('s_lshl_b32 s43, s37, 6')
    for qt in range(2):
        a('buffer_load_dwordx4 %s, v3, s[16:19], s43 offen offset:%d' % (vr(V_Q + qt * 4, 4), qt * 1024), tag='Q')
    a('s_sub_u32 s43, s43, %d' % (256 * 64))
    a('v_add_u32 v10, s43, v3')
    for t in range(18):
        a('v_add_u32 v12, %d, v10' % (1024 * t))
        a('buffer_load_dwordx4 %s, v12, s[20:23], 0 offen' % vr(V_K + t * 4, 4), tag=('K', t))
    a.wait_vm('Q')
    for qt in range(2):
        for r in (2, 3):
            a('v_cndmask_b32 v%d, 0, v%d, s[64:65]' % (V_Q + qt * 4 + r, V_Q + qt * 4 + r))
    for t in range(18):
        a.wait_vm(('K', t))
        for r in (2, 3):
            a('v_cndmask_b32 v%d, 0, v%d, s[64:65]' % (V_K + t * 4 + r, V_K + t * 4 + r))
        for qt in range(2):
            if (qt == 0 and t == 17) or (qt == 1 and t == 0):
                continue
            a('v_mfma_f32_16x16x32_bf16 %s, %s, %s, 0' % (vr(S(qt, t), 4), vr(V_K + t * 4, 4), vr(V_Q + qt * 4, 4)))
    for b in range(9):
        a('v_add_u32 v12, %d, v10' % (2048 * b))
        a('buffer_load_dwordx4 %s, v12, s[24:27], 0 offen' % vr(V_K + b * 8, 4), tag=('V', b))
        a('buffer_load_dwordx4 %s, v12, s[24:27], 0 offen offset:1024' % vr(V_K + b * 8 + 4, 4), tag=('V', b))
    for qt in range(2):
        tf, tl = qt, 16 + qt
        for r in range(4):
            a('v_cndmask_b32 v%d, v15, v%d, s[%d:%d]' % (S(qt, tf) + r, S(qt, tf) + r, 48 + 2 * r, 49 + 2 * r))
            a('v_cndmask_b32 v%d, v15, v%d, s[%d:%d]' % (S(qt, tl) + r, S(qt, tl) + r, 56 + 2 * r, 57 + 2 * r))
    L_noneg = a.newlabel('noneg')
    a('s_cmp_ge_u32 s37, 256')
    a.branch('s_cbranch_scc1 %s' % L_noneg)
    a('s_sub_u32 s43, 256, s37')
    a('s_lshr_b32 s43, s43, 4')
    for t in range(16):
        a('s_cmp_le_u32 s43, %d' % t)
        a.branch('s_cbranch_scc1 %s' % L_noneg)
        for qt in range(2):
            if qt == 1 and t == 0:
                continue
            for r in range(4):
                a('v_mov_b32 v%d, v15' % (S(qt, t) + r))
    a.label(L_noneg)
    for qt in range(2):
        regs = [S(qt, t) + r for t in range(qt, 17 + qt) for r in range(4)]
        m = 10 + qt
        a('v_max3_f32 v%d, v%d, v%d, v%d' % (m, regs[0], regs[1], regs[2]))
        k = 3
        m2 = 12 + qt
        a('v_max3_f32 v%d, v%d, v%d, v%d' % (m2, regs[3], regs[4], regs[5]))
        k = 6
        tog = 0
        while k + 1 < len(regs):
            mm = m if tog == 0 else m2
            a('v_max3_f32 v%d, v%d, v%d, v%d' % (mm, mm, regs[k], regs[k + 1]))
            k += 2
            tog ^= 1
        if k < len(regs):
            a('v_max_f32 v%d, v%d, v%d' % (m, m, regs[k]))
        a('v_max_f32 v%d, v%d, v%d' % (m, m, m2))
    for addr in (5, 6):
        for qt in range(2):
            a('ds_bpermute_b32 v%d, v%d, v%d' % (12 + qt, addr, 10 + qt), tag='bp')
        a.wait_lg_all()
        for qt in range(2):
            a('v_max_f32 v%d, v%d, v%d' % (10 + qt, 10 + qt, 12 + qt))
    for qt in range(2):
        a('v_mul_f32 v%d, s40, v%d' % (10 + qt, 10 + qt))
    for qt in range(2):
        for t in range(qt, 17 + qt):
            for r in range(4):
                a('v_fma_f32 v%d, v%d, s40, -v%d' % (S(qt, t) + r, S(qt, t) + r, 10 + qt))
            for r in range(4):
                a('v_exp_f32 v%d, v%d' % (S(qt, t) + r, S(qt, t) + r))
        for b in range(9):
            p = S(qt, 2 * b)
            q = S(qt, 2 * b + 1)
            if qt == 1 and b == 0:
                a('v_cvt_pk_bf16_f32 v%d, v%d, v%d' % (p + 2, q, q + 1))
                a('v_cvt_pk_bf16_f32 v%d, v%d, v%d' % (p + 3, q + 2, q + 3))
                a('v_mov_b32 v%d, 0' % p)
                a('v_mov_b32 v%d, 0' % (p + 1))
            else:
                a('v_cvt_pk_bf16_f32 v%d, v%d, v%d' % (p, p, p + 1))
                a('v_cvt_pk_bf16_f32 v%d, v%d, v%d' % (p + 1, p + 2, p + 3))
                if qt == 0 and b == 8:
                    a('v_mov_b32 v%d, 0' % (p + 2))
                    a('v_mov_b32 v%d, 0' % (p + 3))
                else:
                    a('v_cvt_pk_bf16_f32 v%d, v%d, v%d' % (p + 2, q, q + 1))
                    a('v_cvt_pk_bf16_f32 v%d, v%d, v%d' % (p + 3, q + 2, q + 3))
    for b in range(9):
        a.wait_vm(('V', b))
        for r in range(4):
            a('v_cndmask_b32 v%d, v%d, v14, s[66:67]' % (V_K + b * 8 + 4 + r, V_K + b * 8 + 4 + r))
        for qt in range(2):
            for dt in range(2):
                o = vr(V_O + (qt * 2 + dt) * 4, 4)
                a('v_mfma_f32_16x16x32_bf16 %s, %s, %s, %s' % (o, vr(V_K + b * 8 + dt * 4, 4), vr(S(qt, 2 * b), 4), o if b else '0'))
    for qt in range(2):
        a('ds_bpermute_b32 v%d, v7, v%d' % (10 + qt, V_O + (qt * 2 + 1) * 4), tag='bp')
    a.wait_lg_all()
    a('s_mul_i32 s43, s37, 1280')
    a('s_add_u32 s43, s43, %d' % WS_O)
    a('s_add_u32 s44, s43, %d' % (20 * 1024))
    for qt in range(2):
        a('v_rcp_f32 v%d, v%d' % (10 + qt, 10 + qt))
        for dt in range(2):
            o = V_O + (qt * 2 + dt) * 4
            for r in range(4):
                a('v_mul_f32 v%d, v%d, v%d' % (o + r, o + r, 10 + qt))
            a('v_cvt_pk_bf16_f32 v%d, v%d, v%d' % (o, o, o + 1))
            a('v_cvt_pk_bf16_f32 v%d, v%d, v%d' % (o + 1, o + 2, o + 3))
            a('buffer_store_dwordx2 %s, v%d, s[28:31], s%d offen' % (vr(o, 2), 8 + dt, 43 + qt), tag='st')
    a.wait_vm_all()
    a('s_add_u32 s37, s37, 32')
    a('s_add_u32 s42, s42, 1')
    a('s_cmp_lt_u32 s42, 2')
    a.branch('s_cbranch_scc1 %s' % L_loop)


def emit(a, launches, descs, which):
    if '2' in which:
        name = 'k2_kernel'
        a.raw('.globl %s' % name)
        a.raw('.p2align 8')
        a.raw('.type %s,@function' % name)
        a.raw('%s:' % name)
        a.hist = []
        a.vm = []
        a.lg = []
        a('s_cmp_ge_u32 s2, 512')
        a.branch('s_cbranch_scc1 .k2_end')
        a('s_cmp_ge_u32 s2, 256')
        a.branch('s_cbranch_scc1 .k2_gemm')
        attention(a, 2)
        a.branch('s_branch .k2_end')
        a.label('.k2_gemm')
        a.vm = []
        a.lg = []
        a('s_sub_u32 s3, s2, 256')
        gemm2(a, 'down', 3)
        a.label('.k2_end')
        a('s_endpgm')
        launches.append('; @launch kernel=k2_kernel grid=(512,1,1) block=(256,1,1) lds=%d' % G_LDS)
        descs.append(kernel_desc('k2_kernel', 256))
    if '3' in which:
        name = 'k3_kernel'
        a.raw('.globl %s' % name)
        a.raw('.p2align 8')
        a.raw('.type %s,@function' % name)
        a.raw('%s:' % name)
        a.hist = []
        a.vm = []
        a.lg = []
        a('s_cmp_ge_u32 s2, 256')
        a.branch('s_cbranch_scc1 .k3_end')
        gemm2(a, 'out', 2)
        a.label('.k3_end')
        a('s_endpgm')
        launches.append('; @launch kernel=k3_kernel grid=(256,1,1) block=(256,1,1) lds=%d' % G_LDS)
        descs.append(kernel_desc('k3_kernel', 164))
```

```python
import sys
import os
sys.path.insert(0, os.path.dirname(os.path.abspath(__file__)))
from asmlib import Asm, vr, sr

WS_Q = 0
WS_K = 0x400000
WS_VT = 0x800000
WS_H = 0xC00000
WS_O = 0x1200000
WS_F = 0x1480000
WS_END = 0x1700000

LOG2E = 1.4426950408889634


def f32hex(x):
    import struct
    return '0x%08x' % struct.unpack('<I', struct.pack('<f', x))[0]


def make_srd(a, d, base_lo, base_hi, nrec):
    a('s_mov_b32 s%d, %s' % (d, base_lo))
    a('s_and_b32 s%d, %s, 0xffff' % (d + 1, base_hi))
    a('s_mov_b32 s%d, %s' % (d + 2, nrec if isinstance(nrec, str) else '0x%x' % nrec))
    a('s_mov_b32 s%d, 0x00020000' % (d + 3))


STAMP = os.environ.get('GEN_STAMP', '') != ''
_stamp_n = [0]


def stamp(a):
    if not STAMP:
        return
    i = _stamp_n[0]
    _stamp_n[0] += 1
    a.wait_lg_all()
    a('s_memtime s[%d:%d]' % (70 + 2 * i, 71 + 2 * i))
    a.wait_lg_all()


def stamp_reset(n=0):
    _stamp_n[0] = n


def stamp_dump(a, wave_sreg):
    if not STAMP:
        return
    L = a.newlabel('nodump')
    a('s_cmp_lg_u32 s%d, 0' % wave_sreg)
    a.branch('s_cbranch_scc1 %s' % L)
    a('s_mov_b32 s68, 0')
    L2 = a.newlabel('dump')
    a('s_cmp_eq_u32 s2, 0')
    a.branch('s_cbranch_scc1 %s' % L2)
    a('s_mov_b32 s68, 64')
    a('s_cmp_eq_u32 s2, 101')
    a.branch('s_cbranch_scc1 %s' % L2)
    a('s_mov_b32 s68, 128')
    a('s_cmp_eq_u32 s2, 300')
    a.branch('s_cbranch_scc0 %s' % L)
    a.label(L2)
    a('s_load_dwordx2 s[64:65], s[0:1], 64')
    a.wait_lg_all()
    a('s_and_b32 s65, s65, 0xffff')
    a('s_mov_b32 s66, 256')
    a('s_mov_b32 s67, 0x00020000')
    a('v_mov_b32 v1, 0')
    for i in range(_stamp_n[0]):
        a('s_sub_u32 s69, s%d, s70' % (70 + 2 * i))
        a('v_mov_b32 v2, s69')
        a('buffer_store_dword v2, v1, s[64:67], s68 offen offset:%d' % (4 * i))
    a.wait_vm_all()
    a.label(L)


def bf16r_pair(a, dst_lo, dst_hi, src_lo, src_hi, tmp):
    a('v_cvt_pk_bf16_f32 v%d, v%d, v%d' % (tmp, src_lo, src_hi))
    a('v_lshlrev_b32 v%d, 16, v%d' % (dst_lo, tmp))
    a('v_and_b32 v%d, 0xffff0000, v%d' % (dst_hi, tmp))


K1_SLOT = 40960
K1_R2 = 24576
K1_STASH = 3 * K1_SLOT
K1_XS = 81920
K1_LDS = 163840

V_DMA = 1
V_RD = 6
V_T = 11
V_B = 16
V_ACC = 56
V_A = 96


def k1_areg(tile, s):
    return V_A + (tile * 20 + s) * 4


def k1_xreg(rho, j):
    return (216 if j < 5 else 136) + (rho * 5 + (j % 5)) * 4


def k1_acc(j, tile):
    return V_ACC + (j * 2 + tile) * 4


def gen_k1(a):
    name = 'k1_kernel'
    a.raw('.globl %s' % name)
    a.raw('.p2align 8')
    a.raw('.type %s,@function' % name)
    a.raw('%s:' % name)
    L_end = '.k1_end'
    a('s_cmp_ge_u32 s2, 256')
    a.branch('s_cbranch_scc1 %s' % L_end)
    stamp_reset()
    stamp(a)
    a('s_load_dwordx4 s[4:7], s[0:1], 0')
    a('s_load_dwordx4 s[8:11], s[0:1], 32')
    a('s_load_dwordx2 s[12:13], s[0:1], 72')
    a('s_and_b32 s32, s2, 7')
    a('s_lshr_b32 s33, s2, 3')
    a('s_and_b32 s34, s32, 1')
    a('s_lshl_b32 s34, s34, 3')
    a('s_and_b32 s35, s33, 7')
    a('s_add_u32 s34, s34, s35')
    a('s_lshr_b32 s35, s32, 1')
    a('s_lshl_b32 s35, s35, 2')
    a('s_lshr_b32 s36, s33, 3')
    a('s_add_u32 s35, s35, s36')
    a('v_lshrrev_b32 v11, 6, v0')
    a('v_readfirstlane_b32 s36, v11')
    a('v_and_b32 v0, 63, v0')
    a('s_and_b32 s37, s36, 3')
    a('s_lshr_b32 s38, s36, 2')
    a('s_lshl_b32 s39, s34, 7')
    a('s_lshl_b32 s40, s37, 5')
    a('s_add_u32 s39, s39, s40')
    a.wait_lg_all()
    make_srd(a, 24, 's4', 's5', 2048 * 1280)
    make_srd(a, 28, 's12', 's13', WS_END)
    a('v_and_b32 v11, 15, v0')
    a('v_lshrrev_b32 v12, 4, v0')
    a('v_lshrrev_b32 v13, 3, v0')
    a('v_mul_u32_u24 v13, 1280, v13')
    a('v_and_b32 v14, 7, v0')
    a('v_lshl_add_u32 v13, v14, 4, v13')
    a('s_lshl_b32 s40, s34, 7')
    a('s_lshl_b32 s41, s36, 4')
    a('s_add_u32 s40, s40, s41')
    a('s_mul_i32 s40, s40, 1280')
    a('s_add_u32 s41, s40, 10240')
    for j in range(10):
        for rho in range(2):
            a('buffer_load_dwordx4 %s, v13, s[24:27], s%d offen offset:%d' % (vr(k1_xreg(rho, j), 4), 40 + rho, j * 128),
              tag=('X', rho, j))
    L_gu = a.newlabel('k1gu')
    L_par = a.newlabel('k1par')
    a('s_cmp_ge_u32 s35, 6')
    a.branch('s_cbranch_scc1 %s' % L_gu)
    a('s_movk_i32 s42, 3840')
    a('s_mul_i32 s43, s35, 640')
    a('s_add_u32 s16, s6, s43')
    a('s_addc_u32 s17, s7, 0')
    a('s_sub_u32 s18, %d, s43' % (640 * 3840))
    a('s_add_u32 s43, s43, 192')
    a('s_movk_i32 s56, 512')
    a('s_add_u32 s20, s6, s43')
    a('s_addc_u32 s21, s7, 0')
    a('s_sub_u32 s22, %d, s43' % (640 * 3840))
    a('s_mov_b32 s44, 0')
    a('s_mov_b32 s45, 10')
    a.branch('s_branch %s' % L_par)
    a.label(L_gu)
    a('s_movk_i32 s42, 3072')
    a('s_sub_u32 s43, s35, 6')
    a('s_mul_i32 s44, s43, 10')
    a('s_movk_i32 s56, 192')
    a('s_cmp_lt_u32 s43, 9')
    a('s_cselect_b32 s45, 10, 6')
    a('s_lshl_b32 s43, s44, 5')
    a('s_add_u32 s16, s8, s43')
    a('s_addc_u32 s17, s9, 0')
    a('s_sub_u32 s18, %d, s43' % (640 * 3072))
    a('s_add_u32 s20, s10, s43')
    a('s_addc_u32 s21, s11, 0')
    a('s_sub_u32 s22, %d, s43' % (640 * 3072))
    a.label(L_par)
    a('s_and_b32 s17, s17, 0xffff')
    a('s_and_b32 s21, s21, 0xffff')
    a('s_mov_b32 s19, 0x00020000')
    a('s_mov_b32 s23, 0x00020000')
    a('s_lshl_b32 s46, s42, 7')
    a('s_mul_i32 s47, s36, 3072')
    a('s_lshl_b32 s48, s36, 11')
    a('s_add_u32 s48, s48, %d' % K1_R2)
    a('s_mul_i32 s49, s36, 192')
    for i in range(3):
        a('v_add_u32 v16, s49, v0')
        if i:
            a('v_add_u32 v16, %d, v16' % (64 * i))
        a('v_mul_u32_u24 v17, 43691, v16')
        a('v_lshrrev_b32 v17, 19, v17')
        a('v_mul_u32_u24 v18, 12, v17')
        a('v_sub_u32 v18, v16, v18')
        a('v_lshrrev_b32 v19, 1, v18')
        a('v_bfe_u32 v20, v17, 3, 1')
        a('v_xor_b32 v19, v19, v20')
        a('v_and_b32 v18, 1, v18')
        a('v_lshlrev_b32 v18, 4, v18')
        a('v_lshl_add_u32 v18, v19, 5, v18')
        a('v_mul_lo_u32 v17, v17, s42')
        a('v_add_u32 v%d, v17, v18' % (V_DMA + i))
    a('s_lshl_b32 s49, s36, 7')
    for i in range(2):
        a('v_add_u32 v16, s49, v0')
        if i:
            a('v_add_u32 v16, %d, v16' % (64 * i))
        a('v_lshrrev_b32 v17, 3, v16')
        a('v_and_b32 v18, 7, v16')
        a('v_lshrrev_b32 v19, 1, v18')
        a('v_bfe_u32 v20, v17, 1, 1')
        a('v_bfe_u32 v21, v17, 3, 1')
        a('v_lshl_or_b32 v20, v21, 1, v20')
        a('v_xor_b32 v19, v19, v20')
        a('v_and_b32 v18, 1, v18')
        a('v_lshlrev_b32 v18, 4, v18')
        a('v_lshl_add_u32 v18, v19, 5, v18')
        a('v_mul_lo_u32 v17, v17, s42')
        a('v_add_u32 v%d, v17, v18' % (V_DMA + 3 + i))

    def issue_dma(t):
        p, st = divmod(t, 5)
        slot = t % 3
        a('s_mul_i32 s50, s46, %d' % st)
        if p:
            a('s_add_u32 s51, s50, s56')
            a('s_add_u32 s50, s50, 128')
        else:
            a('s_mov_b32 s51, s50')
        srd1, srd2 = (16, 20) if p == 0 else (20, 16)
        for i in range(3):
            a('s_add_u32 m0, s47, %d' % (slot * K1_SLOT + i * 1024))
            a('buffer_load_dwordx4 v%d, %s, s50 offen lds' % (V_DMA + i, sr(srd1, 4)), tag=('D', t))
        for i in range(2):
            a('s_add_u32 m0, s48, %d' % (slot * K1_SLOT + i * 1024))
            a('buffer_load_dwordx4 v%d, %s, s51 offen lds' % (V_DMA + 3 + i, sr(srd2, 4)), tag=('D', t))

    for t in range(2):
        issue_dma(t)

    stamp(a)
    for r in range(16, 20):
        a('v_mov_b32 v%d, 0' % r)
    a('v_mov_b32 v20, 0x3f803f80')
    for j in range(10):
        for rho in range(2):
            a.wait_vm(('X', rho, j))
            base = k1_xreg(rho, j)
            for q in range(4):
                a('v_dot2_f32_bf16 v%d, v%d, v20, v%d' % (16 + rho * 2, base + q, 16 + rho * 2))
                a('v_dot2_f32_bf16 v%d, v%d, v%d, v%d' % (17 + rho * 2, base + q, base + q, 17 + rho * 2))
    stamp(a)
    for ctl in ('quad_perm:[1,0,3,2]', 'quad_perm:[2,3,0,1]', 'row_half_mirror'):
        for r in range(16, 20):
            a('v_add_f32_dpp v%d, v%d, v%d %s row_mask:0xf bank_mask:0xf' % (r, r, r, ctl))
    inv = f32hex(1.0 / 640.0)
    for tile in range(2):
        su, sq = 16 + tile * 2, 17 + tile * 2
        R, C = 28 + 4 * tile, 30 + 4 * tile
        a('v_mul_f32 v24, %s, v%d' % (inv, su))
        a('v_mul_f32 v25, %s, v%d' % (inv, sq))
        a('v_fma_f32 v25, -v24, v24, v25')
        a('v_max_f32 v25, 0, v25')
        bf16r_pair(a, 24, 25, 24, 25, 26)
        a('v_add_f32 v25, %s, v25' % f32hex(1e-5))
        a('v_cvt_pk_bf16_f32 v26, v25, v25')
        a('v_lshlrev_b32 v25, 16, v26')
        a('v_sqrt_f32 v25, v25')
        a('v_cvt_pk_bf16_f32 v26, v25, v25')
        a('v_lshlrev_b32 v25, 16, v26')
        a('v_rcp_f32 v%d, v25' % R)
        a('v_mul_f32 v%d, v24, v%d' % (C, R))
        a('v_sub_f32 v%d, 0, v%d' % (C, C))
        a('v_mov_b32 v%d, v%d' % (R + 1, R))
        a('v_mov_b32 v%d, v%d' % (C + 1, C))
    a('s_lshl_b32 s49, s36, 4')
    for rho in range(2):
        a('v_lshrrev_b32 v24, 3, v0')
        a('v_add_u32 v24, s49, v24')
        if rho:
            a('v_add_u32 v24, 8, v24')
        a('v_bfe_u32 v25, v24, 1, 3')
        a('v_xor_b32 v25, v25, v14')
        a('v_mul_u32_u24 v24, 640, v24')
        a('v_lshl_add_u32 v24, v25, 4, v24')
        a('v_add_u32 v%d, %d, v24' % (16 + rho, K1_XS))
    a('s_lshl_b32 s49, s37, 5')
    for tile in range(2):
        a('v_add_u32 v24, s49, v11')
        if tile:
            a('v_add_u32 v24, 16, v24')
        a('v_bfe_u32 v25, v24, 1, 3')
        a('v_xor_b32 v25, v25, v12')
        a('v_mul_u32_u24 v24, 640, v24')
        a('v_add_u32 v24, %d, v24' % K1_XS)
        a('v_lshl_add_u32 v%d, v25, 4, v24' % (20 + tile * 2))
        a('v_xor_b32 v25, 4, v25')
        a('v_lshl_add_u32 v%d, v25, 4, v24' % (21 + tile * 2))
    n = 0
    for half in range(2):
        for j in range(half * 5, half * 5 + 5):
            for rho in range(2):
                R, C = 28 + 4 * rho, 30 + 4 * rho
                base = k1_xreg(rho, j)
                tp = [40 + 2 * ((n + q) % 8) for q in range(4)]
                n += 4
                for q in range(4):
                    a('v_lshlrev_b32 v%d, 16, v%d' % (tp[q], base + q))
                    a('v_and_b32 v%d, 0xffff0000, v%d' % (tp[q] + 1, base + q))
                for q in range(4):
                    a('v_pk_fma_f32 %s, %s, %s, %s' % (vr(tp[q], 2), vr(tp[q], 2), vr(R, 2), vr(C, 2)))
                for q in range(4):
                    a('v_cvt_pk_bf16_f32 v%d, v%d, v%d' % (base + q, tp[q], tp[q] + 1))
        if half == 1:
            a.wait_lg_all()
            a('s_barrier')
        for j in range(half * 5, half * 5 + 5):
            for rho in range(2):
                a('ds_write_b128 v%d, %s offset:%d' % (16 + rho, vr(k1_xreg(rho, j), 4), (j % 5) * 128), tag='xw')
        a.wait_lg_all()
        a('s_barrier')
        for sp in range(10):
            for tile in range(2):
                a('ds_read_b128 %s, v%d offset:%d' % (vr(k1_areg(tile, half * 10 + sp), 4), 20 + tile * 2 + (sp & 1), (sp >> 1) * 128),
                  tag='xr')
    stamp(a)
    L_v = a.newlabel('k1v')
    L_g = a.newlabel('k1g')
    a('s_cmp_ge_u32 s35, 6')
    a.branch('s_cbranch_scc1 %s' % L_g)
    a('s_cmp_ge_u32 s35, 4')
    a.branch('s_cbranch_scc1 %s' % L_v)
    saved = (list(a.vm), list(a.lg))
    sn = _stamp_n[0]
    k1_body(a, 'qk')
    a.branch('s_branch %s' % L_end)
    a.label(L_v)
    a.vm, a.lg = list(saved[0]), list(saved[1])
    stamp_reset(sn)
    k1_body(a, 'v')
    a.branch('s_branch %s' % L_end)
    a.label(L_g)
    a.vm, a.lg = list(saved[0]), list(saved[1])
    stamp_reset(sn)
    k1_body(a, 'gu')
    a.label(L_end)
    a('s_endpgm')


def k1_body(a, kind):
    def issue_dma(t):
        p, st = divmod(t, 5)
        slot = t % 3
        a('s_mul_i32 s50, s46, %d' % st)
        if p:
            a('s_add_u32 s51, s50, s56')
            a('s_add_u32 s50, s50, 128')
        else:
            a('s_mov_b32 s51, s50')
        srd1, srd2 = (16, 20) if p == 0 else (20, 16)
        for i in range(3):
            a('s_add_u32 m0, s47, %d' % (slot * K1_SLOT + i * 1024))
            a('buffer_load_dwordx4 v%d, %s, s50 offen lds' % (V_DMA + i, sr(srd1, 4)), tag=('D', t))
        for i in range(2):
            a('s_add_u32 m0, s48, %d' % (slot * K1_SLOT + i * 1024))
            a('buffer_load_dwordx4 v%d, %s, s51 offen lds' % (V_DMA + 3 + i, sr(srd2, 4)), tag=('D', t))

    cur_slot = [0]
    R1MAP = [[(0, 2), (1, 3), (4, 5)], [(0, 1), (2, 4), (3, 5)]]

    def read_addrs(p):
        a('v_bfe_u32 v16, v0, 2, 2')
        a('v_and_b32 v17, 3, v0')
        a('v_lshl_add_u32 v18, v12, 3, v16')
        a('v_and_b32 v19, 1, v12')
        a('v_mul_u32_u24 v21, 192, v18')
        a('v_lshl_add_u32 v21, v17, 3, v21')
        base = cur_slot[0] * K1_SLOT
        if base:
            a('v_add_u32 v21, %d, v21' % base)
        for j in range(3):
            a('s_cmp_eq_u32 s38, 0')
            a('s_cselect_b32 s50, %d, %d' % R1MAP[p][j])
            a('v_xor_b32 v20, s50, v19')
            a('v_lshl_add_u32 v%d, v20, 5, v21' % (V_RD + j))
        a('v_lshrrev_b32 v20, 1, v16')
        a('v_lshl_or_b32 v19, v19, 1, v20')
        a('v_lshlrev_b32 v21, 7, v18')
        a('v_lshl_add_u32 v21, v17, 3, v21')
        a('v_add_u32 v21, %d, v21' % (base + K1_R2))
        a('s_lshl_b32 s49, s38, 1')
        for j in range(2):
            a('s_add_u32 s50, s49, %d' % j)
            a('v_xor_b32 v20, s50, v19')
            a('v_lshl_add_u32 v%d, v20, 5, v21' % (V_RD + 3 + j))

    def set_slot(slot):
        d = (slot - cur_slot[0]) * K1_SLOT
        if d:
            for j in range(5):
                if d > 0:
                    a('v_add_u32 v%d, %d, v%d' % (V_RD + j, d, V_RD + j))
                else:
                    a('v_subrev_u32 v%d, %d, v%d' % (V_RD + j, -d, V_RD + j))
        cur_slot[0] = slot

    def read_unit(n, j):
        ks = n % 4
        b = V_B + (n % 2) * 20 + j * 4
        if j < 3:
            o = ks * 6144
            a('ds_read_b64_tr_b16 %s, v%d offset:%d' % (vr(b, 2), V_RD + j, o), tag=('B', n, j))
            a('ds_read_b64_tr_b16 %s, v%d offset:%d' % (vr(b + 2, 2), V_RD + j, o + 768), tag=('B', n, j))
        else:
            o = ks * 4096
            a('ds_read_b64_tr_b16 %s, v%d offset:%d' % (vr(b, 2), V_RD + j, o), tag=('B', n, j))
            a('ds_read_b64_tr_b16 %s, v%d offset:%d' % (vr(b + 2, 2), V_RD + j, o + 512), tag=('B', n, j))

    def stage_enter(t):
        a.wait_lg_all()
        a.wait_vm(('D', t))
        a('s_barrier')
        if t + 2 <= 9:
            issue_dma(t + 2)
        if t % 5 == 0:
            cur_slot[0] = t % 3
            read_addrs(t // 5)
        else:
            set_slot(t % 3)

    a('v_and_b32 v11, 15, v0')
    a('v_lshrrev_b32 v12, 4, v0')
    stage_enter(0)
    stamp(a)
    for j in range(5):
        read_unit(0, j)
    for n in range(40):
        p, s = divmod(n, 20)
        nxt = n + 1
        if nxt < 40 and nxt % 4 == 0:
            stage_enter(nxt // 4)
        for j in range(5):
            a.wait_lg(('B', n, j))
            b = V_B + (n % 2) * 20 + j * 4
            for tile in range(2):
                acc = vr(k1_acc(j, tile), 4)
                c = acc if s else '0'
                A = vr(k1_areg(tile, s), 4)
                B = vr(b, 4)
                if kind == 'v':
                    a('v_mfma_f32_16x16x32_bf16 %s, %s, %s, %s' % (acc, A, B, c))
                else:
                    a('v_mfma_f32_16x16x32_bf16 %s, %s, %s, %s' % (acc, B, A, c))
            if nxt < 40:
                read_unit(nxt, j)
        if s == 19:
            stamp(a)
            k1_epilogue(a, kind, p)
            stamp(a)
    if STAMP:
        a.wait_vm_all()
        stamp(a)
    stamp_dump(a, 36)


def k1_epilogue(a, kind, p):
    T = 36
    R1MAP = [[(0, 2), (1, 3), (4, 5)], [(0, 1), (2, 4), (3, 5)]]
    if p == 0:
        units = [R1MAP[0][j] for j in range(3)] + [(6, 8), (7, 9)]
    else:
        units = [(10 + R1MAP[1][j][0], 10 + R1MAP[1][j][1]) for j in range(3)] + [(16, 18), (17, 19)]
    if kind == 'qk':
        a('s_and_b32 s52, s35, 1')
        a('s_mul_i32 s52, s52, 80')
        a('s_lshr_b32 s53, s35, 1')
        a('s_mul_i32 s53, s53, %d' % WS_K)
        a('s_lshl_b32 s55, s39, 6')
        a('s_add_u32 s53, s53, s55')
        a('v_lshlrev_b32 v13, 4, v11')
        for j in range(5):
            a('s_cmp_eq_u32 s38, 0')
            a('s_cselect_b32 s54, %d, %d' % (units[j][0], units[j][1]))
            a('s_lshl_b32 s54, s54, 2')
            a('s_add_u32 s54, s54, s52')
            a('v_add_u32 v%d, s54, v12' % T)
            a('v_mul_u32_u24 v%d, 205, v%d' % (T + 1, T))
            a('v_lshrrev_b32 v%d, 10, v%d' % (T + 1, T + 1))
            a('v_mul_u32_u24 v%d, 5, v%d' % (T + 2, T + 1))
            a('v_sub_u32 v%d, v%d, v%d' % (T + 2, T, T + 2))
            a('v_and_b32 v%d, 3, v%d' % (T + 3, T + 2))
            a('v_lshrrev_b32 v%d, 2, v%d' % (T + 2, T + 2))
            a('v_lshlrev_b32 v%d, 17, v%d' % (T + 1, T + 1))
            a('v_lshl_add_u32 v%d, v%d, 8, v%d' % (T + 1, T + 3, T + 1))
            a('v_lshl_add_u32 v%d, v%d, 3, v%d' % (T + 1, T + 2, T + 1))
            a('v_add_u32 v%d, v%d, v13' % (T + 1, T + 1))
            for tile in range(2):
                ac = k1_acc(j, tile)
                d = T + 4 + tile * 2
                a('v_cvt_pk_bf16_f32 v%d, v%d, v%d' % (d, ac, ac + 1))
                a('v_cvt_pk_bf16_f32 v%d, v%d, v%d' % (d + 1, ac + 2, ac + 3))
                a('buffer_store_dwordx2 %s, v%d, s[28:31], s53 offen offset:%d' % (vr(d, 2), T + 1, tile * 1024), tag='st')
            T = 36 + ((T - 36 + 8) % 16)
    elif kind == 'v':
        a('s_sub_u32 s52, s35, 4')
        a('s_mul_i32 s52, s52, 320')
        a('s_lshl_b32 s53, s39, 6')
        a('s_add_u32 s53, s53, %d' % WS_VT)
        a('v_lshlrev_b32 v13, 8, v12')
        for j in range(5):
            a('s_cmp_eq_u32 s38, 0')
            a('s_cselect_b32 s54, %d, %d' % (units[j][0], units[j][1]))
            a('s_lshl_b32 s54, s54, 4')
            a('s_add_u32 s54, s54, s52')
            a('v_add_u32 v%d, s54, v11' % (T + 4))
            a('v_mul_u32_u24 v%d, 3277, v%d' % (T + 5, T + 4))
            a('v_lshrrev_b32 v%d, 16, v%d' % (T + 5, T + 5))
            a('v_mul_u32_u24 v%d, 20, v%d' % (T + 6, T + 5))
            a('v_sub_u32 v%d, v%d, v%d' % (T + 6, T + 4, T + 6))
            a('v_lshrrev_b32 v%d, 4, v%d' % (T + 7, T + 6))
            a('v_and_b32 v%d, 15, v%d' % (T + 6, T + 6))
            a('v_lshlrev_b32 v%d, 17, v%d' % (T + 5, T + 5))
            a('v_lshl_add_u32 v%d, v%d, 10, v%d' % (T + 5, T + 7, T + 5))
            a('v_lshl_add_u32 v%d, v%d, 4, v%d' % (T + 5, T + 6, T + 5))
            a('v_add_u32 v%d, v%d, v13' % (T + 5, T + 5))
            d = T
            for tile in range(2):
                ac = k1_acc(j, tile)
                a('v_cvt_pk_bf16_f32 v%d, v%d, v%d' % (d + tile * 2, ac, ac + 1))
                a('v_cvt_pk_bf16_f32 v%d, v%d, v%d' % (d + tile * 2 + 1, ac + 2, ac + 3))
            a('buffer_store_dwordx4 %s, v%d, s[28:31], s53 offen' % (vr(d, 4), T + 5), tag='st')
            T = 36 + ((T - 36 + 8) % 16)
    else:
        a('v_lshlrev_b32 v13, 4, v0')
        a('s_lshr_b32 s52, s39, 4')
        a('s_mul_i32 s52, s52, %d' % (48 * 1024))
        a('s_add_u32 s52, s52, %d' % WS_H)
        a('s_lshl_b32 s55, s36, 11')
        a('s_add_u32 s55, s55, %d' % K1_STASH)
        a('v_add_u32 v14, s55, v13')

        def silu_mul(g0, u0, dst):
            t = 36
            bf16r_pair(a, t, t + 1, g0, g0 + 1, t + 8)
            bf16r_pair(a, t + 2, t + 3, g0 + 2, g0 + 3, t + 9)
            bf16r_pair(a, t + 4, t + 5, u0, u0 + 1, t + 10)
            bf16r_pair(a, t + 6, t + 7, u0 + 2, u0 + 3, t + 11)
            for r in range(4):
                a('v_mul_f32 v%d, %s, v%d' % (t + 8 + r, f32hex(-LOG2E), t + r))
            for r in range(4):
                a('v_exp_f32 v%d, v%d' % (t + 8 + r, t + 8 + r))
            for r in range(4):
                a('v_add_f32 v%d, 1.0, v%d' % (t + 8 + r, t + 8 + r))
            for r in range(4):
                a('v_rcp_f32 v%d, v%d' % (t + 8 + r, t + 8 + r))
            for r in range(4):
                a('v_mul_f32 v%d, v%d, v%d' % (t + r, t + r, t + 8 + r))
            bf16r_pair(a, t, t + 1, t, t + 1, t + 8)
            bf16r_pair(a, t + 2, t + 3, t + 2, t + 3, t + 9)
            for r in range(4):
                a('v_mul_f32 v%d, v%d, v%d' % (t + r, t + r, t + 4 + r))
            a('v_cvt_pk_bf16_f32 v%d, v%d, v%d' % (dst, t, t + 1))
            a('v_cvt_pk_bf16_f32 v%d, v%d, v%d' % (dst + 1, t + 2, t + 3))

        def two_pairs(pair0, ga, ua, gb, ub):
            a('s_lshl_b32 s54, s38, 1')
            a('s_add_u32 s54, s54, s44')
            a('s_add_u32 s54, s54, %d' % pair0)
            a('s_lshl_b32 s54, s54, 9')
            a('s_add_u32 s54, s54, s52')
            a('s_add_u32 s55, s54, %d' % (48 * 1024))
            for tile in range(2):
                d = 48 if tile == 0 else 52
                silu_mul(k1_acc(ga, tile), k1_acc(ua, tile), d)
                silu_mul(k1_acc(gb, tile), k1_acc(ub, tile), d + 2)
                a('buffer_store_dwordx4 %s, v13, s[28:31], s%d offen' % (vr(d, 4), 54 + tile), tag='st')

        if p == 0:
            a('ds_write_b128 v14, %s offset:0' % vr(k1_acc(2, 0), 4), tag='stash')
            a('ds_write_b128 v14, %s offset:1024' % vr(k1_acc(2, 1), 4), tag='stash')
            two_pairs(0, 0, 3, 1, 4)
        else:
            a('ds_read_b128 v[48:51], v14 offset:0', tag='stash')
            a('ds_read_b128 v[52:55], v14 offset:1024', tag='stash')
            a.wait_lg('stash')
            a('s_add_u32 s54, s44, s38')
            a('s_add_u32 s54, s54, 4')
            a('s_lshr_b32 s55, s54, 1')
            a('s_lshl_b32 s55, s55, 10')
            a('s_and_b32 s54, s54, 1')
            a('s_lshl_b32 s54, s54, 3')
            a('s_add_u32 s54, s54, s55')
            a('s_add_u32 s54, s54, s52')
            a('s_add_u32 s55, s54, %d' % (48 * 1024))
            for tile in range(2):
                d = k1_acc(0, tile)
                silu_mul(48 + tile * 4, k1_acc(0, tile), d)
                a('buffer_store_dwordx2 %s, v13, s[28:31], s%d offen' % (vr(d, 2), 54 + tile), tag='st')
            L_skip = a.newlabel('k1skip')
            a('s_cmp_lt_u32 s45, 10')
            a.branch('s_cbranch_scc1 %s' % L_skip)
            two_pairs(6, 3, 1, 4, 2)
            a.label(L_skip)


def kernel_desc(name, vgpr, sgpr=96):
    return '''.section .rodata,"a"
.p2align 6
.amdhsa_kernel %s
  .amdhsa_next_free_vgpr %d
  .amdhsa_next_free_sgpr %d
  .amdhsa_accum_offset %d
  .amdhsa_group_segment_fixed_size 0
  .amdhsa_kernarg_size 80
  .amdhsa_user_sgpr_count 2
  .amdhsa_user_sgpr_kernarg_segment_ptr 1
  .amdhsa_system_sgpr_workgroup_id_x 1
.end_amdhsa_kernel
.text
''' % (name, vgpr, sgpr, (vgpr + 3) // 4 * 4)


HEADER = '''; Kernarg layout (80 bytes): A_x, A_wqkv, A_wo, B_x, B_w_gate, B_w_up, B_w_down, d_out, d_debug, d_ws
'''


def main():
    launches = []
    a = Asm()
    a.raw('.amdgcn_target "amdgcn-amd-amdhsa--gfx950"')
    a.raw('.text')
    which = os.environ.get('GEN_KERNELS', '123')
    descs = []
    if '1' in which:
        gen_k1(a)
        launches.append('; @launch kernel=k1_kernel grid=(256,1,1) block=(512,1,1) lds=%d' % K1_LDS)
        descs.append(kernel_desc('k1_kernel', 256))
    try:
        import gen2
        gen2.emit(a, launches, descs, which)
    except ImportError:
        pass
    out = HEADER + '\n'.join(launches) + '\n' + a.text() + ''.join(descs)
    path = sys.argv[1] if len(sys.argv) > 1 else 'parallel_sum__sliding_block__swiglu_ffn__prompt.s'
    open(path, 'w').write(out)
    print('wrote', path, len(out), 'bytes')


if __name__ == '__main__':
    main()
```

```python
import re

_REG_RE = re.compile(r'^(-|abs\()?\s*([vsa])(\d+)\)?$')
_RNG_RE = re.compile(r'^(-)?([vsa])\[(\d+):(\d+)\]$')


def regs_of(tok):
    tok = tok.strip()
    m = _REG_RE.match(tok)
    if m:
        return [(m.group(2), int(m.group(3)))]
    m = _RNG_RE.match(tok)
    if m:
        return [(m.group(2), i) for i in range(int(m.group(3)), int(m.group(4)) + 1)]
    if tok in ('vcc', 'vcc_lo', 'vcc_hi'):
        return [('vcc', 0)]
    if tok in ('exec', 'exec_lo', 'exec_hi'):
        return [('exec', 0)]
    if tok == 'm0':
        return [('m0', 0)]
    return []


TRANS = ('v_exp_f32', 'v_log_f32', 'v_rcp_f32', 'v_rsq_f32', 'v_sqrt_f32', 'v_sin_f32', 'v_cos_f32')


class Ins:
    __slots__ = ('text', 'mn', 'rd', 'wr', 'kind', 'passes', 'srcc', 'states', 'ab')

    def __init__(self, text):
        self.text = text
        t = text.split(';')[0].strip()
        parts = t.split(None, 1)
        mn = parts[0]
        self.mn = mn
        ops = []
        if len(parts) > 1:
            rest = parts[1]
            depth = 0
            cur = ''
            for ch in rest:
                if ch == '[':
                    depth += 1
                if ch == ']':
                    depth -= 1
                if ch == ',' and depth == 0:
                    ops.append(cur.strip())
                    cur = ''
                else:
                    cur += ch
            ops.append(cur.strip())
        mods = []
        if ops:
            w = ops[-1].split()
            ops[-1] = w[0] if w else ''
            mods = w[1:]
        rd, wr = [], []
        self.kind = 'other'
        self.passes = 0
        self.srcc = []
        self.ab = []
        self.states = 1
        R = [regs_of(o) for o in ops]
        if mn.startswith('v_mfma'):
            self.kind = 'mfma'
            self.passes = 8 if '32x32' in mn else 4
            wr = R[0]
            rd = R[1] + R[2] + R[3]
            self.srcc = R[3]
            self.ab = R[1] + R[2]
        elif mn.startswith('v_cmpx'):
            self.kind = 'valu'
            wr = R[0] + [('exec', 0)]
            rd = sum(R[1:], [])
        elif mn.startswith('v_cmp'):
            self.kind = 'valu'
            wr = R[0]
            rd = sum(R[1:], [])
        elif mn in ('v_readfirstlane_b32', 'v_readlane_b32'):
            self.kind = 'valu'
            wr = R[0]
            rd = sum(R[1:], [])
        elif mn.startswith('v_permlane') and 'swap' in mn:
            self.kind = 'valu'
            wr = R[0] + R[1]
            rd = R[0] + R[1]
        elif mn.startswith('v_'):
            self.kind = 'valu'
            wr = R[0]
            if '_co_' in mn:
                wr = R[0] + R[1]
                rd = sum(R[2:], [])
            else:
                rd = sum(R[1:], [])
            if mn.startswith(('v_fmac', 'v_dot2c', 'v_mac', 'v_pk_fmac')):
                rd = rd + R[0]
            if mn.startswith('v_cndmask') and len(ops) == 3:
                rd = rd + [('vcc', 0)]
        elif mn.startswith('buffer_load') or mn.startswith('global_load'):
            self.kind = 'vmem'
            if 'lds' in mods or '_lds_' in mn:
                rd = sum(R, []) + [('m0', 0)]
                self.kind = 'vmem_lds'
            else:
                wr = R[0]
                rd = sum(R[1:], [])
        elif mn.startswith('buffer_store') or mn.startswith('global_store') or mn.startswith('buffer_atomic'):
            self.kind = 'vstore'
            rd = sum(R, [])
        elif mn.startswith('ds_read') or mn.startswith('ds_bpermute') or mn.startswith('ds_permute') or mn.startswith('ds_swizzle'):
            self.kind = 'ds'
            wr = R[0]
            rd = sum(R[1:], [])
        elif mn.startswith('ds_'):
            self.kind = 'ds'
            rd = sum(R, [])
        elif mn == 's_nop':
            self.kind = 'nop'
            self.states = int(ops[0], 0) + 1
        elif mn.startswith('s_load') or mn.startswith('s_memtime'):
            self.kind = 'smem'
            wr = R[0]
            rd = sum(R[1:], [])
        elif mn.startswith(('buffer_wbl2', 'buffer_inv', 's_waitcnt', 's_barrier', 's_branch', 's_cbranch', 's_endpgm', 's_setprio', 's_sleep')):
            self.kind = 'sctl'
        elif mn.startswith('s_cmp'):
            self.kind = 'salu'
            rd = sum(R, [])
        elif mn.startswith('s_'):
            self.kind = 'salu'
            wr = R[0]
            rd = sum(R[1:], [])
            if 'saveexec' in mn:
                wr = wr + [('exec', 0)]
        self.rd = set(rd)
        self.wr = set(wr)


def is_v(r):
    return r[0] in ('v', 'a')


def required(p, c):
    need = 0
    if p.kind == 'valu':
        pw_v = {r for r in p.wr if is_v(r)}
        pw_s = {r for r in p.wr if r[0] in ('s', 'vcc')}
        if c.kind == 'mfma' and (pw_v & c.rd):
            need = max(need, 2)
        if c.kind in ('vmem', 'vmem_lds', 'vstore') and (pw_s & c.rd):
            need = max(need, 5)
        if c.kind == 'valu' and (pw_s & c.rd):
            if c.mn in ('v_readlane_b32', 'v_writelane_b32'):
                need = max(need, 4)
            else:
                need = max(need, 2)
        if c.kind == 'valu' and c.mn in ('v_readfirstlane_b32', 'v_readlane_b32') and (pw_v & c.rd):
            need = max(need, 1)
        if c.kind == 'valu' and c.mn.startswith('v_permlane') and (pw_v & c.rd):
            need = max(need, 2)
        if c.kind == 'valu' and 'dpp' in c.text and (pw_v & c.rd):
            need = max(need, 2)
        if p.mn in TRANS and c.kind == 'valu' and c.mn not in TRANS and (pw_v & c.rd):
            need = max(need, 1)
        if p.mn.startswith('v_dot') and (pw_v & (c.rd | c.wr)):
            if c.mn == p.mn:
                need = max(need, 0 if c.kind == 'valu' and (pw_v & c.wr) else 3)
            else:
                need = max(need, 3)
        if ('exec', 0) in p.wr:
            if c.kind == 'mfma':
                need = max(need, 4)
            if c.kind == 'valu' and ('dpp' in c.text):
                need = max(need, 5)
            if c.kind == 'valu' and c.mn in ('v_readfirstlane_b32', 'v_readlane_b32', 'v_writelane_b32'):
                need = max(need, 4)
            if c.kind == 'valu' and c.mn.startswith('v_permlane'):
                need = max(need, 4)
    if p.kind == 'salu':
        if ('m0', 0) in p.wr and c.kind == 'vmem_lds':
            need = max(need, 1)
    if p.kind == 'mfma':
        d = p.wr
        P = p.passes
        tab_c_overlap = {4: 6, 8: 10}[P]
        tab_ab = {4: 8, 8: 12}[P]
        if c.kind == 'mfma':
            if d & set(c.ab):
                need = max(need, tab_ab)
            if d & set(c.srcc):
                if set(c.srcc) == d and c.passes == P:
                    pass
                else:
                    need = max(need, tab_c_overlap)
            elif d & c.wr:
                need = max(need, tab_c_overlap)
        elif c.kind in ('valu', 'vmem', 'vmem_lds', 'vstore', 'ds'):
            if d & (c.rd | c.wr):
                need = max(need, tab_ab)
        if c.kind == 'valu' and (set(p.srcc) & c.wr):
            need = max(need, {4: 3, 8: 7}[P])
    if p.kind == 'vstore' and ('x4' in p.mn or 'x3' in p.mn):
        if c.kind in ('valu', 'mfma', 'ds', 'vmem') and (p.rd & c.wr):
            need = max(need, 2)
    return need


class Asm:
    def __init__(self):
        self.lines = []
        self.hist = []
        self.vm = []
        self.lg = []
        self.smem_out = False
        self.nlabel = 0

    def raw(self, s):
        self.lines.append(s)

    def comment(self, s):
        self.lines.append('    ; ' + s)

    def __call__(self, text, tag=None):
        ins = Ins(text)
        need = 0
        dist = 0
        for p in reversed(self.hist):
            r = required(p, ins)
            if r > dist:
                need = max(need, r - dist)
            dist += p.states
            if dist > 24:
                break
        while need > 0:
            n = min(need, 16)
            nop = Ins('s_nop %d' % (n - 1))
            self.lines.append('    s_nop %d' % (n - 1))
            self.hist.append(nop)
            need -= n
        self.lines.append('    ' + text)
        self.hist.append(ins)
        if len(self.hist) > 64:
            self.hist = self.hist[-40:]
        if ins.kind in ('vmem', 'vmem_lds', 'vstore'):
            self.vm.append(tag)
        elif ins.kind == 'ds':
            self.lg.append(tag)
        elif ins.kind == 'smem':
            self.smem_out = True
        return ins

    def flush_hazards(self):
        need = 0
        dist = 0
        for p in reversed(self.hist):
            w = 0
            if p.kind == 'mfma':
                w = {4: 8, 8: 12}[p.passes]
            elif p.kind == 'valu':
                w = 5
            elif p.kind == 'salu':
                w = 1
            elif p.kind == 'vstore':
                w = 2
            if w > dist:
                need = max(need, w - dist)
            dist += p.states
            if dist > 24:
                break
        if need > 0:
            self('s_nop %d' % (need - 1))

    def label(self, name, flush=True):
        if flush:
            self.flush_hazards()
        self.lines.append(name + ':')

    def newlabel(self, base='L'):
        self.nlabel += 1
        return '.%s_%d' % (base, self.nlabel)

    def branch(self, text, flush=True):
        if flush:
            self.flush_hazards()
        self(text)

    def wait_vm(self, tag):
        idx = None
        for i in range(len(self.vm) - 1, -1, -1):
            if self.vm[i] == tag:
                idx = i
                break
        if idx is None:
            return
        n = len(self.vm) - 1 - idx
        assert n <= 63, n
        self('s_waitcnt vmcnt(%d)' % n)
        self.vm = self.vm[idx + 1:]

    def wait_vm_all(self):
        self('s_waitcnt vmcnt(0)')
        self.vm = []

    def wait_lg(self, tag):
        idx = None
        for i in range(len(self.lg) - 1, -1, -1):
            if self.lg[i] == tag:
                idx = i
                break
        if idx is None:
            return
        n = len(self.lg) - 1 - idx
        if n > 15 or self.smem_out:
            n = 0 if self.smem_out else 15
            if n == 15:
                self('s_waitcnt lgkmcnt(15)')
                self.lg = self.lg[len(self.lg) - 15:]
                return
            self('s_waitcnt lgkmcnt(0)')
            self.lg = []
            self.smem_out = False
            return
        self('s_waitcnt lgkmcnt(%d)' % n)
        self.lg = self.lg[idx + 1:]

    def wait_lg_all(self):
        self('s_waitcnt lgkmcnt(0)')
        self.lg = []
        self.smem_out = False

    def text(self):
        return '\n'.join(self.lines) + '\n'


def vr(base, n=1):
    return 'v%d' % base if n == 1 else 'v[%d:%d]' % (base, base + n - 1)


def sr(base, n=1):
    return 's%d' % base if n == 1 else 's[%d:%d]' % (base, base + n - 1)
```

```python
from asmlib import Asm, vr, sr
from gen import (WS_Q, WS_K, WS_VT, WS_H, WS_O, WS_F, WS_WD, WS_WO, WS_END, LOG2E, f32hex, make_srd, bf16r_pair,
                 kernel_desc, rt_start, rt_end, stamp, stamp_reset, stamp_dump)

G_SLOT = 20480
K2_LDS = 81920
K3_LDS = 102400


def gemm2(a, kind, wg_sreg):
    K = 1536 if kind == 'down' else 640
    nst = K // 128
    RING = 4 if kind == 'down' else 5
    AR = 5
    a_base = WS_H if kind == 'down' else WS_O
    w_base = WS_WD if kind == 'down' else WS_WO
    V_L16 = 1
    V_RD = 2
    V_RD2 = 3
    V_B = 16
    V_ACC = 56
    V_A = 76
    stamp_reset()
    stamp(a)
    if kind == 'out':
        a('s_load_dwordx2 s[6:7], s[0:1], 0')
        a('s_load_dwordx2 s[8:9], s[0:1], 56')
    a('s_load_dwordx2 s[12:13], s[0:1], 72')
    a('s_and_b32 s32, s%d, 7' % wg_sreg)
    a('s_lshr_b32 s33, s%d, 3' % wg_sreg)
    a('s_lshl_b32 s34, s32, 2')
    a('s_and_b32 s35, s33, 3')
    a('s_add_u32 s34, s34, s35')
    a('s_lshr_b32 s35, s33, 2')
    a('v_lshrrev_b32 v9, 6, v0')
    a('v_readfirstlane_b32 s36, v9')
    a('v_and_b32 v0, 63, v0')
    a('v_and_b32 v9, 15, v0')
    a('v_lshrrev_b32 v10, 4, v0')
    a('s_and_b32 s37, s36, 3')
    a('s_lshr_b32 s38, s36, 2')
    a('s_lshl_b32 s39, s34, 6')
    a('s_lshl_b32 s40, s37, 4')
    a('s_add_u32 s39, s39, s40')
    a('v_lshlrev_b32 v%d, 4, v0' % V_L16)
    a.wait_lg_all()
    make_srd(a, 28, 's12', 's13', WS_END)
    if kind == 'out':
        make_srd(a, 20, 's6', 's7', 2048 * 1280)
        make_srd(a, 24, 's8', 's9', 2048 * 1280)
    a('s_lshr_b32 s41, s39, 4')
    a('s_mul_i32 s41, s41, %d' % (K // 32 * 1024))
    a('s_lshl_b32 s42, s38, 10')
    a('s_add_u32 s41, s41, s42')
    a('s_add_u32 s41, s41, %d' % a_base)
    a('s_mul_i32 s42, s35, %d' % (K * 160))
    a('s_mul_i32 s44, s36, 2560')
    a('s_add_u32 s42, s42, s44')
    a('s_add_u32 s42, s42, %d' % w_base)
    a('v_bfe_u32 v11, v0, 2, 2')
    a('v_lshl_add_u32 v11, v10, 2, v11')
    a('v_mul_u32_u24 v11, 160, v11')
    a('v_and_b32 v12, 3, v0')
    a('v_lshl_add_u32 v11, v12, 3, v11')
    a('s_mul_i32 s43, s38, 5120')
    a('v_add_u32 v%d, s43, v11' % V_RD)
    a('v_add_u32 v%d, 61440, v%d' % (V_RD2, V_RD))

    def areg(t, q):
        return V_A + ((t % AR) * 2 + q) * 4

    def issue_stage(t):
        slot = t % RING
        a('s_add_u32 s45, s41, %d' % (t * 4096))
        for q in range(2):
            a('buffer_load_dwordx4 %s, v%d, s[28:31], s45 offen offset:%d' % (vr(areg(t, q), 4), V_L16, q * 2048),
              tag=('A', t))
        a('s_add_u32 s46, s42, %d' % (t * G_SLOT))
        for i in range(3):
            a('s_add_u32 m0, s44, %d' % (slot * G_SLOT))
            if i == 2:
                a('s_mov_b64 exec, 0xffffffff')
            a('buffer_load_dwordx4 v%d, s[28:31], s46 offen offset:%d lds' % (V_L16, i * 1024), tag=('D', t))
            if i == 2:
                a('s_mov_b64 exec, -1')

    for t in range(min(RING, nst)):
        issue_stage(t)
    for r in range(3):
        a('v_add_u32 v11, %d, v0' % (64 * r))
        a('v_mul_u32_u24 v12, 52429, v11')
        a('v_lshrrev_b32 v12, 19, v12')
        a('v_mul_u32_u24 v13, 10, v12')
        a('v_sub_u32 v13, v11, v13')
        a('v_add_u32 v14, s39, v12')
        a('v_mul_u32_u24 v14, 1280, v14')
        a('v_lshl_add_u32 v14, v13, 4, v14')
        a('s_mul_i32 s46, s35, 160')
        a('v_add_u32 v%d, s46, v14' % (5 + r))
        if r == 2:
            a('v_mov_b32 v14, 0x40000000')
            a('v_cmp_gt_u32 vcc, 32, v0')
            a('v_cndmask_b32 v7, v14, v7, vcc')
    X = 116
    if kind == 'out':
        a('s_mov_b32 s47, %d' % WS_F)
        for r in range(3):
            a('buffer_load_dwordx4 %s, v%d, s[20:23], 0 offen' % (vr(X + r * 4, 4), 5 + r), tag='X')
            a('buffer_load_dwordx4 %s, v%d, s[28:31], s47 offen' % (vr(X + 12 + r * 4, 4), 5 + r), tag='X')

    def read_unit(n, j):
        t, q = divmod(n, 2)
        b = V_B + (n % 2) * 20 + j * 4
        o = (t % RING) * G_SLOT + q * 64 * 160 + j * 32
        rd = V_RD
        if o >= 61440:
            o -= 61440
            rd = V_RD2
        a('ds_read_b64_tr_b16 %s, v%d offset:%d' % (vr(b, 2), rd, o), tag=('B', n, j))
        a('ds_read_b64_tr_b16 %s, v%d offset:%d' % (vr(b + 2, 2), rd, o + 16 * 160), tag=('B', n, j))

    def stage_enter(t):
        a.wait_lg_all()
        a.wait_vm(('D', t))
        a('s_barrier')
        if t >= 1 and t + RING - 1 < nst:
            issue_stage(t + RING - 1)

    nk = nst * 2
    stamp(a)
    stage_enter(0)
    stamp(a)
    for j in range(5):
        read_unit(0, j)
    for n in range(nk):
        nxt = n + 1
        if nxt < nk and nxt % 2 == 0:
            stage_enter(nxt // 2)
            if nxt // 2 in (1, 2, 4, 8):
                stamp(a)
        t, q = divmod(n, 2)
        for j in range(5):
            a.wait_lg(('B', n, j))
            b = V_B + (n % 2) * 20 + j * 4
            acc = vr(V_ACC + j * 4, 4)
            a('v_mfma_f32_16x16x32_bf16 %s, %s, %s, %s' % (acc, vr(b, 4), vr(areg(t, q), 4), acc if n else '0'))
            if nxt < nk:
                read_unit(nxt, j)
    stamp(a)
    L_hi = a.newlabel('g2hi')
    L_done = a.newlabel('g2done')
    a('s_barrier')
    a('s_mul_i32 s45, s37, 5120')
    a('v_add_u32 v4, s45, v%d' % V_L16)
    a('s_cmp_eq_u32 s38, 0')
    a.branch('s_cbranch_scc1 %s' % L_hi)
    for j in range(5):
        a('ds_write_b128 v4, %s offset:%d' % (vr(V_ACC + j * 4, 4), j * 1024), tag='ex')
    a.wait_lg_all()
    a('s_barrier')
    a.branch('s_branch %s' % L_done)
    a.label(L_hi)
    a('s_barrier')
    for j in range(5):
        a('ds_read_b128 %s, v4 offset:%d' % (vr(V_B + j * 4, 4), j * 1024), tag='ex')
    a.wait_lg_all()
    a('s_mul_i32 s45, s37, 2560')
    a('s_add_u32 s45, s45, 20480')
    a('v_mul_u32_u24 v11, 160, v9')
    a('v_lshl_add_u32 v11, v10, 3, v11')
    a('v_add_u32 v11, s45, v11')
    for j in range(5):
        ac = V_ACC + j * 4
        for r in range(4):
            a('v_add_f32 v%d, v%d, v%d' % (ac + r, ac + r, V_B + j * 4 + r))
        d = 36 + j * 2
        a('v_cvt_pk_bf16_f32 v%d, v%d, v%d' % (d, ac, ac + 1))
        a('v_cvt_pk_bf16_f32 v%d, v%d, v%d' % (d + 1, ac + 2, ac + 3))
        a('ds_write_b64 v11, %s offset:%d' % (vr(d, 2), j * 32), tag='tw')
    a.wait_lg_all()
    a('v_add_u32 v12, s45, v%d' % V_L16)
    for r in range(3):
        a('ds_read_b128 %s, v12 offset:%d' % (vr(16 + r * 4, 4), r * 1024), tag='tr')
    if kind == 'down':
        a('s_mov_b32 s47, %d' % WS_F)
        for r in range(3):
            a.wait_lg_all() if r == 0 else None
            a('buffer_store_dwordx4 %s, v%d, s[28:31], s47 offen' % (vr(16 + r * 4, 4), 5 + r), tag='st')
    else:
        a.wait_lg_all()
        a.wait_vm('X')
        for r in range(3):
            for q in range(4):
                av, xv, fv = 16 + r * 4 + q, X + r * 4 + q, X + 12 + r * 4 + q
                t = 56 + (q % 2) * 8
                a('v_lshlrev_b32 v%d, 16, v%d' % (t, av))
                a('v_and_b32 v%d, 0xffff0000, v%d' % (t + 1, av))
                a('v_lshlrev_b32 v%d, 16, v%d' % (t + 2, xv))
                a('v_and_b32 v%d, 0xffff0000, v%d' % (t + 3, xv))
                a('v_add_f32 v%d, v%d, v%d' % (t, t, t + 2))
                a('v_add_f32 v%d, v%d, v%d' % (t + 1, t + 1, t + 3))
                bf16r_pair(a, t, t + 1, t, t + 1, t + 4)
                a('v_lshlrev_b32 v%d, 16, v%d' % (t + 2, fv))
                a('v_and_b32 v%d, 0xffff0000, v%d' % (t + 3, fv))
                a('v_add_f32 v%d, v%d, v%d' % (t, t, t + 2))
                a('v_add_f32 v%d, v%d, v%d' % (t + 1, t + 1, t + 3))
                a('v_cvt_pk_bf16_f32 v%d, v%d, v%d' % (av, t, t + 1))
            a('buffer_store_dwordx4 %s, v%d, s[24:27], 0 offen' % (vr(16 + r * 4, 4), 5 + r), tag='st')
    a.label(L_done)


def attention(a, wg_sreg):
    V_Q = 16
    V_O = 20
    V_S = 28
    V_KV = 100

    def S(t):
        return V_S + t * 4

    stamp_reset()
    stamp(a)
    a('s_load_dwordx2 s[12:13], s[0:1], 72')
    a('s_and_b32 s32, s%d, 7' % wg_sreg)
    a('s_lshr_b32 s33, s%d, 3' % wg_sreg)
    a('s_lshl_b32 s34, s32, 2')
    a('s_and_b32 s35, s33, 3')
    a('s_add_u32 s34, s34, s35')
    a('s_lshr_b32 s35, s33, 2')
    a('v_lshrrev_b32 v1, 6, v0')
    a('v_readfirstlane_b32 s36, v1')
    a('v_and_b32 v0, 63, v0')
    a('v_and_b32 v1, 15, v0')
    a('v_lshrrev_b32 v2, 4, v0')
    a('v_lshlrev_b32 v3, 4, v0')
    a('s_lshl_b32 s37, s35, 3')
    a('s_add_u32 s37, s37, s36')
    a('s_lshl_b32 s37, s37, 5')
    a.wait_lg_all()
    a('s_lshl_b32 s38, s34, 17')
    for d, base in ((16, WS_Q), (20, WS_K), (24, WS_VT)):
        a('s_add_u32 s39, s38, %d' % base)
        a('s_add_u32 s%d, s12, s39' % d)
        a('s_addc_u32 s%d, s13, 0' % (d + 1))
        a('s_and_b32 s%d, s%d, 0xffff' % (d + 1, d + 1))
        a('s_mov_b32 s%d, 131072' % (d + 2))
        a('s_mov_b32 s%d, 0x00020000' % (d + 3))
    make_srd(a, 28, 's12', 's13', WS_END)
    a('s_lshl_b32 s43, s35, 14')
    a('s_lshl_b32 s44, s36, 11')
    a('s_add_u32 s45, s43, s44')
    a('v_add_u32 v10, s45, v3')
    a('v_add_u32 v11, 1024, v10')
    a('s_mov_b32 m0, s44')
    a('buffer_load_dwordx4 v10, s[16:19], 0 offen lds', tag='stg')
    a('s_add_u32 m0, s44, 1024')
    a('buffer_load_dwordx4 v11, s[16:19], 0 offen lds', tag='stg')
    a('s_lshl_b32 s44, s36, 12')
    a('s_sub_u32 s45, s43, %d' % (256 * 64))
    a('s_add_u32 s45, s45, s44')
    a('v_add_u32 v10, s45, v3')
    for i in range(4):
        a('v_add_u32 v11, %d, v10' % (i * 1024))
        a('s_add_u32 m0, s44, %d' % (16384 + i * 1024))
        a('buffer_load_dwordx4 v11, s[20:23], 0 offen lds', tag='stg')
        a('s_add_u32 m0, s44, %d' % (49152 + i * 1024))
        a('buffer_load_dwordx4 v11, s[24:27], 0 offen lds', tag='stg')
    a('v_lshlrev_b32 v4, 2, v2')
    for r in range(4):
        a('v_add_u32 v5, %d, v4' % r)
        a('v_cmp_gt_u32 s[%d:%d], v5, v1' % (48 + 2 * r, 49 + 2 * r))
        a('v_cmp_le_u32 s[%d:%d], v5, v1' % (56 + 2 * r, 57 + 2 * r))
    a('v_mov_b32 v15, %s' % f32hex(-1e30))
    a('v_cmp_eq_u32 s[66:67], 4, v1')
    a('v_mov_b32 v14, 0x3f803f80')
    a('v_cmp_eq_u32 s[64:65], 0, v2')
    a('v_xor_b32 v5, 16, v0')
    a('v_lshlrev_b32 v5, 2, v5')
    a('v_xor_b32 v6, 32, v0')
    a('v_lshlrev_b32 v6, 2, v6')
    a('v_add_u32 v7, 16, v1')
    a('v_lshlrev_b32 v7, 2, v7')
    a('s_mul_i32 s39, s34, 5')
    a('v_add_u32 v8, s39, v2')

    def gpos(dst, G, t1, t2):
        a('v_lshrrev_b32 v%d, 3, v%d' % (t1, G))
        a('v_lshlrev_b32 v%d, 10, v%d' % (t1, t1))
        a('v_and_b32 v%d, 3, v%d' % (t2, G))
        a('v_lshl_add_u32 v%d, v%d, 8, v%d' % (t1, t2, t1))
        a('v_bfe_u32 v%d, v%d, 2, 1' % (t2, G))
        a('v_lshl_add_u32 v%d, v%d, 3, v%d' % (dst, t2, t1))
    gpos(8, 8, 10, 11)
    a('s_add_u32 s39, s39, 4')
    a('v_mov_b32 v9, s39')
    gpos(9, 9, 10, 11)
    a('v_mov_b32 v10, 0x40000000')
    a('v_cndmask_b32 v9, v10, v9, s[64:65]')
    a('v_lshlrev_b32 v10, 4, v1')
    a('v_add_u32 v8, v8, v10')
    a('v_add_u32 v9, v9, v10')
    a('s_mov_b32 s40, %s' % f32hex(20 ** -0.5 * LOG2E))
    a('s_lshl_b32 s46, s36, 11')
    a('v_add_u32 v4, s46, v3')
    a('v_add_u32 v2, 49152, v4')
    a('s_mul_i32 s43, s37, 1280')
    a('s_add_u32 s43, s43, %d' % WS_O)
    a('s_sub_u32 s47, 256, s37')
    a('s_lshr_b32 s47, s47, 4')
    stamp(a)
    a.wait_vm_all()
    a('s_barrier')
    stamp(a)

    for qt in range(2):
        tiles = list(range(qt, 17 + qt))
        a('ds_read_b128 %s, v4 offset:%d' % (vr(V_Q, 4), qt * 1024), tag='Q')
        NB = 6
        for k, t in enumerate(tiles[:NB - 1]):
            a('ds_read_b128 %s, v4 offset:%d' % (vr(V_KV + (k % NB) * 4, 4), 16384 + t * 1024), tag=('K', t))
        a.wait_lg('Q')
        for r in (2, 3):
            a('v_cndmask_b32 v%d, 0, v%d, s[64:65]' % (V_Q + r, V_Q + r))
        for k, t in enumerate(tiles):
            kb = V_KV + (k % NB) * 4
            a.wait_lg(('K', t))
            for r in (2, 3):
                a('v_cndmask_b32 v%d, 0, v%d, s[64:65]' % (kb + r, kb + r))
            a('v_mfma_f32_16x16x32_bf16 %s, %s, %s, 0' % (vr(S(t), 4), vr(kb, 4), vr(V_Q, 4)))
            k2 = k + NB - 1
            if k2 < len(tiles):
                a('ds_read_b128 %s, v4 offset:%d' % (vr(V_KV + (k2 % NB) * 4, 4), 16384 + tiles[k2] * 1024), tag=('K', tiles[k2]))
        for b in range(2):
            for dt in range(2):
                a('ds_read_b128 %s, v2 offset:%d' % (vr(V_KV + (b % 3) * 8 + dt * 4, 4), b * 2048 + dt * 1024), tag=('V', b))
        tf, tl = qt, 16 + qt
        for r in range(4):
            a('v_cndmask_b32 v%d, v15, v%d, s[%d:%d]' % (S(tf) + r, S(tf) + r, 48 + 2 * r, 49 + 2 * r))
            a('v_cndmask_b32 v%d, v15, v%d, s[%d:%d]' % (S(tl) + r, S(tl) + r, 56 + 2 * r, 57 + 2 * r))
        L_noneg = a.newlabel('noneg')
        a('s_cmp_ge_u32 s37, 256')
        a.branch('s_cbranch_scc1 %s' % L_noneg)
        for t in range(qt, 16):
            a('s_cmp_le_u32 s47, %d' % t)
            a.branch('s_cbranch_scc1 %s' % L_noneg)
            for r in range(4):
                a('v_mov_b32 v%d, v15' % (S(t) + r))
        a.label(L_noneg)
        regs = [S(t) + r for t in tiles for r in range(4)]
        a('v_max3_f32 v10, v%d, v%d, v%d' % (regs[0], regs[1], regs[2]))
        a('v_max3_f32 v11, v%d, v%d, v%d' % (regs[3], regs[4], regs[5]))
        k = 6
        tog = 0
        while k + 1 < len(regs):
            mm = 10 + tog
            a('v_max3_f32 v%d, v%d, v%d, v%d' % (mm, mm, regs[k], regs[k + 1]))
            k += 2
            tog ^= 1
        if k < len(regs):
            a('v_max_f32 v10, v10, v%d' % regs[k])
        a('v_max_f32 v10, v10, v11')
        for addr in (5, 6):
            a('ds_bpermute_b32 v11, v%d, v10' % addr, tag='bp')
            a.wait_lg('bp')
            a('v_max_f32 v10, v10, v11')
        a('v_mul_f32 v10, s40, v10')
        for b in range(9):
            for t in (2 * b, 2 * b + 1):
                if t not in tiles:
                    continue
                for r in range(4):
                    a('v_fma_f32 v%d, v%d, s40, -v10' % (S(t) + r, S(t) + r))
                for r in range(4):
                    a('v_exp_f32 v%d, v%d' % (S(t) + r, S(t) + r))
            p = S(2 * b)
            q = S(2 * b + 1)
            if 2 * b not in tiles:
                a('v_cvt_pk_bf16_f32 v%d, v%d, v%d' % (p + 2, q, q + 1))
                a('v_cvt_pk_bf16_f32 v%d, v%d, v%d' % (p + 3, q + 2, q + 3))
                a('v_mov_b32 v%d, 0' % p)
                a('v_mov_b32 v%d, 0' % (p + 1))
            else:
                a('v_cvt_pk_bf16_f32 v%d, v%d, v%d' % (p, p, p + 1))
                a('v_cvt_pk_bf16_f32 v%d, v%d, v%d' % (p + 1, p + 2, p + 3))
                if 2 * b + 1 not in tiles:
                    a('v_mov_b32 v%d, 0' % (p + 2))
                    a('v_mov_b32 v%d, 0' % (p + 3))
                else:
                    a('v_cvt_pk_bf16_f32 v%d, v%d, v%d' % (p + 2, q, q + 1))
                    a('v_cvt_pk_bf16_f32 v%d, v%d, v%d' % (p + 3, q + 2, q + 3))
        for b in range(9):
            vb = V_KV + (b % 3) * 8
            a.wait_lg(('V', b))
            for r in range(4):
                a('v_cndmask_b32 v%d, v%d, v14, s[66:67]' % (vb + 4 + r, vb + 4 + r))
            for dt in range(2):
                o = vr(V_O + dt * 4, 4)
                a('v_mfma_f32_16x16x32_bf16 %s, %s, %s, %s' % (o, vr(vb + dt * 4, 4), vr(S(2 * b), 4), o if b else '0'))
            if b + 2 < 9:
                for dt in range(2):
                    a('ds_read_b128 %s, v2 offset:%d' % (vr(V_KV + ((b + 2) % 3) * 8 + dt * 4, 4), (b + 2) * 2048 + dt * 1024),
                      tag=('V', b + 2))
        a('ds_bpermute_b32 v10, v7, v%d' % (V_O + 4), tag='bp')
        a.wait_lg_all()
        a('v_rcp_f32 v10, v10')
        for dt in range(2):
            o = V_O + dt * 4
            for r in range(4):
                a('v_mul_f32 v%d, v%d, v10' % (o + r, o + r))
            a('v_cvt_pk_bf16_f32 v%d, v%d, v%d' % (12, o, o + 1) if dt == 0 else 'v_cvt_pk_bf16_f32 v%d, v%d, v%d' % (o, o, o + 1))
            if dt == 0:
                a('v_cvt_pk_bf16_f32 v13, v%d, v%d' % (o + 2, o + 3))
                a('buffer_store_dwordx2 v[12:13], v8, s[28:31], s43 offen', tag='st')
            else:
                a('v_cvt_pk_bf16_f32 v%d, v%d, v%d' % (o + 1, o + 2, o + 3))
                a('buffer_store_dwordx2 %s, v9, s[28:31], s43 offen' % vr(o, 2), tag='st')
        if qt == 0:
            a('s_add_u32 s43, s43, %d' % (20 * 1024))
            stamp(a)


def emit(a, launches, descs, which):
    if '2' in which:
        name = 'k2_kernel'
        a.raw('.globl %s' % name)
        a.raw('.p2align 8')
        a.raw('.type %s,@function' % name)
        a.raw('%s:' % name)
        a.hist = []
        a.vm = []
        a.lg = []
        a('s_cmp_ge_u32 s2, 512')
        a.branch('s_cbranch_scc1 .k2_end')
        rt_start(a)
        a('s_cmp_ge_u32 s2, 256')
        a.branch('s_cbranch_scc1 .k2_gemm')
        attention(a, 2)
        a.wait_vm_all()
        stamp(a)
        stamp_dump(a, 36)
        rt_end(a, 36, 1)
        a.branch('s_branch .k2_end')
        a.label('.k2_gemm')
        a.vm = []
        a.lg = []
        a('s_sub_u32 s3, s2, 256')
        gemm2(a, 'down', 3)
        a.wait_vm_all()
        stamp(a)
        stamp_dump(a, 36)
        rt_end(a, 36, 1)
        a.label('.k2_end')
        a('s_endpgm')
        launches.append('; @launch kernel=k2_kernel grid=(512,1,1) block=(512,1,1) lds=%d' % K2_LDS)
        descs.append(kernel_desc('k2_kernel', 128))
    if '3' in which:
        name = 'k3_kernel'
        a.raw('.globl %s' % name)
        a.raw('.p2align 8')
        a.raw('.type %s,@function' % name)
        a.raw('%s:' % name)
        a.hist = []
        a.vm = []
        a.lg = []
        a('s_cmp_ge_u32 s2, 256')
        a.branch('s_cbranch_scc1 .k3_end')
        rt_start(a)
        gemm2(a, 'out', 2)
        a.wait_vm_all()
        stamp(a)
        stamp_dump(a, 36)
        rt_end(a, 36, 2)
        a.label('.k3_end')
        a('s_endpgm')
        launches.append('; @launch kernel=k3_kernel grid=(256,1,1) block=(512,1,1) lds=%d' % K3_LDS)
        descs.append(kernel_desc('k3_kernel', 140))
```

```python
import sys
import os
sys.path.insert(0, os.path.dirname(os.path.abspath(__file__)))
from asmlib import Asm, vr, sr

WS_Q = 0
WS_K = 0x400000
WS_VT = 0x800000
WS_H = 0xC00000
WS_O = 0x1200000
WS_F = 0x1480000
WS_WD = 0x1700000
WS_WO = 0x18E0000
WS_END = 0x19B0000

LOG2E = 1.4426950408889634
STF = os.environ.get('GEN_STF', '')


def f32hex(x):
    import struct
    return '0x%08x' % struct.unpack('<I', struct.pack('<f', x))[0]


def make_srd(a, d, base_lo, base_hi, nrec):
    a('s_mov_b32 s%d, %s' % (d, base_lo))
    a('s_and_b32 s%d, %s, 0xffff' % (d + 1, base_hi))
    a('s_mov_b32 s%d, %s' % (d + 2, nrec if isinstance(nrec, str) else '0x%x' % nrec))
    a('s_mov_b32 s%d, 0x00020000' % (d + 3))


STAMP = os.environ.get('GEN_STAMP', '') != ''
_stamp_n = [0]


def stamp(a):
    if not STAMP:
        return
    i = _stamp_n[0]
    _stamp_n[0] += 1
    a.wait_lg_all()
    a('s_memtime s[%d:%d]' % (70 + 2 * i, 71 + 2 * i))
    a.wait_lg_all()


def stamp_reset(n=0):
    _stamp_n[0] = n


def rt_start(a):
    if not STAMP:
        return
    a('s_memrealtime s[92:93]')
    a('s_memtime s[90:91]')
    a.wait_lg_all()


def rt_end(a, wave_sreg, kidx):
    if not STAMP:
        return
    L = a.newlabel('nort')
    a('s_cmp_lg_u32 s%d, 0' % wave_sreg)
    a.branch('s_cbranch_scc1 %s' % L)
    a.wait_vm_all()
    a('s_memrealtime s[94:95]')
    a('s_memtime s[88:89]')
    a.wait_lg_all()
    a('s_mov_b32 s64, s12')
    a('s_and_b32 s65, s13, 0xffff')
    a('s_mov_b32 s66, 0x%x' % (WS_END + 65536))
    a('s_mov_b32 s67, 0x00020000')
    a('s_lshl_b32 s68, s2, 4')
    a('s_add_u32 s68, s68, %d' % (WS_END + kidx * 16384))
    a('v_mov_b32 v1, 0')
    a('v_mov_b32 v2, s92')
    a('v_mov_b32 v3, s94')
    a('s_sub_u32 s69, s88, s90')
    a('v_mov_b32 v4, s69')
    a('s_getreg_b32 s69, hwreg(HW_REG_XCC_ID)')
    a('v_mov_b32 v5, s69')
    a('buffer_store_dwordx4 v[2:5], v1, s[64:67], s68 offen')
    a.wait_vm_all()
    a.label(L)


def stamp_dump(a, wave_sreg):
    if not STAMP:
        return
    if os.environ.get('GEN_STAMP') == 'w':
        L = a.newlabel('nodump')
        a('s_cmp_lg_u32 s2, 0')
        a.branch('s_cbranch_scc1 %s' % L)
        a('s_load_dwordx2 s[64:65], s[0:1], 64')
        a.wait_lg_all()
        a('s_and_b32 s65, s65, 0xffff')
        a('s_mov_b32 s66, 256')
        a('s_mov_b32 s67, 0x00020000')
        a('s_lshl_b32 s68, s%d, 5' % wave_sreg)
        a('v_mov_b32 v1, 0')
        for i in range(min(8, _stamp_n[0])):
            a('v_mov_b32 v2, s%d' % (70 + 2 * i))
            a('buffer_store_dword v2, v1, s[64:67], s68 offen offset:%d' % (4 * i))
        a.wait_vm_all()
        a.label(L)
        return
    L = a.newlabel('nodump')
    a('s_cmp_lg_u32 s%d, 0' % wave_sreg)
    a.branch('s_cbranch_scc1 %s' % L)
    a('s_mov_b32 s68, 0')
    L2 = a.newlabel('dump')
    a('s_cmp_eq_u32 s2, 0')
    a.branch('s_cbranch_scc1 %s' % L2)
    a('s_mov_b32 s68, 64')
    a('s_cmp_eq_u32 s2, 101')
    a.branch('s_cbranch_scc1 %s' % L2)
    a('s_mov_b32 s68, 128')
    a('s_cmp_eq_u32 s2, 300')
    a.branch('s_cbranch_scc0 %s' % L)
    a.label(L2)
    a('s_load_dwordx2 s[64:65], s[0:1], 64')
    a.wait_lg_all()
    a('s_and_b32 s65, s65, 0xffff')
    a('s_mov_b32 s66, 256')
    a('s_mov_b32 s67, 0x00020000')
    a('v_mov_b32 v1, 0')
    for i in range(_stamp_n[0]):
        a('s_sub_u32 s69, s%d, s70' % (70 + 2 * i))
        a('v_mov_b32 v2, s69')
        a('buffer_store_dword v2, v1, s[64:67], s68 offen offset:%d' % (4 * i))
    a.wait_vm_all()
    a.label(L)


def bf16r_pair(a, dst_lo, dst_hi, src_lo, src_hi, tmp):
    a('v_cvt_pk_bf16_f32 v%d, v%d, v%d' % (tmp, src_lo, src_hi))
    a('v_lshlrev_b32 v%d, 16, v%d' % (dst_lo, tmp))
    a('v_and_b32 v%d, 0xffff0000, v%d' % (dst_hi, tmp))


K1_SLOT = 40960
K1_R2 = 24576
K1_STASH = 3 * K1_SLOT
K1_XS = 81920
K1_LDS = 163840

V_DMA = 1
V_RD = 6
V_T = 11
V_B = 16
V_ACC = 56
V_A = 96


def k1_areg(tile, s):
    return V_A + (tile * 20 + s) * 4


def k1_xreg(rho, j):
    return (216 if j < 5 else 136) + (rho * 5 + (j % 5)) * 4


def k1_acc(j, tile):
    return V_ACC + (j * 2 + tile) * 4


def gen_k1(a):
    name = 'k1_kernel'
    a.raw('.globl %s' % name)
    a.raw('.p2align 8')
    a.raw('.type %s,@function' % name)
    a.raw('%s:' % name)
    L_end = '.k1_end'
    a('s_cmp_ge_u32 s2, 256')
    a.branch('s_cbranch_scc1 %s' % L_end)
    stamp_reset()
    rt_start(a)
    stamp(a)
    a('s_load_dwordx4 s[4:7], s[0:1], 0')
    a('s_load_dwordx4 s[8:11], s[0:1], 32')
    a('s_load_dwordx2 s[12:13], s[0:1], 72')
    a('s_load_dwordx2 s[64:65], s[0:1], 16')
    a('s_load_dwordx2 s[66:67], s[0:1], 48')
    a('s_and_b32 s32, s2, 7')
    a('s_lshr_b32 s33, s2, 3')
    a('s_and_b32 s34, s32, 1')
    a('s_lshl_b32 s34, s34, 3')
    a('s_and_b32 s35, s33, 7')
    a('s_add_u32 s34, s34, s35')
    a('s_lshr_b32 s35, s32, 1')
    a('s_lshl_b32 s35, s35, 2')
    a('s_lshr_b32 s36, s33, 3')
    a('s_add_u32 s35, s35, s36')
    a('v_lshrrev_b32 v11, 6, v0')
    a('v_readfirstlane_b32 s36, v11')
    a('v_and_b32 v0, 63, v0')
    a('s_and_b32 s37, s36, 3')
    a('s_lshr_b32 s38, s36, 2')
    a('s_lshl_b32 s39, s34, 7')
    a('s_lshl_b32 s40, s37, 5')
    a('s_add_u32 s39, s39, s40')
    a.wait_lg_all()
    make_srd(a, 24, 's4', 's5', 2048 * 1280)
    make_srd(a, 28, 's12', 's13', WS_END)
    a('v_and_b32 v11, 15, v0')
    a('v_lshrrev_b32 v12, 4, v0')
    a('v_lshrrev_b32 v13, 3, v0')
    a('v_mul_u32_u24 v13, 1280, v13')
    a('v_and_b32 v14, 7, v0')
    a('v_lshl_add_u32 v13, v14, 4, v13')
    a('s_lshl_b32 s40, s34, 7')
    a('s_lshl_b32 s41, s36, 4')
    a('s_add_u32 s40, s40, s41')
    a('s_mul_i32 s40, s40, 1280')
    a('s_add_u32 s41, s40, 10240')
    for j in range(10):
        for rho in range(2):
            a('buffer_load_dwordx4 %s, v13, s[24:27], s%d offen offset:%d' % (vr(k1_xreg(rho, j), 4), 40 + rho, j * 128),
              tag=('X', rho, j))
    a('s_barrier')
    L_gu = a.newlabel('k1gu')
    L_par = a.newlabel('k1par')
    a('s_cmp_ge_u32 s35, 6')
    a.branch('s_cbranch_scc1 %s' % L_gu)
    a('s_movk_i32 s42, 3840')
    a('s_mul_i32 s43, s35, 640')
    a('s_add_u32 s16, s6, s43')
    a('s_addc_u32 s17, s7, 0')
    a('s_sub_u32 s18, %d, s43' % (640 * 3840))
    a('s_add_u32 s43, s43, 192')
    a('s_movk_i32 s56, 512')
    a('s_add_u32 s20, s6, s43')
    a('s_addc_u32 s21, s7, 0')
    a('s_sub_u32 s22, %d, s43' % (640 * 3840))
    a('s_mov_b32 s44, 0')
    a('s_mov_b32 s45, 10')
    a.branch('s_branch %s' % L_par)
    a.label(L_gu)
    a('s_movk_i32 s42, 3072')
    a('s_sub_u32 s43, s35, 6')
    a('s_mul_i32 s44, s43, 10')
    a('s_movk_i32 s56, 192')
    a('s_cmp_lt_u32 s43, 9')
    a('s_cselect_b32 s45, 10, 6')
    a('s_lshl_b32 s43, s44, 5')
    a('s_add_u32 s16, s8, s43')
    a('s_addc_u32 s17, s9, 0')
    a('s_sub_u32 s18, %d, s43' % (640 * 3072))
    a('s_add_u32 s20, s10, s43')
    a('s_addc_u32 s21, s11, 0')
    a('s_sub_u32 s22, %d, s43' % (640 * 3072))
    a.label(L_par)
    a('s_and_b32 s17, s17, 0xffff')
    a('s_and_b32 s21, s21, 0xffff')
    a('s_mov_b32 s19, 0x00020000')
    a('s_mov_b32 s23, 0x00020000')
    a('s_lshl_b32 s46, s42, 7')
    a('s_mul_i32 s47, s36, 3072')
    a('s_lshl_b32 s48, s36, 11')
    a('s_add_u32 s48, s48, %d' % K1_R2)
    a('s_mul_i32 s49, s36, 192')
    for i in range(3):
        a('v_add_u32 v16, s49, v0')
        if i:
            a('v_add_u32 v16, %d, v16' % (64 * i))
        a('v_mul_u32_u24 v17, 43691, v16')
        a('v_lshrrev_b32 v17, 19, v17')
        a('v_mul_u32_u24 v18, 12, v17')
        a('v_sub_u32 v18, v16, v18')
        a('v_lshrrev_b32 v19, 1, v18')
        a('v_bfe_u32 v20, v17, 3, 1')
        a('v_xor_b32 v19, v19, v20')
        a('v_and_b32 v18, 1, v18')
        a('v_lshlrev_b32 v18, 4, v18')
        a('v_lshl_add_u32 v18, v19, 5, v18')
        a('v_mul_lo_u32 v17, v17, s42')
        a('v_add_u32 v%d, v17, v18' % (V_DMA + i))
    a('s_lshl_b32 s49, s36, 7')
    for i in range(2):
        a('v_add_u32 v16, s49, v0')
        if i:
            a('v_add_u32 v16, %d, v16' % (64 * i))
        a('v_lshrrev_b32 v17, 3, v16')
        a('v_and_b32 v18, 7, v16')
        a('v_lshrrev_b32 v19, 1, v18')
        a('v_bfe_u32 v20, v17, 1, 1')
        a('v_bfe_u32 v21, v17, 3, 1')
        a('v_lshl_or_b32 v20, v21, 1, v20')
        a('v_xor_b32 v19, v19, v20')
        a('v_and_b32 v18, 1, v18')
        a('v_lshlrev_b32 v18, 4, v18')
        a('v_lshl_add_u32 v18, v19, 5, v18')
        a('v_mul_lo_u32 v17, v17, s42')
        a('v_add_u32 v%d, v17, v18' % (V_DMA + 3 + i))

    def issue_dma(t):
        p, st = divmod(t, 5)
        slot = t % 3
        a('s_mul_i32 s50, s46, %d' % st)
        if p:
            a('s_add_u32 s51, s50, s56')
            a('s_add_u32 s50, s50, 128')
        else:
            a('s_mov_b32 s51, s50')
        srd1, srd2 = (16, 20) if p == 0 else (20, 16)
        for i in range(3):
            a('s_add_u32 m0, s47, %d' % (slot * K1_SLOT + i * 1024))
            a('buffer_load_dwordx4 v%d, %s, s50 offen lds' % (V_DMA + i, sr(srd1, 4)), tag=('D', t))
        for i in range(2):
            a('s_add_u32 m0, s48, %d' % (slot * K1_SLOT + i * 1024))
            a('buffer_load_dwordx4 v%d, %s, s51 offen lds' % (V_DMA + 3 + i, sr(srd2, 4)), tag=('D', t))

    for t in range(2):
        issue_dma(t)

    a('s_lshl_b32 s57, s2, 9')
    a('s_lshl_b32 s58, s36, 6')
    a('s_add_u32 s57, s57, s58')
    a('s_cmp_lt_u32 s57, 122880')
    a('s_cselect_b32 s60, s66, s64')
    a('s_cselect_b32 s61, s67, s65')
    a('s_cselect_b32 s62, %d, s57' % 0 if False else 's_cselect_b32 s58, 0, 1')
    a('s_and_b32 s61, s61, 0xffff')
    a('s_mov_b32 s63, 0x00020000')
    a('s_mul_i32 s59, s58, 122880')
    a('s_sub_u32 s57, s57, s59')
    a('s_cmp_eq_u32 s58, 0')
    a('s_cselect_b32 s62, %d, %d' % (1536 * 1280, 0) if False else 's_mov_b32 s62, %d' % (640 * 1280))
    a('s_cselect_b32 s62, %d, s62' % (1536 * 1280))
    a('s_mov_b32 s59, 640')
    a('s_cselect_b32 s59, 1536, s59')
    a('s_mov_b32 s68, %d' % WS_WO)
    a('s_cselect_b32 s68, %d, s68' % WS_WD)

    def repack_dst(c, dst, R):
        a('s_mov_b32 s69, 53687092')
        a('v_mul_hi_u32 v24, v%d, s69' % c)
        a('v_mul_u32_u24 v25, 80, v24')
        a('v_sub_u32 v25, v%d, v25' % c)
        a('v_mul_u32_u24 v26, 205, v25')
        a('v_lshrrev_b32 v26, 11, v26')
        a('v_mul_u32_u24 v27, 10, v26')
        a('v_sub_u32 v25, v25, v27')
        a('v_mul_lo_u32 v26, v26, %s' % R)
        a('v_add_u32 v24, v24, v26')
        a('v_mul_u32_u24 v24, 160, v24')
        a('v_lshl_add_u32 v%d, v25, 4, v24' % dst)
    a('v_add_u32 v64, s57, v0')
    a('v_lshlrev_b32 v22, 4, v64')
    a('buffer_load_dwordx4 v[56:59], v22, s[60:63], 0 offen', tag='RP')
    repack_dst(64, 64, 's59')
    a('v_add_u32 v64, s68, v64')
    a('s_mov_b32 s60, s64')
    a('s_and_b32 s61, s65, 0xffff')
    a('s_mov_b32 s62, %d' % (640 * 1280))
    a('s_lshl_b32 s57, s2, 9')
    a('s_lshl_b32 s58, s36, 6')
    a('s_add_u32 s57, s57, s58')
    a('s_add_u32 s57, s57, 8192')
    a('v_add_u32 v65, s57, v0')
    a('v_lshlrev_b32 v22, 4, v65')
    a('buffer_load_dwordx4 v[60:63], v22, s[60:63], 0 offen', tag='RP')
    a('v_cmp_gt_u32 vcc, 51200, v65')
    a('s_mov_b32 s59, 640')
    repack_dst(65, 65, 's59')
    a('v_add_u32 v65, %d, v65' % WS_WO)
    a('v_mov_b32 v24, 0x40000000')
    a('v_cndmask_b32 v65, v24, v65, vcc')
    stamp(a)
    for r in range(16, 20):
        a('v_mov_b32 v%d, 0' % r)
    a('v_mov_b32 v20, 0x3f803f80')
    for j in range(10):
        for rho in range(2):
            a.wait_vm(('X', rho, j))
            base = k1_xreg(rho, j)
            for q in range(4):
                a('v_dot2_f32_bf16 v%d, v%d, v20, v%d' % (16 + rho * 2, base + q, 16 + rho * 2))
                a('v_dot2_f32_bf16 v%d, v%d, v%d, v%d' % (17 + rho * 2, base + q, base + q, 17 + rho * 2))
    stamp(a)
    for ctl in ('quad_perm:[1,0,3,2]', 'quad_perm:[2,3,0,1]', 'row_half_mirror'):
        for r in range(16, 20):
            a('v_add_f32_dpp v%d, v%d, v%d %s row_mask:0xf bank_mask:0xf' % (r, r, r, ctl))
    inv = f32hex(1.0 / 640.0)
    for tile in range(2):
        su, sq = 16 + tile * 2, 17 + tile * 2
        R, C = 28 + 4 * tile, 30 + 4 * tile
        a('v_mul_f32 v24, %s, v%d' % (inv, su))
        a('v_mul_f32 v25, %s, v%d' % (inv, sq))
        a('v_fma_f32 v25, -v24, v24, v25')
        a('v_max_f32 v25, 0, v25')
        bf16r_pair(a, 24, 25, 24, 25, 26)
        a('v_add_f32 v25, %s, v25' % f32hex(1e-5))
        a('v_cvt_pk_bf16_f32 v26, v25, v25')
        a('v_lshlrev_b32 v25, 16, v26')
        a('v_sqrt_f32 v25, v25')
        a('v_cvt_pk_bf16_f32 v26, v25, v25')
        a('v_lshlrev_b32 v25, 16, v26')
        a('v_rcp_f32 v%d, v25' % R)
        a('v_mul_f32 v%d, v24, v%d' % (C, R))
        a('v_sub_f32 v%d, 0, v%d' % (C, C))
        a('v_mov_b32 v%d, v%d' % (R + 1, R))
        a('v_mov_b32 v%d, v%d' % (C + 1, C))
    a('s_lshl_b32 s49, s36, 4')
    for rho in range(2):
        a('v_lshrrev_b32 v24, 3, v0')
        a('v_add_u32 v24, s49, v24')
        if rho:
            a('v_add_u32 v24, 8, v24')
        a('v_bfe_u32 v25, v24, 1, 3')
        a('v_xor_b32 v25, v25, v14')
        a('v_mul_u32_u24 v24, 640, v24')
        a('v_lshl_add_u32 v24, v25, 4, v24')
        a('v_add_u32 v%d, %d, v24' % (16 + rho, K1_XS))
    a('s_lshl_b32 s49, s37, 5')
    for tile in range(2):
        a('v_add_u32 v24, s49, v11')
        if tile:
            a('v_add_u32 v24, 16, v24')
        a('v_bfe_u32 v25, v24, 1, 3')
        a('v_xor_b32 v25, v25, v12')
        a('v_mul_u32_u24 v24, 640, v24')
        a('v_add_u32 v24, %d, v24' % K1_XS)
        a('v_lshl_add_u32 v%d, v25, 4, v24' % (20 + tile * 2))
        a('v_xor_b32 v25, 4, v25')
        a('v_lshl_add_u32 v%d, v25, 4, v24' % (21 + tile * 2))
    n = 0
    for half in range(2):
        for j in range(half * 5, half * 5 + 5):
            for rho in range(2):
                R, C = 28 + 4 * rho, 30 + 4 * rho
                base = k1_xreg(rho, j)
                tp = [40 + 2 * ((n + q) % 8) for q in range(4)]
                n += 4
                for q in range(4):
                    a('v_lshlrev_b32 v%d, 16, v%d' % (tp[q], base + q))
                    a('v_and_b32 v%d, 0xffff0000, v%d' % (tp[q] + 1, base + q))
                for q in range(4):
                    a('v_pk_fma_f32 %s, %s, %s, %s' % (vr(tp[q], 2), vr(tp[q], 2), vr(R, 2), vr(C, 2)))
                for q in range(4):
                    a('v_cvt_pk_bf16_f32 v%d, v%d, v%d' % (base + q, tp[q], tp[q] + 1))
                if half == 0:
                    a('ds_write_b128 v%d, %s offset:%d' % (16 + rho, vr(base, 4), (j % 5) * 128), tag='xw')
        if half == 1:
            a.wait_lg_all()
            a('s_barrier')
            for j in range(5, 10):
                for rho in range(2):
                    a('ds_write_b128 v%d, %s offset:%d' % (16 + rho, vr(k1_xreg(rho, j), 4), (j % 5) * 128), tag='xw')
        a.wait_lg_all()
        a('s_barrier')
        for sp in range(10):
            for tile in range(2):
                a('ds_read_b128 %s, v%d offset:%d' % (vr(k1_areg(tile, half * 10 + sp), 4), 20 + tile * 2 + (sp & 1), (sp >> 1) * 128),
                  tag='xr')
    a.wait_vm('RP')
    a('buffer_store_dwordx4 v[56:59], v64, s[28:31], 0 offen' + STF, tag='st')
    a('buffer_store_dwordx4 v[60:63], v65, s[28:31], 0 offen' + STF, tag='st')
    stamp(a)
    L_v = a.newlabel('k1v')
    L_g = a.newlabel('k1g')
    a('s_cmp_ge_u32 s35, 6')
    a.branch('s_cbranch_scc1 %s' % L_g)
    a('s_cmp_ge_u32 s35, 4')
    a.branch('s_cbranch_scc1 %s' % L_v)
    saved = (list(a.vm), list(a.lg))
    sn = _stamp_n[0]
    k1_body(a, 'qk')
    a.branch('s_branch %s' % L_end)
    a.label(L_v)
    a.vm, a.lg = list(saved[0]), list(saved[1])
    stamp_reset(sn)
    k1_body(a, 'v')
    a.branch('s_branch %s' % L_end)
    a.label(L_g)
    a.vm, a.lg = list(saved[0]), list(saved[1])
    stamp_reset(sn)
    k1_body(a, 'gu')
    a.label(L_end)
    a('s_endpgm')


def k1_body(a, kind):
    def issue_dma(t):
        p, st = divmod(t, 5)
        slot = t % 3
        a('s_mul_i32 s50, s46, %d' % st)
        if p:
            a('s_add_u32 s51, s50, s56')
            a('s_add_u32 s50, s50, 128')
        else:
            a('s_mov_b32 s51, s50')
        srd1, srd2 = (16, 20) if p == 0 else (20, 16)
        for i in range(3):
            a('s_add_u32 m0, s47, %d' % (slot * K1_SLOT + i * 1024))
            a('buffer_load_dwordx4 v%d, %s, s50 offen lds' % (V_DMA + i, sr(srd1, 4)), tag=('D', t))
        for i in range(2):
            a('s_add_u32 m0, s48, %d' % (slot * K1_SLOT + i * 1024))
            a('buffer_load_dwordx4 v%d, %s, s51 offen lds' % (V_DMA + 3 + i, sr(srd2, 4)), tag=('D', t))

    pending = []

    def dma_pieces(t):
        p, st = divmod(t, 5)
        slot = t % 3
        srd1, srd2 = (16, 20) if p == 0 else (20, 16)
        out = []

        def head():
            a('s_mul_i32 s50, s46, %d' % st)
            if p:
                a('s_add_u32 s51, s50, s56')
                a('s_add_u32 s50, s50, 128')
            else:
                a('s_mov_b32 s51, s50')
        for i in range(3):
            def piece(i=i):
                if i == 0:
                    head()
                a('s_add_u32 m0, s47, %d' % (slot * K1_SLOT + i * 1024))
                a('buffer_load_dwordx4 v%d, %s, s50 offen lds' % (V_DMA + i, sr(srd1, 4)), tag=('D', t))
            out.append(piece)
        for i in range(2):
            def piece(i=i):
                a('s_add_u32 m0, s48, %d' % (slot * K1_SLOT + i * 1024))
                a('buffer_load_dwordx4 v%d, %s, s51 offen lds' % (V_DMA + 3 + i, sr(srd2, 4)), tag=('D', t))
            out.append(piece)
        return out

    cur_slot = [0]
    R1MAP = [[(0, 2), (1, 3), (4, 5)], [(0, 1), (2, 4), (3, 5)]]

    def read_addrs(p):
        a('v_bfe_u32 v16, v0, 2, 2')
        a('v_and_b32 v17, 3, v0')
        a('v_lshl_add_u32 v18, v12, 3, v16')
        a('v_and_b32 v19, 1, v12')
        a('v_mul_u32_u24 v21, 192, v18')
        a('v_lshl_add_u32 v21, v17, 3, v21')
        base = cur_slot[0] * K1_SLOT
        if base:
            a('v_add_u32 v21, %d, v21' % base)
        for j in range(3):
            a('s_cmp_eq_u32 s38, 0')
            a('s_cselect_b32 s50, %d, %d' % R1MAP[p][j])
            a('v_xor_b32 v20, s50, v19')
            a('v_lshl_add_u32 v%d, v20, 5, v21' % (V_RD + j))
        a('v_lshrrev_b32 v20, 1, v16')
        a('v_lshl_or_b32 v19, v19, 1, v20')
        a('v_lshlrev_b32 v21, 7, v18')
        a('v_lshl_add_u32 v21, v17, 3, v21')
        a('v_add_u32 v21, %d, v21' % (base + K1_R2))
        a('s_lshl_b32 s49, s38, 1')
        for j in range(2):
            a('s_add_u32 s50, s49, %d' % j)
            a('v_xor_b32 v20, s50, v19')
            a('v_lshl_add_u32 v%d, v20, 5, v21' % (V_RD + 3 + j))

    def set_slot(slot):
        d = (slot - cur_slot[0]) * K1_SLOT
        if d:
            for j in range(5):
                if d > 0:
                    a('v_add_u32 v%d, %d, v%d' % (V_RD + j, d, V_RD + j))
                else:
                    a('v_subrev_u32 v%d, %d, v%d' % (V_RD + j, -d, V_RD + j))
        cur_slot[0] = slot

    def read_unit(n, j):
        ks = n % 4
        b = V_B + (n % 2) * 20 + j * 4
        if j < 3:
            o = ks * 6144
            a('ds_read_b64_tr_b16 %s, v%d offset:%d' % (vr(b, 2), V_RD + j, o), tag=('B', n, j))
            a('ds_read_b64_tr_b16 %s, v%d offset:%d' % (vr(b + 2, 2), V_RD + j, o + 768), tag=('B', n, j))
        else:
            o = ks * 4096
            a('ds_read_b64_tr_b16 %s, v%d offset:%d' % (vr(b, 2), V_RD + j, o), tag=('B', n, j))
            a('ds_read_b64_tr_b16 %s, v%d offset:%d' % (vr(b + 2, 2), V_RD + j, o + 512), tag=('B', n, j))

    def stage_enter(t):
        a.wait_lg_all()
        a.wait_vm(('D', t))
        a('s_barrier')
        if t + 2 <= 9:
            pending.extend(dma_pieces(t + 2))
        if t % 5 == 0:
            cur_slot[0] = t % 3
            read_addrs(t // 5)
        else:
            set_slot(t % 3)

    a('v_and_b32 v11, 15, v0')
    a('v_lshrrev_b32 v12, 4, v0')
    stage_enter(0)
    stamp(a)
    for j in range(5):
        read_unit(0, j)
    for n in range(40):
        p, s = divmod(n, 20)
        nxt = n + 1
        if nxt < 40 and nxt % 4 == 0:
            stage_enter(nxt // 4)
        for j in range(5):
            a.wait_lg(('B', n, j))
            b = V_B + (n % 2) * 20 + j * 4
            for tile in range(2):
                acc = vr(k1_acc(j, tile), 4)
                c = acc if s else '0'
                A = vr(k1_areg(tile, s), 4)
                B = vr(b, 4)
                if kind == 'v':
                    a('v_mfma_f32_16x16x32_bf16 %s, %s, %s, %s' % (acc, A, B, c))
                else:
                    a('v_mfma_f32_16x16x32_bf16 %s, %s, %s, %s' % (acc, B, A, c))
            if nxt < 40:
                read_unit(nxt, j)
            if pending and j in (1, 3):
                pending.pop(0)()
        if s == 19:
            stamp(a)
            k1_epilogue(a, kind, p)
            stamp(a)
    if STAMP:
        a.wait_vm_all()
        stamp(a)
    stamp_dump(a, 36)
    rt_end(a, 36, 0)


def k1_epilogue(a, kind, p):
    T = 36
    R1MAP = [[(0, 2), (1, 3), (4, 5)], [(0, 1), (2, 4), (3, 5)]]
    if p == 0:
        units = [R1MAP[0][j] for j in range(3)] + [(6, 8), (7, 9)]
    else:
        units = [(10 + R1MAP[1][j][0], 10 + R1MAP[1][j][1]) for j in range(3)] + [(16, 18), (17, 19)]
    if kind == 'qk':
        a('s_and_b32 s52, s35, 1')
        a('s_mul_i32 s52, s52, 80')
        a('s_lshr_b32 s53, s35, 1')
        a('s_mul_i32 s53, s53, %d' % WS_K)
        a('s_lshl_b32 s55, s39, 6')
        a('s_add_u32 s53, s53, s55')
        a('v_lshlrev_b32 v13, 4, v11')
        for j in range(5):
            a('s_cmp_eq_u32 s38, 0')
            a('s_cselect_b32 s54, %d, %d' % (units[j][0], units[j][1]))
            a('s_lshl_b32 s54, s54, 2')
            a('s_add_u32 s54, s54, s52')
            a('v_add_u32 v%d, s54, v12' % T)
            a('v_mul_u32_u24 v%d, 205, v%d' % (T + 1, T))
            a('v_lshrrev_b32 v%d, 10, v%d' % (T + 1, T + 1))
            a('v_mul_u32_u24 v%d, 5, v%d' % (T + 2, T + 1))
            a('v_sub_u32 v%d, v%d, v%d' % (T + 2, T, T + 2))
            a('v_and_b32 v%d, 3, v%d' % (T + 3, T + 2))
            a('v_lshrrev_b32 v%d, 2, v%d' % (T + 2, T + 2))
            a('v_lshlrev_b32 v%d, 17, v%d' % (T + 1, T + 1))
            a('v_lshl_add_u32 v%d, v%d, 8, v%d' % (T + 1, T + 3, T + 1))
            a('v_lshl_add_u32 v%d, v%d, 3, v%d' % (T + 1, T + 2, T + 1))
            a('v_add_u32 v%d, v%d, v13' % (T + 1, T + 1))
            for tile in range(2):
                ac = k1_acc(j, tile)
                d = T + 4 + tile * 2
                a('v_cvt_pk_bf16_f32 v%d, v%d, v%d' % (d, ac, ac + 1))
                a('v_cvt_pk_bf16_f32 v%d, v%d, v%d' % (d + 1, ac + 2, ac + 3))
                a('buffer_store_dwordx2 %s, v%d, s[28:31], s53 offen offset:%d%s' % (vr(d, 2), T + 1, tile * 1024, STF), tag='st')
            T = 36 + ((T - 36 + 8) % 16)
    elif kind == 'v':
        a('s_sub_u32 s52, s35, 4')
        a('s_mul_i32 s52, s52, 320')
        a('s_lshl_b32 s53, s39, 6')
        a('s_add_u32 s53, s53, %d' % WS_VT)
        a('v_lshlrev_b32 v13, 8, v12')
        for j in range(5):
            a('s_cmp_eq_u32 s38, 0')
            a('s_cselect_b32 s54, %d, %d' % (units[j][0], units[j][1]))
            a('s_lshl_b32 s54, s54, 4')
            a('s_add_u32 s54, s54, s52')
            a('v_add_u32 v%d, s54, v11' % (T + 4))
            a('v_mul_u32_u24 v%d, 3277, v%d' % (T + 5, T + 4))
            a('v_lshrrev_b32 v%d, 16, v%d' % (T + 5, T + 5))
            a('v_mul_u32_u24 v%d, 20, v%d' % (T + 6, T + 5))
            a('v_sub_u32 v%d, v%d, v%d' % (T + 6, T + 4, T + 6))
            a('v_lshrrev_b32 v%d, 4, v%d' % (T + 7, T + 6))
            a('v_and_b32 v%d, 15, v%d' % (T + 6, T + 6))
            a('v_lshlrev_b32 v%d, 17, v%d' % (T + 5, T + 5))
            a('v_lshl_add_u32 v%d, v%d, 10, v%d' % (T + 5, T + 7, T + 5))
            a('v_lshl_add_u32 v%d, v%d, 4, v%d' % (T + 5, T + 6, T + 5))
            a('v_add_u32 v%d, v%d, v13' % (T + 5, T + 5))
            d = T
            for tile in range(2):
                ac = k1_acc(j, tile)
                a('v_cvt_pk_bf16_f32 v%d, v%d, v%d' % (d + tile * 2, ac, ac + 1))
                a('v_cvt_pk_bf16_f32 v%d, v%d, v%d' % (d + tile * 2 + 1, ac + 2, ac + 3))
            a('buffer_store_dwordx4 %s, v%d, s[28:31], s53 offen%s' % (vr(d, 4), T + 5, STF), tag='st')
            T = 36 + ((T - 36 + 8) % 16)
    else:
        a('v_lshlrev_b32 v13, 4, v0')
        a('s_lshr_b32 s52, s39, 4')
        a('s_mul_i32 s52, s52, %d' % (48 * 1024))
        a('s_add_u32 s52, s52, %d' % WS_H)
        a('s_lshl_b32 s55, s36, 11')
        a('s_add_u32 s55, s55, %d' % K1_STASH)
        a('v_add_u32 v14, s55, v13')

        def silu_mul(g0, u0, dst):
            t = 36
            bf16r_pair(a, t, t + 1, g0, g0 + 1, t + 8)
            bf16r_pair(a, t + 2, t + 3, g0 + 2, g0 + 3, t + 9)
            bf16r_pair(a, t + 4, t + 5, u0, u0 + 1, t + 10)
            bf16r_pair(a, t + 6, t + 7, u0 + 2, u0 + 3, t + 11)
            for r in range(4):
                a('v_mul_f32 v%d, %s, v%d' % (t + 8 + r, f32hex(-LOG2E), t + r))
            for r in range(4):
                a('v_exp_f32 v%d, v%d' % (t + 8 + r, t + 8 + r))
            for r in range(4):
                a('v_add_f32 v%d, 1.0, v%d' % (t + 8 + r, t + 8 + r))
            for r in range(4):
                a('v_rcp_f32 v%d, v%d' % (t + 8 + r, t + 8 + r))
            for r in range(4):
                a('v_mul_f32 v%d, v%d, v%d' % (t + r, t + r, t + 8 + r))
            bf16r_pair(a, t, t + 1, t, t + 1, t + 8)
            bf16r_pair(a, t + 2, t + 3, t + 2, t + 3, t + 9)
            for r in range(4):
                a('v_mul_f32 v%d, v%d, v%d' % (t + r, t + r, t + 4 + r))
            a('v_cvt_pk_bf16_f32 v%d, v%d, v%d' % (dst, t, t + 1))
            a('v_cvt_pk_bf16_f32 v%d, v%d, v%d' % (dst + 1, t + 2, t + 3))

        def two_pairs(pair0, ga, ua, gb, ub):
            a('s_lshl_b32 s54, s38, 1')
            a('s_add_u32 s54, s54, s44')
            a('s_add_u32 s54, s54, %d' % pair0)
            a('s_lshl_b32 s54, s54, 9')
            a('s_add_u32 s54, s54, s52')
            a('s_add_u32 s55, s54, %d' % (48 * 1024))
            for tile in range(2):
                d = 48 if tile == 0 else 52
                silu_mul(k1_acc(ga, tile), k1_acc(ua, tile), d)
                silu_mul(k1_acc(gb, tile), k1_acc(ub, tile), d + 2)
                a('buffer_store_dwordx4 %s, v13, s[28:31], s%d offen%s' % (vr(d, 4), 54 + tile, STF), tag='st')

        if p == 0:
            a('ds_write_b128 v14, %s offset:0' % vr(k1_acc(2, 0), 4), tag='stash')
            a('ds_write_b128 v14, %s offset:1024' % vr(k1_acc(2, 1), 4), tag='stash')
            two_pairs(0, 0, 3, 1, 4)
        else:
            a('ds_read_b128 v[48:51], v14 offset:0', tag='stash')
            a('ds_read_b128 v[52:55], v14 offset:1024', tag='stash')
            a.wait_lg('stash')
            a('s_add_u32 s54, s44, s38')
            a('s_add_u32 s54, s54, 4')
            a('s_lshr_b32 s55, s54, 1')
            a('s_lshl_b32 s55, s55, 10')
            a('s_and_b32 s54, s54, 1')
            a('s_lshl_b32 s54, s54, 3')
            a('s_add_u32 s54, s54, s55')
            a('s_add_u32 s54, s54, s52')
            a('s_add_u32 s55, s54, %d' % (48 * 1024))
            for tile in range(2):
                d = k1_acc(0, tile)
                silu_mul(48 + tile * 4, k1_acc(0, tile), d)
                a('buffer_store_dwordx2 %s, v13, s[28:31], s%d offen%s' % (vr(d, 2), 54 + tile, STF), tag='st')
            L_skip = a.newlabel('k1skip')
            a('s_cmp_lt_u32 s45, 10')
            a.branch('s_cbranch_scc1 %s' % L_skip)
            two_pairs(6, 3, 1, 4, 2)
            a.label(L_skip)


def kernel_desc(name, vgpr, sgpr=96):
    return '''.section .rodata,"a"
.p2align 6
.amdhsa_kernel %s
  .amdhsa_next_free_vgpr %d
  .amdhsa_next_free_sgpr %d
  .amdhsa_accum_offset %d
  .amdhsa_group_segment_fixed_size 0
  .amdhsa_kernarg_size 80
  .amdhsa_user_sgpr_count 2
  .amdhsa_user_sgpr_kernarg_segment_ptr 1
  .amdhsa_system_sgpr_workgroup_id_x 1
.end_amdhsa_kernel
.text
''' % (name, vgpr, sgpr, (vgpr + 3) // 4 * 4)


HEADER = '''; Kernarg layout (80 bytes): A_x, A_wqkv, A_wo, B_x, B_w_gate, B_w_up, B_w_down, d_out, d_debug, d_ws
'''


def main():
    launches = []
    a = Asm()
    a.raw('.amdgcn_target "amdgcn-amd-amdhsa--gfx950"')
    a.raw('.text')
    which = os.environ.get('GEN_KERNELS', '123')
    descs = []
    if '1' in which:
        gen_k1(a)
        launches.append('; @launch kernel=k1_kernel grid=(256,1,1) block=(512,1,1) lds=%d' % K1_LDS)
        descs.append(kernel_desc('k1_kernel', 256))
    try:
        import gen2
        gen2.emit(a, launches, descs, which)
    except ImportError:
        pass
    out = HEADER + '\n'.join(launches) + '\n' + a.text() + ''.join(descs)
    path = sys.argv[1] if len(sys.argv) > 1 else 'parallel_sum__sliding_block__swiglu_ffn__prompt.s'
    open(path, 'w').write(out)
    print('wrote', path, len(out), 'bytes')


if __name__ == '__main__':
    import gen
    gen.main()
```

```python
from asmlib import Asm, vr, sr
from gen import (WS_Q, WS_K, WS_VT, WS_H, WS_O, WS_F, WS_WD, WS_WO, WS_END, WS_CNT, LOG2E, f32hex, make_srd, bf16r_pair,
                 kernel_desc, rt_start, rt_end, stamp, stamp_reset, stamp_dump)

G_SLOT = 20480
K2_LDS = 81920
K3_LDS = 102400


def gemm_fused(a, wg_sreg):
    NS1, NS = 12, 17
    RING = 4
    AR = 4
    V_L16 = 1
    V_RD = 2
    V_RD2 = 3
    V_B = 16
    V_ACC = 56
    V_A = 96
    stamp_reset()
    stamp(a)
    a('s_load_dwordx2 s[6:7], s[0:1], 0')
    a('s_load_dwordx2 s[8:9], s[0:1], 56')
    a('s_load_dwordx2 s[10:11], s[0:1], 64')
    a('s_load_dwordx2 s[12:13], s[0:1], 72')
    a('s_and_b32 s32, s%d, 7' % wg_sreg)
    a('s_lshr_b32 s33, s%d, 3' % wg_sreg)
    a('s_lshl_b32 s34, s32, 2')
    a('s_and_b32 s35, s33, 3')
    a('s_add_u32 s34, s34, s35')
    a('s_lshr_b32 s35, s33, 2')
    a('v_lshrrev_b32 v9, 6, v0')
    a('v_readfirstlane_b32 s36, v9')
    a('v_and_b32 v0, 63, v0')
    a('v_and_b32 v9, 15, v0')
    a('v_lshrrev_b32 v10, 4, v0')
    a('s_and_b32 s37, s36, 3')
    a('s_lshr_b32 s38, s36, 2')
    a('s_lshl_b32 s39, s34, 6')
    a('s_lshl_b32 s40, s37, 4')
    a('s_add_u32 s39, s39, s40')
    a('v_lshlrev_b32 v%d, 4, v0' % V_L16)
    a.wait_lg_all()
    make_srd(a, 28, 's12', 's13', WS_END)
    make_srd(a, 20, 's6', 's7', 2048 * 1280)
    make_srd(a, 24, 's8', 's9', 2048 * 1280)
    make_srd(a, 16, 's10', 's11', 256)
    a('s_lshr_b32 s40, s39, 4')
    a('s_lshl_b32 s42, s38, 10')
    a('s_mul_i32 s41, s40, %d' % (48 * 1024))
    a('s_add_u32 s41, s41, s42')
    a('s_add_u32 s41, s41, %d' % WS_H)
    a('s_mul_i32 s48, s40, %d' % (20 * 1024))
    a('s_add_u32 s48, s48, s42')
    a('s_add_u32 s48, s48, %d' % WS_O)
    a('s_mul_i32 s44, s36, 2560')
    a('s_mul_i32 s42, s35, %d' % (1536 * 160))
    a('s_add_u32 s42, s42, s44')
    a('s_add_u32 s42, s42, %d' % WS_WD)
    a('s_mul_i32 s49, s35, %d' % (640 * 160))
    a('s_add_u32 s49, s49, s44')
    a('s_add_u32 s49, s49, %d' % WS_WO)
    a('v_bfe_u32 v11, v0, 2, 2')
    a('v_lshl_add_u32 v11, v10, 2, v11')
    a('v_mul_u32_u24 v11, 160, v11')
    a('v_and_b32 v12, 3, v0')
    a('v_lshl_add_u32 v11, v12, 3, v11')
    a('s_mul_i32 s43, s38, 5120')
    a('v_add_u32 v%d, s43, v11' % V_RD)
    a('v_add_u32 v%d, 61440, v%d' % (V_RD2, V_RD))

    def areg(t, q):
        return V_A + ((t % AR) * 2 + q) * 4

    def issue_a(t):
        if t < NS1:
            a('s_add_u32 s45, s41, %d' % (t * 4096))
            fl = ''
        else:
            a('s_add_u32 s45, s48, %d' % ((t - NS1) * 4096))
            fl = ' sc1'
        for q in range(2):
            a('buffer_load_dwordx4 %s, v%d, s[28:31], s45 offen offset:%d%s' % (vr(areg(t, q), 4), V_L16, q * 2048, fl),
              tag=('A', t))

    def issue_b(t):
        slot = t % RING
        if t < NS1:
            a('s_add_u32 s46, s42, %d' % (t * G_SLOT))
        else:
            a('s_add_u32 s46, s49, %d' % ((t - NS1) * G_SLOT))
        a('s_add_u32 m0, s44, %d' % (slot * G_SLOT))
        for i in range(3):
            if i == 2:
                a('s_mov_b64 exec, 0xffffffff')
            a('buffer_load_dwordx4 v%d, s[28:31], s46 offen offset:%d lds' % (V_L16, i * 1024), tag=('D', t))
            if i == 2:
                a('s_mov_b64 exec, -1')

    def poll():
        L = a.newlabel('poll')
        Lskip = a.newlabel('pollskip')
        a('s_cmp_lg_u32 s36, 0')
        a.branch('s_cbranch_scc1 %s' % Lskip)
        a('s_lshr_b32 s50, s34, 2')
        a('s_lshl_b32 s50, s50, 8')
        a('s_add_u32 s50, s50, %d' % WS_CNT)
        a('v_mov_b32 v12, 0')
        a.label(L)
        sv = list(a.vm)
        a('buffer_load_dword v11, v12, s[28:31], s50 offen sc1')
        a('s_waitcnt vmcnt(0)')
        a.vm = sv
        a('v_readfirstlane_b32 s51, v11')
        a('s_cmp_ge_u32 s51, 32')
        Ld = a.newlabel('polled')
        a.branch('s_cbranch_scc1 %s' % Ld)
        a('s_sleep 32')
        a.branch('s_branch %s' % L)
        a.label(Ld)
        a.label(Lskip)
        a('s_barrier')

    for t in range(RING):
        issue_a(t)
        issue_b(t)

    def read_unit(n, j):
        t, q = divmod(n, 2)
        b = V_B + (n % 2) * 20 + j * 4
        o = (t % RING) * G_SLOT + q * 64 * 160 + j * 32
        rd = V_RD
        if o >= 61440:
            o -= 61440
            rd = V_RD2
        a('ds_read_b64_tr_b16 %s, v%d offset:%d' % (vr(b, 2), rd, o), tag=('B', n, j))
        a('ds_read_b64_tr_b16 %s, v%d offset:%d' % (vr(b + 2, 2), rd, o + 16 * 160), tag=('B', n, j))

    def stage_enter(t):
        a.wait_lg_all()
        a.wait_vm(('D', t))
        a('s_barrier')
        if t >= 1 and t + RING - 1 < NS:
            issue_b(t + RING - 1)

    nk = NS * 2
    stamp(a)
    stage_enter(0)
    stamp(a)
    for j in range(5):
        read_unit(0, j)
    for n in range(nk):
        nxt = n + 1
        t, q = divmod(n, 2)
        if nxt < nk and nxt % 2 == 0:
            stage_enter(nxt // 2)
            if nxt // 2 in (4, 8, 12):
                stamp(a)
        if q == 0:
            if t >= 1 and t + RING - 1 < NS:
                ta = t + RING - 1
                if ta < NS1:
                    issue_a(ta)
                elif t == NS1 - 1:
                    poll()
                    for tt in range(NS1, NS1 + RING - 1):
                        issue_a(tt)
                elif t >= NS1:
                    issue_a(ta)
            a.wait_vm(('A', t))
        accb = V_ACC + (20 if t >= NS1 else 0)
        first = (n == 0 or n == 2 * NS1)
        for j in range(5):
            a.wait_lg(('B', n, j))
            b = V_B + (n % 2) * 20 + j * 4
            acc = vr(accb + j * 4, 4)
            a('v_mfma_f32_16x16x32_bf16 %s, %s, %s, %s' % (acc, vr(b, 4), vr(areg(t, q), 4), '0' if first else acc))
            if nxt < nk:
                read_unit(nxt, j)
    stamp(a)
    L_hi = a.newlabel('g2hi')
    L_done = a.newlabel('g2done')
    a('s_barrier')
    a('s_mul_i32 s45, s37, 10240')
    a('v_add_u32 v4, s45, v%d' % V_L16)
    a('s_cmp_eq_u32 s38, 0')
    a.branch('s_cbranch_scc1 %s' % L_hi)
    for j in range(10):
        a('ds_write_b128 v4, %s offset:%d' % (vr(V_ACC + j * 4, 4), j * 1024), tag='ex')
    a.wait_lg_all()
    a('s_barrier')
    a.branch('s_branch %s' % L_done)
    a.label(L_hi)
    for r in range(3):
        a('v_add_u32 v11, %d, v0' % (64 * r))
        a('v_mul_u32_u24 v12, 52429, v11')
        a('v_lshrrev_b32 v12, 19, v12')
        a('v_mul_u32_u24 v13, 10, v12')
        a('v_sub_u32 v13, v11, v13')
        a('v_add_u32 v14, s39, v12')
        a('v_mul_u32_u24 v14, 1280, v14')
        a('v_lshl_add_u32 v14, v13, 4, v14')
        a('s_mul_i32 s46, s35, 160')
        a('v_add_u32 v%d, s46, v14' % (5 + r))
        if r == 2:
            a('v_mov_b32 v14, 0x40000000')
            a('v_cmp_gt_u32 vcc, 32, v0')
            a('v_cndmask_b32 v7, v14, v7, vcc')
    X = 96
    for r in range(3):
        a('buffer_load_dwordx4 %s, v%d, s[20:23], 0 offen' % (vr(X + r * 4, 4), 5 + r), tag='X')
    a('s_barrier')
    for j in range(10):
        a('ds_read_b128 %s, v4 offset:%d' % (vr(V_B + j * 4, 4), j * 1024), tag='ex')
    a.wait_lg_all()
    a('s_mul_i32 s45, s37, 5120')
    a('s_add_u32 s45, s45, 40960')
    a('v_mul_u32_u24 v11, 160, v9')
    a('v_lshl_add_u32 v11, v10, 3, v11')
    a('v_add_u32 v11, s45, v11')
    for j in range(10):
        ac = V_ACC + j * 4
        for r in range(4):
            a('v_add_f32 v%d, v%d, v%d' % (ac + r, ac + r, V_B + j * 4 + r))
        d = 108 + (j % 4) * 2
        a('v_cvt_pk_bf16_f32 v%d, v%d, v%d' % (d, ac, ac + 1))
        a('v_cvt_pk_bf16_f32 v%d, v%d, v%d' % (d + 1, ac + 2, ac + 3))
        a('ds_write_b64 v11, %s offset:%d' % (vr(d, 2), (j // 5) * 2560 + (j % 5) * 32), tag='tw')
    a.wait_lg_all()
    a('v_add_u32 v12, s45, v%d' % V_L16)
    for r in range(3):
        a('ds_read_b128 %s, v12 offset:%d' % (vr(16 + r * 4, 4), r * 1024), tag='tr')
        a('ds_read_b128 %s, v12 offset:%d' % (vr(28 + r * 4, 4), 2560 + r * 1024), tag='tr')
    a.wait_lg_all()
    a.wait_vm('X')
    for r in range(3):
        for q in range(4):
            fv, av, xv = 16 + r * 4 + q, 28 + r * 4 + q, X + r * 4 + q
            t = 56 + (q % 2) * 8
            a('v_lshlrev_b32 v%d, 16, v%d' % (t, av))
            a('v_and_b32 v%d, 0xffff0000, v%d' % (t + 1, av))
            a('v_lshlrev_b32 v%d, 16, v%d' % (t + 2, xv))
            a('v_and_b32 v%d, 0xffff0000, v%d' % (t + 3, xv))
            a('v_add_f32 v%d, v%d, v%d' % (t, t, t + 2))
            a('v_add_f32 v%d, v%d, v%d' % (t + 1, t + 1, t + 3))
            bf16r_pair(a, t, t + 1, t, t + 1, t + 4)
            a('v_lshlrev_b32 v%d, 16, v%d' % (t + 2, fv))
            a('v_and_b32 v%d, 0xffff0000, v%d' % (t + 3, fv))
            a('v_add_f32 v%d, v%d, v%d' % (t, t, t + 2))
            a('v_add_f32 v%d, v%d, v%d' % (t + 1, t + 1, t + 3))
            a('v_cvt_pk_bf16_f32 v%d, v%d, v%d' % (av, t, t + 1))
        a('buffer_store_dwordx4 %s, v%d, s[24:27], 0 offen' % (vr(28 + r * 4, 4), 5 + r), tag='st')
    a.label(L_done)


def attention(a, wg_sreg):
    V_Q = 16
    V_O = 20
    V_S = 28
    V_KV = 100

    def S(t):
        return V_S + t * 4

    stamp_reset()
    stamp(a)
    a('s_setprio 3')
    a('s_load_dwordx2 s[12:13], s[0:1], 72')
    a('s_load_dwordx2 s[10:11], s[0:1], 64')
    a('s_and_b32 s32, s%d, 7' % wg_sreg)
    a('s_lshr_b32 s33, s%d, 3' % wg_sreg)
    a('s_lshl_b32 s34, s32, 2')
    a('s_and_b32 s35, s33, 3')
    a('s_add_u32 s34, s34, s35')
    a('s_lshr_b32 s35, s33, 2')
    a('v_lshrrev_b32 v1, 6, v0')
    a('v_readfirstlane_b32 s36, v1')
    a('v_and_b32 v0, 63, v0')
    a('v_and_b32 v1, 15, v0')
    a('v_lshrrev_b32 v2, 4, v0')
    a('v_lshlrev_b32 v3, 4, v0')
    a('s_lshl_b32 s37, s35, 3')
    a('s_add_u32 s37, s37, s36')
    a('s_lshl_b32 s37, s37, 5')
    a.wait_lg_all()
    a('s_lshl_b32 s38, s34, 17')
    for d, base in ((16, WS_Q), (20, WS_K), (24, WS_VT)):
        a('s_add_u32 s39, s38, %d' % base)
        a('s_add_u32 s%d, s12, s39' % d)
        a('s_addc_u32 s%d, s13, 0' % (d + 1))
        a('s_and_b32 s%d, s%d, 0xffff' % (d + 1, d + 1))
        a('s_mov_b32 s%d, 131072' % (d + 2))
        a('s_mov_b32 s%d, 0x00020000' % (d + 3))
    make_srd(a, 28, 's12', 's13', WS_END)
    a('s_lshl_b32 s43, s35, 14')
    a('s_lshl_b32 s44, s36, 11')
    a('s_add_u32 s45, s43, s44')
    a('v_add_u32 v10, s45, v3')
    a('v_add_u32 v11, 1024, v10')
    a('s_mov_b32 m0, s44')
    a('buffer_load_dwordx4 v10, s[16:19], 0 offen lds', tag='stg')
    a('s_add_u32 m0, s44, 1024')
    a('buffer_load_dwordx4 v11, s[16:19], 0 offen lds', tag='stg')
    a('s_lshl_b32 s44, s36, 12')
    a('s_sub_u32 s45, s43, %d' % (256 * 64))
    a('s_add_u32 s45, s45, s44')
    a('v_add_u32 v10, s45, v3')
    for i in range(4):
        a('v_add_u32 v11, %d, v10' % (i * 1024))
        a('s_add_u32 m0, s44, %d' % (16384 + i * 1024))
        a('buffer_load_dwordx4 v11, s[20:23], 0 offen lds', tag='stg')
        a('s_add_u32 m0, s44, %d' % (49152 + i * 1024))
        a('buffer_load_dwordx4 v11, s[24:27], 0 offen lds', tag='stg')
    a('v_lshlrev_b32 v4, 2, v2')
    for r in range(4):
        a('v_add_u32 v5, %d, v4' % r)
        a('v_cmp_gt_u32 s[%d:%d], v5, v1' % (48 + 2 * r, 49 + 2 * r))
        a('v_cmp_le_u32 s[%d:%d], v5, v1' % (56 + 2 * r, 57 + 2 * r))
    a('v_mov_b32 v15, %s' % f32hex(-1e30))
    a('v_cmp_eq_u32 s[66:67], 4, v1')
    a('v_mov_b32 v14, 0x3f803f80')
    a('v_cmp_eq_u32 s[64:65], 0, v2')
    a('v_xor_b32 v5, 16, v0')
    a('v_lshlrev_b32 v5, 2, v5')
    a('v_xor_b32 v6, 32, v0')
    a('v_lshlrev_b32 v6, 2, v6')
    a('v_add_u32 v7, 16, v1')
    a('v_lshlrev_b32 v7, 2, v7')
    a('s_mul_i32 s39, s34, 5')
    a('v_add_u32 v8, s39, v2')

    def gpos(dst, G, t1, t2):
        a('v_lshrrev_b32 v%d, 3, v%d' % (t1, G))
        a('v_lshlrev_b32 v%d, 10, v%d' % (t1, t1))
        a('v_and_b32 v%d, 3, v%d' % (t2, G))
        a('v_lshl_add_u32 v%d, v%d, 8, v%d' % (t1, t2, t1))
        a('v_bfe_u32 v%d, v%d, 2, 1' % (t2, G))
        a('v_lshl_add_u32 v%d, v%d, 3, v%d' % (dst, t2, t1))
    gpos(8, 8, 10, 11)
    a('s_add_u32 s39, s39, 4')
    a('v_mov_b32 v9, s39')
    gpos(9, 9, 10, 11)
    a('v_mov_b32 v10, 0x40000000')
    a('v_cndmask_b32 v9, v10, v9, s[64:65]')
    a('v_lshlrev_b32 v10, 4, v1')
    a('v_add_u32 v8, v8, v10')
    a('v_add_u32 v9, v9, v10')
    a('s_mov_b32 s40, %s' % f32hex(20 ** -0.5 * LOG2E))
    a('s_lshl_b32 s46, s36, 11')
    a('v_add_u32 v4, s46, v3')
    a('v_add_u32 v2, 49152, v4')
    a('s_mul_i32 s43, s37, 1280')
    a('s_add_u32 s43, s43, %d' % WS_O)
    a('s_sub_u32 s47, 256, s37')
    a('s_lshr_b32 s47, s47, 4')
    stamp(a)
    a.wait_vm_all()
    a('s_barrier')
    stamp(a)

    for qt in range(2):
        tiles = list(range(qt, 17 + qt))
        a('ds_read_b128 %s, v4 offset:%d' % (vr(V_Q, 4), qt * 1024), tag='Q')
        NB = 6
        for k, t in enumerate(tiles[:NB - 1]):
            a('ds_read_b128 %s, v4 offset:%d' % (vr(V_KV + (k % NB) * 4, 4), 16384 + t * 1024), tag=('K', t))
        a.wait_lg('Q')
        for r in (2, 3):
            a('v_cndmask_b32 v%d, 0, v%d, s[64:65]' % (V_Q + r, V_Q + r))
        for k, t in enumerate(tiles):
            kb = V_KV + (k % NB) * 4
            a.wait_lg(('K', t))
            for r in (2, 3):
                a('v_cndmask_b32 v%d, 0, v%d, s[64:65]' % (kb + r, kb + r))
            a('v_mfma_f32_16x16x32_bf16 %s, %s, %s, 0' % (vr(S(t), 4), vr(kb, 4), vr(V_Q, 4)))
            k2 = k + NB - 1
            if k2 < len(tiles):
                a('ds_read_b128 %s, v4 offset:%d' % (vr(V_KV + (k2 % NB) * 4, 4), 16384 + tiles[k2] * 1024), tag=('K', tiles[k2]))
        for b in range(2):
            for dt in range(2):
                a('ds_read_b128 %s, v2 offset:%d' % (vr(V_KV + (b % 3) * 8 + dt * 4, 4), b * 2048 + dt * 1024), tag=('V', b))
        tf, tl = qt, 16 + qt
        for r in range(4):
            a('v_cndmask_b32 v%d, v15, v%d, s[%d:%d]' % (S(tf) + r, S(tf) + r, 48 + 2 * r, 49 + 2 * r))
            a('v_cndmask_b32 v%d, v15, v%d, s[%d:%d]' % (S(tl) + r, S(tl) + r, 56 + 2 * r, 57 + 2 * r))
        L_noneg = a.newlabel('noneg')
        a('s_cmp_ge_u32 s37, 256')
        a.branch('s_cbranch_scc1 %s' % L_noneg)
        for t in range(qt, 16):
            a('s_cmp_le_u32 s47, %d' % t)
            a.branch('s_cbranch_scc1 %s' % L_noneg)
            for r in range(4):
                a('v_mov_b32 v%d, v15' % (S(t) + r))
        a.label(L_noneg)
        regs = [S(t) + r for t in tiles for r in range(4)]
        a('v_max3_f32 v10, v%d, v%d, v%d' % (regs[0], regs[1], regs[2]))
        a('v_max3_f32 v11, v%d, v%d, v%d' % (regs[3], regs[4], regs[5]))
        k = 6
        tog = 0
        while k + 1 < len(regs):
            mm = 10 + tog
            a('v_max3_f32 v%d, v%d, v%d, v%d' % (mm, mm, regs[k], regs[k + 1]))
            k += 2
            tog ^= 1
        if k < len(regs):
            a('v_max_f32 v10, v10, v%d' % regs[k])
        a('v_max_f32 v10, v10, v11')
        for addr in (5, 6):
            a('ds_bpermute_b32 v11, v%d, v10' % addr, tag='bp')
            a.wait_lg('bp')
            a('v_max_f32 v10, v10, v11')
        a('v_mul_f32 v10, s40, v10')
        for b in range(9):
            for t in (2 * b, 2 * b + 1):
                if t not in tiles:
                    continue
                for r in range(4):
                    a('v_fma_f32 v%d, v%d, s40, -v10' % (S(t) + r, S(t) + r))
                for r in range(4):
                    a('v_exp_f32 v%d, v%d' % (S(t) + r, S(t) + r))
            p = S(2 * b)
            q = S(2 * b + 1)
            if 2 * b not in tiles:
                a('v_cvt_pk_bf16_f32 v%d, v%d, v%d' % (p + 2, q, q + 1))
                a('v_cvt_pk_bf16_f32 v%d, v%d, v%d' % (p + 3, q + 2, q + 3))
                a('v_mov_b32 v%d, 0' % p)
                a('v_mov_b32 v%d, 0' % (p + 1))
            else:
                a('v_cvt_pk_bf16_f32 v%d, v%d, v%d' % (p, p, p + 1))
                a('v_cvt_pk_bf16_f32 v%d, v%d, v%d' % (p + 1, p + 2, p + 3))
                if 2 * b + 1 not in tiles:
                    a('v_mov_b32 v%d, 0' % (p + 2))
                    a('v_mov_b32 v%d, 0' % (p + 3))
                else:
                    a('v_cvt_pk_bf16_f32 v%d, v%d, v%d' % (p + 2, q, q + 1))
                    a('v_cvt_pk_bf16_f32 v%d, v%d, v%d' % (p + 3, q + 2, q + 3))
        for b in range(9):
            vb = V_KV + (b % 3) * 8
            a.wait_lg(('V', b))
            for r in range(4):
                a('v_cndmask_b32 v%d, v%d, v14, s[66:67]' % (vb + 4 + r, vb + 4 + r))
            for dt in range(2):
                o = vr(V_O + dt * 4, 4)
                a('v_mfma_f32_16x16x32_bf16 %s, %s, %s, %s' % (o, vr(vb + dt * 4, 4), vr(S(2 * b), 4), o if b else '0'))
            if b + 2 < 9:
                for dt in range(2):
                    a('ds_read_b128 %s, v2 offset:%d' % (vr(V_KV + ((b + 2) % 3) * 8 + dt * 4, 4), (b + 2) * 2048 + dt * 1024),
                      tag=('V', b + 2))
        a('ds_bpermute_b32 v10, v7, v%d' % (V_O + 4), tag='bp')
        a.wait_lg_all()
        a('v_rcp_f32 v10, v10')
        for dt in range(2):
            o = V_O + dt * 4
            for r in range(4):
                a('v_mul_f32 v%d, v%d, v10' % (o + r, o + r))
            a('v_cvt_pk_bf16_f32 v%d, v%d, v%d' % (12, o, o + 1) if dt == 0 else 'v_cvt_pk_bf16_f32 v%d, v%d, v%d' % (o, o, o + 1))
            if dt == 0:
                a('v_cvt_pk_bf16_f32 v13, v%d, v%d' % (o + 2, o + 3))
                a('buffer_store_dwordx2 v[12:13], v8, s[28:31], s43 offen sc1', tag='st')
            else:
                a('v_cvt_pk_bf16_f32 v%d, v%d, v%d' % (o + 1, o + 2, o + 3))
                a('buffer_store_dwordx2 %s, v9, s[28:31], s43 offen sc1' % vr(o, 2), tag='st')
        if qt == 0:
            a('s_add_u32 s43, s43, %d' % (20 * 1024))
            stamp(a)
    stamp(a)
    a.wait_vm_all()
    stamp(a)
    a('s_barrier')
    stamp(a)
    L_np = a.newlabel('nopub')
    a('s_cmp_lg_u32 s36, 0')
    a.branch('s_cbranch_scc1 %s' % L_np)
    a('s_lshl_b32 s44, s35, 8')
    a('s_add_u32 s44, s44, %d' % WS_CNT)
    a('v_mov_b32 v10, 1')
    a('v_mov_b32 v11, 0')
    a('s_mov_b64 exec, 1')
    a('buffer_atomic_add v10, v11, s[28:31], s44 offen sc1')
    a('s_mov_b64 exec, -1')
    a.label(L_np)


def emit(a, launches, descs, which):
    if '2' in which:
        name = 'k2_kernel'
        a.raw('.globl %s' % name)
        a.raw('.p2align 8')
        a.raw('.type %s,@function' % name)
        a.raw('%s:' % name)
        a.hist = []
        a.vm = []
        a.lg = []
        a('s_cmp_ge_u32 s2, 512')
        a.branch('s_cbranch_scc1 .k2_end')
        rt_start(a)
        a('s_cmp_ge_u32 s2, 256')
        a.branch('s_cbranch_scc1 .k2_gemm')
        attention(a, 2)
        a.wait_vm_all()
        stamp(a)
        stamp_dump(a, 36)
        rt_end(a, 36, 1)
        a.branch('s_branch .k2_end')
        a.label('.k2_gemm')
        a.vm = []
        a.lg = []
        a('s_sub_u32 s3, s2, 256')
        gemm_fused(a, 3)
        a.wait_vm_all()
        stamp(a)
        stamp_dump(a, 36)
        rt_end(a, 36, 1)
        a.label('.k2_end')
        a('s_endpgm')
        launches.append('; @launch kernel=k2_kernel grid=(512,1,1) block=(512,1,1) lds=%d' % K2_LDS)
        descs.append(kernel_desc('k2_kernel', 128))
```

```python
import sys
import os
sys.path.insert(0, os.path.dirname(os.path.abspath(__file__)))
from asmlib import Asm, vr, sr

WS_Q = 0
WS_K = 0x400000
WS_VT = 0x800000
WS_H = 0xC00000
WS_O = 0x1200000
WS_F = 0x1480000
WS_WD = 0x1700000
WS_WO = 0x18E0000
WS_CNT = 0x19B0000
WS_END = 0x19B1000

LOG2E = 1.4426950408889634
STF = os.environ.get('GEN_STF', '')


def f32hex(x):
    import struct
    return '0x%08x' % struct.unpack('<I', struct.pack('<f', x))[0]


def make_srd(a, d, base_lo, base_hi, nrec):
    a('s_mov_b32 s%d, %s' % (d, base_lo))
    a('s_and_b32 s%d, %s, 0xffff' % (d + 1, base_hi))
    a('s_mov_b32 s%d, %s' % (d + 2, nrec if isinstance(nrec, str) else '0x%x' % nrec))
    a('s_mov_b32 s%d, 0x00020000' % (d + 3))


STAMP = os.environ.get('GEN_STAMP', '') != ''
_stamp_n = [0]


def stamp(a):
    if not STAMP:
        return
    i = _stamp_n[0]
    _stamp_n[0] += 1
    a.wait_lg_all()
    a('s_memtime s[%d:%d]' % (70 + 2 * i, 71 + 2 * i))
    a.wait_lg_all()


def stamp_reset(n=0):
    _stamp_n[0] = n


def rt_start(a):
    if not STAMP:
        return
    a('s_memrealtime s[92:93]')
    a('s_memtime s[90:91]')
    a.wait_lg_all()


def rt_end(a, wave_sreg, kidx):
    if not STAMP:
        return
    L = a.newlabel('nort')
    a('s_cmp_lg_u32 s%d, 0' % wave_sreg)
    a.branch('s_cbranch_scc1 %s' % L)
    a.wait_vm_all()
    a('s_memrealtime s[94:95]')
    a('s_memtime s[88:89]')
    a.wait_lg_all()
    a('s_mov_b32 s64, s12')
    a('s_and_b32 s65, s13, 0xffff')
    a('s_mov_b32 s66, 0x%x' % (WS_END + 65536))
    a('s_mov_b32 s67, 0x00020000')
    a('s_lshl_b32 s68, s2, 4')
    a('s_add_u32 s68, s68, %d' % (WS_END + kidx * 16384))
    a('v_mov_b32 v1, 0')
    a('v_mov_b32 v2, s92')
    a('v_mov_b32 v3, s94')
    a('s_sub_u32 s69, s88, s90')
    a('v_mov_b32 v4, s69')
    a('s_getreg_b32 s69, hwreg(HW_REG_XCC_ID)')
    a('v_mov_b32 v5, s69')
    a('buffer_store_dwordx4 v[2:5], v1, s[64:67], s68 offen')
    a.wait_vm_all()
    a.label(L)


def stamp_dump(a, wave_sreg):
    if not STAMP:
        return
    if os.environ.get('GEN_STAMP') == 'w':
        L = a.newlabel('nodump')
        a('s_cmp_lg_u32 s2, 0')
        a.branch('s_cbranch_scc1 %s' % L)
        a('s_load_dwordx2 s[64:65], s[0:1], 64')
        a.wait_lg_all()
        a('s_and_b32 s65, s65, 0xffff')
        a('s_mov_b32 s66, 256')
        a('s_mov_b32 s67, 0x00020000')
        a('s_lshl_b32 s68, s%d, 5' % wave_sreg)
        a('v_mov_b32 v1, 0')
        for i in range(min(8, _stamp_n[0])):
            a('v_mov_b32 v2, s%d' % (70 + 2 * i))
            a('buffer_store_dword v2, v1, s[64:67], s68 offen offset:%d' % (4 * i))
        a.wait_vm_all()
        a.label(L)
        return
    L = a.newlabel('nodump')
    a('s_cmp_lg_u32 s%d, 0' % wave_sreg)
    a.branch('s_cbranch_scc1 %s' % L)
    a('s_mov_b32 s68, 0')
    L2 = a.newlabel('dump')
    a('s_cmp_eq_u32 s2, 0')
    a.branch('s_cbranch_scc1 %s' % L2)
    a('s_mov_b32 s68, 64')
    a('s_cmp_eq_u32 s2, 101')
    a.branch('s_cbranch_scc1 %s' % L2)
    a('s_mov_b32 s68, 128')
    a('s_cmp_eq_u32 s2, 300')
    a.branch('s_cbranch_scc0 %s' % L)
    a.label(L2)
    a('s_load_dwordx2 s[64:65], s[0:1], 64')
    a.wait_lg_all()
    a('s_and_b32 s65, s65, 0xffff')
    a('s_mov_b32 s66, 256')
    a('s_mov_b32 s67, 0x00020000')
    a('v_mov_b32 v1, 0')
    for i in range(_stamp_n[0]):
        a('s_sub_u32 s69, s%d, s70' % (70 + 2 * i))
        a('v_mov_b32 v2, s69')
        a('buffer_store_dword v2, v1, s[64:67], s68 offen offset:%d' % (4 * i))
    a.wait_vm_all()
    a.label(L)


def bf16r_pair(a, dst_lo, dst_hi, src_lo, src_hi, tmp):
    a('v_cvt_pk_bf16_f32 v%d, v%d, v%d' % (tmp, src_lo, src_hi))
    a('v_lshlrev_b32 v%d, 16, v%d' % (dst_lo, tmp))
    a('v_and_b32 v%d, 0xffff0000, v%d' % (dst_hi, tmp))


K1_SLOT = 40960
K1_R2 = 24576
K1_STASH = 3 * K1_SLOT
K1_XS = 81920
K1_LDS = 163840

V_DMA = 1
V_RD = 6
V_T = 11
V_B = 16
V_ACC = 56
V_A = 96


def k1_areg(tile, s):
    return V_A + (tile * 20 + s) * 4


def k1_xreg(rho, j):
    return (216 if j < 5 else 136) + (rho * 5 + (j % 5)) * 4


def k1_acc(j, tile):
    return V_ACC + (j * 2 + tile) * 4


def gen_k1(a):
    name = 'k1_kernel'
    a.raw('.globl %s' % name)
    a.raw('.p2align 8')
    a.raw('.type %s,@function' % name)
    a.raw('%s:' % name)
    L_end = '.k1_end'
    a('s_cmp_ge_u32 s2, 256')
    a.branch('s_cbranch_scc1 %s' % L_end)
    stamp_reset()
    rt_start(a)
    stamp(a)
    a('s_load_dwordx4 s[4:7], s[0:1], 0')
    a('s_load_dwordx4 s[8:11], s[0:1], 32')
    a('s_load_dwordx2 s[12:13], s[0:1], 72')
    a('s_load_dwordx2 s[64:65], s[0:1], 16')
    a('s_load_dwordx2 s[66:67], s[0:1], 48')
    a('s_and_b32 s32, s2, 7')
    a('s_lshr_b32 s33, s2, 3')
    a('s_and_b32 s34, s32, 1')
    a('s_lshl_b32 s34, s34, 3')
    a('s_and_b32 s35, s33, 7')
    a('s_add_u32 s34, s34, s35')
    a('s_lshr_b32 s35, s32, 1')
    a('s_lshl_b32 s35, s35, 2')
    a('s_lshr_b32 s36, s33, 3')
    a('s_add_u32 s35, s35, s36')
    a('v_lshrrev_b32 v11, 6, v0')
    a('v_readfirstlane_b32 s36, v11')
    a('v_and_b32 v0, 63, v0')
    a('s_and_b32 s37, s36, 3')
    a('s_lshr_b32 s38, s36, 2')
    a('s_lshl_b32 s39, s34, 7')
    a('s_lshl_b32 s40, s37, 5')
    a('s_add_u32 s39, s39, s40')
    a.wait_lg_all()
    make_srd(a, 24, 's4', 's5', 2048 * 1280)
    make_srd(a, 28, 's12', 's13', WS_END)
    a('v_and_b32 v11, 15, v0')
    a('v_lshrrev_b32 v12, 4, v0')
    a('v_lshrrev_b32 v13, 3, v0')
    a('v_mul_u32_u24 v13, 1280, v13')
    a('v_and_b32 v14, 7, v0')
    a('v_lshl_add_u32 v13, v14, 4, v13')
    a('s_lshl_b32 s40, s34, 7')
    a('s_lshl_b32 s41, s36, 4')
    a('s_add_u32 s40, s40, s41')
    a('s_mul_i32 s40, s40, 1280')
    a('s_add_u32 s41, s40, 10240')
    for j in range(10):
        for rho in range(2):
            a('buffer_load_dwordx4 %s, v13, s[24:27], s%d offen offset:%d' % (vr(k1_xreg(rho, j), 4), 40 + rho, j * 128),
              tag=('X', rho, j))
    a('s_barrier')
    L_gu = a.newlabel('k1gu')
    L_par = a.newlabel('k1par')
    a('s_cmp_ge_u32 s35, 6')
    a.branch('s_cbranch_scc1 %s' % L_gu)
    a('s_movk_i32 s42, 3840')
    a('s_mul_i32 s43, s35, 640')
    a('s_add_u32 s16, s6, s43')
    a('s_addc_u32 s17, s7, 0')
    a('s_sub_u32 s18, %d, s43' % (640 * 3840))
    a('s_add_u32 s43, s43, 192')
    a('s_movk_i32 s56, 512')
    a('s_add_u32 s20, s6, s43')
    a('s_addc_u32 s21, s7, 0')
    a('s_sub_u32 s22, %d, s43' % (640 * 3840))
    a('s_mov_b32 s44, 0')
    a('s_mov_b32 s45, 10')
    a.branch('s_branch %s' % L_par)
    a.label(L_gu)
    a('s_movk_i32 s42, 3072')
    a('s_sub_u32 s43, s35, 6')
    a('s_mul_i32 s44, s43, 10')
    a('s_movk_i32 s56, 192')
    a('s_cmp_lt_u32 s43, 9')
    a('s_cselect_b32 s45, 10, 6')
    a('s_lshl_b32 s43, s44, 5')
    a('s_add_u32 s16, s8, s43')
    a('s_addc_u32 s17, s9, 0')
    a('s_sub_u32 s18, %d, s43' % (640 * 3072))
    a('s_add_u32 s20, s10, s43')
    a('s_addc_u32 s21, s11, 0')
    a('s_sub_u32 s22, %d, s43' % (640 * 3072))
    a.label(L_par)
    a('s_and_b32 s17, s17, 0xffff')
    a('s_and_b32 s21, s21, 0xffff')
    a('s_mov_b32 s19, 0x00020000')
    a('s_mov_b32 s23, 0x00020000')
    a('s_lshl_b32 s46, s42, 7')
    a('s_mul_i32 s47, s36, 3072')
    a('s_lshl_b32 s48, s36, 11')
    a('s_add_u32 s48, s48, %d' % K1_R2)
    a('s_mul_i32 s49, s36, 192')
    for i in range(3):
        a('v_add_u32 v16, s49, v0')
        if i:
            a('v_add_u32 v16, %d, v16' % (64 * i))
        a('v_mul_u32_u24 v17, 43691, v16')
        a('v_lshrrev_b32 v17, 19, v17')
        a('v_mul_u32_u24 v18, 12, v17')
        a('v_sub_u32 v18, v16, v18')
        a('v_lshrrev_b32 v19, 1, v18')
        a('v_bfe_u32 v20, v17, 3, 1')
        a('v_xor_b32 v19, v19, v20')
        a('v_and_b32 v18, 1, v18')
        a('v_lshlrev_b32 v18, 4, v18')
        a('v_lshl_add_u32 v18, v19, 5, v18')
        a('v_mul_lo_u32 v17, v17, s42')
        a('v_add_u32 v%d, v17, v18' % (V_DMA + i))
    a('s_lshl_b32 s49, s36, 7')
    for i in range(2):
        a('v_add_u32 v16, s49, v0')
        if i:
            a('v_add_u32 v16, %d, v16' % (64 * i))
        a('v_lshrrev_b32 v17, 3, v16')
        a('v_and_b32 v18, 7, v16')
        a('v_lshrrev_b32 v19, 1, v18')
        a('v_bfe_u32 v20, v17, 1, 1')
        a('v_bfe_u32 v21, v17, 3, 1')
        a('v_lshl_or_b32 v20, v21, 1, v20')
        a('v_xor_b32 v19, v19, v20')
        a('v_and_b32 v18, 1, v18')
        a('v_lshlrev_b32 v18, 4, v18')
        a('v_lshl_add_u32 v18, v19, 5, v18')
        a('v_mul_lo_u32 v17, v17, s42')
        a('v_add_u32 v%d, v17, v18' % (V_DMA + 3 + i))

    def issue_dma(t):
        p, st = divmod(t, 5)
        slot = t % 3
        a('s_mul_i32 s50, s46, %d' % st)
        if p:
            a('s_add_u32 s51, s50, s56')
            a('s_add_u32 s50, s50, 128')
        else:
            a('s_mov_b32 s51, s50')
        srd1, srd2 = (16, 20) if p == 0 else (20, 16)
        for i in range(3):
            a('s_add_u32 m0, s47, %d' % (slot * K1_SLOT + i * 1024))
            a('buffer_load_dwordx4 v%d, %s, s50 offen lds' % (V_DMA + i, sr(srd1, 4)), tag=('D', t))
        for i in range(2):
            a('s_add_u32 m0, s48, %d' % (slot * K1_SLOT + i * 1024))
            a('buffer_load_dwordx4 v%d, %s, s51 offen lds' % (V_DMA + 3 + i, sr(srd2, 4)), tag=('D', t))

    for t in range(2):
        issue_dma(t)

    a('s_lshl_b32 s57, s2, 9')
    a('s_lshl_b32 s58, s36, 6')
    a('s_add_u32 s57, s57, s58')
    a('s_cmp_lt_u32 s57, 122880')
    a('s_cselect_b32 s60, s66, s64')
    a('s_cselect_b32 s61, s67, s65')
    a('s_cselect_b32 s62, %d, s57' % 0 if False else 's_cselect_b32 s58, 0, 1')
    a('s_and_b32 s61, s61, 0xffff')
    a('s_mov_b32 s63, 0x00020000')
    a('s_mul_i32 s59, s58, 122880')
    a('s_sub_u32 s57, s57, s59')
    a('s_cmp_eq_u32 s58, 0')
    a('s_cselect_b32 s62, %d, %d' % (1536 * 1280, 0) if False else 's_mov_b32 s62, %d' % (640 * 1280))
    a('s_cselect_b32 s62, %d, s62' % (1536 * 1280))
    a('s_mov_b32 s59, 640')
    a('s_cselect_b32 s59, 1536, s59')
    a('s_mov_b32 s68, %d' % WS_WO)
    a('s_cselect_b32 s68, %d, s68' % WS_WD)

    def repack_dst(c, dst, R):
        a('s_mov_b32 s69, 53687092')
        a('v_mul_hi_u32 v24, v%d, s69' % c)
        a('v_mul_u32_u24 v25, 80, v24')
        a('v_sub_u32 v25, v%d, v25' % c)
        a('v_mul_u32_u24 v26, 205, v25')
        a('v_lshrrev_b32 v26, 11, v26')
        a('v_mul_u32_u24 v27, 10, v26')
        a('v_sub_u32 v25, v25, v27')
        a('v_mul_lo_u32 v26, v26, %s' % R)
        a('v_add_u32 v24, v24, v26')
        a('v_mul_u32_u24 v24, 160, v24')
        a('v_lshl_add_u32 v%d, v25, 4, v24' % dst)
    a('v_add_u32 v64, s57, v0')
    a('v_lshlrev_b32 v22, 4, v64')
    a('buffer_load_dwordx4 v[56:59], v22, s[60:63], 0 offen', tag='RP')
    repack_dst(64, 64, 's59')
    a('v_add_u32 v64, s68, v64')
    a('s_mov_b32 s60, s64')
    a('s_and_b32 s61, s65, 0xffff')
    a('s_mov_b32 s62, %d' % (640 * 1280))
    a('s_lshl_b32 s57, s2, 9')
    a('s_lshl_b32 s58, s36, 6')
    a('s_add_u32 s57, s57, s58')
    a('s_add_u32 s57, s57, 8192')
    a('v_add_u32 v65, s57, v0')
    a('v_lshlrev_b32 v22, 4, v65')
    a('buffer_load_dwordx4 v[60:63], v22, s[60:63], 0 offen', tag='RP')
    a('v_cmp_gt_u32 vcc, 51200, v65')
    a('s_mov_b32 s59, 640')
    repack_dst(65, 65, 's59')
    a('v_add_u32 v65, %d, v65' % WS_WO)
    a('v_mov_b32 v24, 0x40000000')
    a('v_cndmask_b32 v65, v24, v65, vcc')
    stamp(a)
    for r in range(16, 20):
        a('v_mov_b32 v%d, 0' % r)
    a('v_mov_b32 v20, 0x3f803f80')
    for j in range(10):
        for rho in range(2):
            a.wait_vm(('X', rho, j))
            base = k1_xreg(rho, j)
            for q in range(4):
                a('v_dot2_f32_bf16 v%d, v%d, v20, v%d' % (16 + rho * 2, base + q, 16 + rho * 2))
                a('v_dot2_f32_bf16 v%d, v%d, v%d, v%d' % (17 + rho * 2, base + q, base + q, 17 + rho * 2))
    stamp(a)
    for ctl in ('quad_perm:[1,0,3,2]', 'quad_perm:[2,3,0,1]', 'row_half_mirror'):
        for r in range(16, 20):
            a('v_add_f32_dpp v%d, v%d, v%d %s row_mask:0xf bank_mask:0xf' % (r, r, r, ctl))
    inv = f32hex(1.0 / 640.0)
    for tile in range(2):
        su, sq = 16 + tile * 2, 17 + tile * 2
        R, C = 28 + 4 * tile, 30 + 4 * tile
        a('v_mul_f32 v24, %s, v%d' % (inv, su))
        a('v_mul_f32 v25, %s, v%d' % (inv, sq))
        a('v_fma_f32 v25, -v24, v24, v25')
        a('v_max_f32 v25, 0, v25')
        bf16r_pair(a, 24, 25, 24, 25, 26)
        a('v_add_f32 v25, %s, v25' % f32hex(1e-5))
        a('v_cvt_pk_bf16_f32 v26, v25, v25')
        a('v_lshlrev_b32 v25, 16, v26')
        a('v_sqrt_f32 v25, v25')
        a('v_cvt_pk_bf16_f32 v26, v25, v25')
        a('v_lshlrev_b32 v25, 16, v26')
        a('v_rcp_f32 v%d, v25' % R)
        a('v_mul_f32 v%d, v24, v%d' % (C, R))
        a('v_sub_f32 v%d, 0, v%d' % (C, C))
        a('v_mov_b32 v%d, v%d' % (R + 1, R))
        a('v_mov_b32 v%d, v%d' % (C + 1, C))
    a('s_lshl_b32 s49, s36, 4')
    for rho in range(2):
        a('v_lshrrev_b32 v24, 3, v0')
        a('v_add_u32 v24, s49, v24')
        if rho:
            a('v_add_u32 v24, 8, v24')
        a('v_bfe_u32 v25, v24, 1, 3')
        a('v_xor_b32 v25, v25, v14')
        a('v_mul_u32_u24 v24, 640, v24')
        a('v_lshl_add_u32 v24, v25, 4, v24')
        a('v_add_u32 v%d, %d, v24' % (16 + rho, K1_XS))
    a('s_lshl_b32 s49, s37, 5')
    for tile in range(2):
        a('v_add_u32 v24, s49, v11')
        if tile:
            a('v_add_u32 v24, 16, v24')
        a('v_bfe_u32 v25, v24, 1, 3')
        a('v_xor_b32 v25, v25, v12')
        a('v_mul_u32_u24 v24, 640, v24')
        a('v_add_u32 v24, %d, v24' % K1_XS)
        a('v_lshl_add_u32 v%d, v25, 4, v24' % (20 + tile * 2))
        a('v_xor_b32 v25, 4, v25')
        a('v_lshl_add_u32 v%d, v25, 4, v24' % (21 + tile * 2))
    n = 0
    for half in range(2):
        for j in range(half * 5, half * 5 + 5):
            for rho in range(2):
                R, C = 28 + 4 * rho, 30 + 4 * rho
                base = k1_xreg(rho, j)
                tp = [40 + 2 * ((n + q) % 8) for q in range(4)]
                n += 4
                for q in range(4):
                    a('v_lshlrev_b32 v%d, 16, v%d' % (tp[q], base + q))
                    a('v_and_b32 v%d, 0xffff0000, v%d' % (tp[q] + 1, base + q))
                for q in range(4):
                    a('v_pk_fma_f32 %s, %s, %s, %s' % (vr(tp[q], 2), vr(tp[q], 2), vr(R, 2), vr(C, 2)))
                for q in range(4):
                    a('v_cvt_pk_bf16_f32 v%d, v%d, v%d' % (base + q, tp[q], tp[q] + 1))
                if half == 0:
                    a('ds_write_b128 v%d, %s offset:%d' % (16 + rho, vr(base, 4), (j % 5) * 128), tag='xw')
        if half == 1:
            a.wait_lg_all()
            a('s_barrier')
            for j in range(5, 10):
                for rho in range(2):
                    a('ds_write_b128 v%d, %s offset:%d' % (16 + rho, vr(k1_xreg(rho, j), 4), (j % 5) * 128), tag='xw')
        a.wait_lg_all()
        a('s_barrier')
        for sp in range(10):
            for tile in range(2):
                a('ds_read_b128 %s, v%d offset:%d' % (vr(k1_areg(tile, half * 10 + sp), 4), 20 + tile * 2 + (sp & 1), (sp >> 1) * 128),
                  tag='xr')
    L_nz = a.newlabel('k1nz')
    a('s_or_b32 s57, s2, s36')
    a('s_cmp_lg_u32 s57, 0')
    a.branch('s_cbranch_scc1 %s' % L_nz)
    sv = list(a.vm)
    a('v_mov_b32 v24, 0')
    a('v_mov_b32 v25, 0')
    a('v_mov_b32 v26, 0')
    a('v_mov_b32 v27, 0')
    a('v_lshlrev_b32 v22, 5, v0')
    a('s_mov_b32 s57, %d' % WS_CNT)
    a('buffer_store_dwordx4 v[24:27], v22, s[28:31], s57 offen')
    a('buffer_store_dwordx4 v[24:27], v22, s[28:31], s57 offen offset:16')
    a('s_waitcnt vmcnt(0)')
    a.vm = sv
    a.label(L_nz)
    a.wait_vm('RP')
    a('buffer_store_dwordx4 v[56:59], v64, s[28:31], 0 offen' + STF, tag='st')
    a('buffer_store_dwordx4 v[60:63], v65, s[28:31], 0 offen' + STF, tag='st')
    stamp(a)
    L_v = a.newlabel('k1v')
    L_g = a.newlabel('k1g')
    a('s_cmp_ge_u32 s35, 6')
    a.branch('s_cbranch_scc1 %s' % L_g)
    a('s_cmp_ge_u32 s35, 4')
    a.branch('s_cbranch_scc1 %s' % L_v)
    saved = (list(a.vm), list(a.lg))
    sn = _stamp_n[0]
    k1_body(a, 'qk')
    a.branch('s_branch %s' % L_end)
    a.label(L_v)
    a.vm, a.lg = list(saved[0]), list(saved[1])
    stamp_reset(sn)
    k1_body(a, 'v')
    a.branch('s_branch %s' % L_end)
    a.label(L_g)
    a.vm, a.lg = list(saved[0]), list(saved[1])
    stamp_reset(sn)
    k1_body(a, 'gu')
    a.label(L_end)
    a('s_endpgm')


def k1_body(a, kind):
    def issue_dma(t):
        p, st = divmod(t, 5)
        slot = t % 3
        a('s_mul_i32 s50, s46, %d' % st)
        if p:
            a('s_add_u32 s51, s50, s56')
            a('s_add_u32 s50, s50, 128')
        else:
            a('s_mov_b32 s51, s50')
        srd1, srd2 = (16, 20) if p == 0 else (20, 16)
        for i in range(3):
            a('s_add_u32 m0, s47, %d' % (slot * K1_SLOT + i * 1024))
            a('buffer_load_dwordx4 v%d, %s, s50 offen lds' % (V_DMA + i, sr(srd1, 4)), tag=('D', t))
        for i in range(2):
            a('s_add_u32 m0, s48, %d' % (slot * K1_SLOT + i * 1024))
            a('buffer_load_dwordx4 v%d, %s, s51 offen lds' % (V_DMA + 3 + i, sr(srd2, 4)), tag=('D', t))

    pending = []

    def dma_pieces(t):
        p, st = divmod(t, 5)
        slot = t % 3
        srd1, srd2 = (16, 20) if p == 0 else (20, 16)
        out = []

        def head():
            a('s_mul_i32 s50, s46, %d' % st)
            if p:
                a('s_add_u32 s51, s50, s56')
                a('s_add_u32 s50, s50, 128')
            else:
                a('s_mov_b32 s51, s50')
        for i in range(3):
            def piece(i=i):
                if i == 0:
                    head()
                a('s_add_u32 m0, s47, %d' % (slot * K1_SLOT + i * 1024))
                a('buffer_load_dwordx4 v%d, %s, s50 offen lds' % (V_DMA + i, sr(srd1, 4)), tag=('D', t))
            out.append(piece)
        for i in range(2):
            def piece(i=i):
                a('s_add_u32 m0, s48, %d' % (slot * K1_SLOT + i * 1024))
                a('buffer_load_dwordx4 v%d, %s, s51 offen lds' % (V_DMA + 3 + i, sr(srd2, 4)), tag=('D', t))
            out.append(piece)
        return out

    cur_slot = [0]
    R1MAP = [[(0, 2), (1, 3), (4, 5)], [(0, 1), (2, 4), (3, 5)]]

    def read_addrs(p):
        a('v_bfe_u32 v16, v0, 2, 2')
        a('v_and_b32 v17, 3, v0')
        a('v_lshl_add_u32 v18, v12, 3, v16')
        a('v_and_b32 v19, 1, v12')
        a('v_mul_u32_u24 v21, 192, v18')
        a('v_lshl_add_u32 v21, v17, 3, v21')
        base = cur_slot[0] * K1_SLOT
        if base:
            a('v_add_u32 v21, %d, v21' % base)
        for j in range(3):
            a('s_cmp_eq_u32 s38, 0')
            a('s_cselect_b32 s50, %d, %d' % R1MAP[p][j])
            a('v_xor_b32 v20, s50, v19')
            a('v_lshl_add_u32 v%d, v20, 5, v21' % (V_RD + j))
        a('v_lshrrev_b32 v20, 1, v16')
        a('v_lshl_or_b32 v19, v19, 1, v20')
        a('v_lshlrev_b32 v21, 7, v18')
        a('v_lshl_add_u32 v21, v17, 3, v21')
        a('v_add_u32 v21, %d, v21' % (base + K1_R2))
        a('s_lshl_b32 s49, s38, 1')
        for j in range(2):
            a('s_add_u32 s50, s49, %d' % j)
            a('v_xor_b32 v20, s50, v19')
            a('v_lshl_add_u32 v%d, v20, 5, v21' % (V_RD + 3 + j))

    def set_slot(slot):
        d = (slot - cur_slot[0]) * K1_SLOT
        if d:
            for j in range(5):
                if d > 0:
                    a('v_add_u32 v%d, %d, v%d' % (V_RD + j, d, V_RD + j))
                else:
                    a('v_subrev_u32 v%d, %d, v%d' % (V_RD + j, -d, V_RD + j))
        cur_slot[0] = slot

    def read_unit(n, j):
        ks = n % 4
        b = V_B + (n % 2) * 20 + j * 4
        if j < 3:
            o = ks * 6144
            a('ds_read_b64_tr_b16 %s, v%d offset:%d' % (vr(b, 2), V_RD + j, o), tag=('B', n, j))
            a('ds_read_b64_tr_b16 %s, v%d offset:%d' % (vr(b + 2, 2), V_RD + j, o + 768), tag=('B', n, j))
        else:
            o = ks * 4096
            a('ds_read_b64_tr_b16 %s, v%d offset:%d' % (vr(b, 2), V_RD + j, o), tag=('B', n, j))
            a('ds_read_b64_tr_b16 %s, v%d offset:%d' % (vr(b + 2, 2), V_RD + j, o + 512), tag=('B', n, j))

    def stage_enter(t):
        a.wait_lg_all()
        a.wait_vm(('D', t))
        a('s_barrier')
        if t + 2 <= 9:
            pending.extend(dma_pieces(t + 2))
        if t % 5 == 0:
            cur_slot[0] = t % 3
            read_addrs(t // 5)
        else:
            set_slot(t % 3)

    a('v_and_b32 v11, 15, v0')
    a('v_lshrrev_b32 v12, 4, v0')
    stage_enter(0)
    stamp(a)
    for j in range(5):
        read_unit(0, j)
    for n in range(40):
        p, s = divmod(n, 20)
        nxt = n + 1
        if nxt < 40 and nxt % 4 == 0:
            stage_enter(nxt // 4)
        for j in range(5):
            a.wait_lg(('B', n, j))
            b = V_B + (n % 2) * 20 + j * 4
            for tile in range(2):
                acc = vr(k1_acc(j, tile), 4)
                c = acc if s else '0'
                A = vr(k1_areg(tile, s), 4)
                B = vr(b, 4)
                if kind == 'v':
                    a('v_mfma_f32_16x16x32_bf16 %s, %s, %s, %s' % (acc, A, B, c))
                else:
                    a('v_mfma_f32_16x16x32_bf16 %s, %s, %s, %s' % (acc, B, A, c))
            if nxt < 40:
                read_unit(nxt, j)
            if pending and j in (1, 3):
                pending.pop(0)()
        if s == 19:
            stamp(a)
            k1_epilogue(a, kind, p)
            stamp(a)
    if STAMP:
        a.wait_vm_all()
        stamp(a)
    stamp_dump(a, 36)
    rt_end(a, 36, 0)


def k1_epilogue(a, kind, p):
    T = 36
    R1MAP = [[(0, 2), (1, 3), (4, 5)], [(0, 1), (2, 4), (3, 5)]]
    if p == 0:
        units = [R1MAP[0][j] for j in range(3)] + [(6, 8), (7, 9)]
    else:
        units = [(10 + R1MAP[1][j][0], 10 + R1MAP[1][j][1]) for j in range(3)] + [(16, 18), (17, 19)]
    if kind == 'qk':
        a('s_and_b32 s52, s35, 1')
        a('s_mul_i32 s52, s52, 80')
        a('s_lshr_b32 s53, s35, 1')
        a('s_mul_i32 s53, s53, %d' % WS_K)
        a('s_lshl_b32 s55, s39, 6')
        a('s_add_u32 s53, s53, s55')
        a('v_lshlrev_b32 v13, 4, v11')
        for j in range(5):
            a('s_cmp_eq_u32 s38, 0')
            a('s_cselect_b32 s54, %d, %d' % (units[j][0], units[j][1]))
            a('s_lshl_b32 s54, s54, 2')
            a('s_add_u32 s54, s54, s52')
            a('v_add_u32 v%d, s54, v12' % T)
            a('v_mul_u32_u24 v%d, 205, v%d' % (T + 1, T))
            a('v_lshrrev_b32 v%d, 10, v%d' % (T + 1, T + 1))
            a('v_mul_u32_u24 v%d, 5, v%d' % (T + 2, T + 1))
            a('v_sub_u32 v%d, v%d, v%d' % (T + 2, T, T + 2))
            a('v_and_b32 v%d, 3, v%d' % (T + 3, T + 2))
            a('v_lshrrev_b32 v%d, 2, v%d' % (T + 2, T + 2))
            a('v_lshlrev_b32 v%d, 17, v%d' % (T + 1, T + 1))
            a('v_lshl_add_u32 v%d, v%d, 8, v%d' % (T + 1, T + 3, T + 1))
            a('v_lshl_add_u32 v%d, v%d, 3, v%d' % (T + 1, T + 2, T + 1))
            a('v_add_u32 v%d, v%d, v13' % (T + 1, T + 1))
            for tile in range(2):
                ac = k1_acc(j, tile)
                d = T + 4 + tile * 2
                a('v_cvt_pk_bf16_f32 v%d, v%d, v%d' % (d, ac, ac + 1))
                a('v_cvt_pk_bf16_f32 v%d, v%d, v%d' % (d + 1, ac + 2, ac + 3))
                a('buffer_store_dwordx2 %s, v%d, s[28:31], s53 offen offset:%d%s' % (vr(d, 2), T + 1, tile * 1024, STF), tag='st')
            T = 36 + ((T - 36 + 8) % 16)
    elif kind == 'v':
        a('s_sub_u32 s52, s35, 4')
        a('s_mul_i32 s52, s52, 320')
        a('s_lshl_b32 s53, s39, 6')
        a('s_add_u32 s53, s53, %d' % WS_VT)
        a('v_lshlrev_b32 v13, 8, v12')
        for j in range(5):
            a('s_cmp_eq_u32 s38, 0')
            a('s_cselect_b32 s54, %d, %d' % (units[j][0], units[j][1]))
            a('s_lshl_b32 s54, s54, 4')
            a('s_add_u32 s54, s54, s52')
            a('v_add_u32 v%d, s54, v11' % (T + 4))
            a('v_mul_u32_u24 v%d, 3277, v%d' % (T + 5, T + 4))
            a('v_lshrrev_b32 v%d, 16, v%d' % (T + 5, T + 5))
            a('v_mul_u32_u24 v%d, 20, v%d' % (T + 6, T + 5))
            a('v_sub_u32 v%d, v%d, v%d' % (T + 6, T + 4, T + 6))
            a('v_lshrrev_b32 v%d, 4, v%d' % (T + 7, T + 6))
            a('v_and_b32 v%d, 15, v%d' % (T + 6, T + 6))
            a('v_lshlrev_b32 v%d, 17, v%d' % (T + 5, T + 5))
            a('v_lshl_add_u32 v%d, v%d, 10, v%d' % (T + 5, T + 7, T + 5))
            a('v_lshl_add_u32 v%d, v%d, 4, v%d' % (T + 5, T + 6, T + 5))
            a('v_add_u32 v%d, v%d, v13' % (T + 5, T + 5))
            d = T
            for tile in range(2):
                ac = k1_acc(j, tile)
                a('v_cvt_pk_bf16_f32 v%d, v%d, v%d' % (d + tile * 2, ac, ac + 1))
                a('v_cvt_pk_bf16_f32 v%d, v%d, v%d' % (d + tile * 2 + 1, ac + 2, ac + 3))
            a('buffer_store_dwordx4 %s, v%d, s[28:31], s53 offen%s' % (vr(d, 4), T + 5, STF), tag='st')
            T = 36 + ((T - 36 + 8) % 16)
    else:
        a('v_lshlrev_b32 v13, 4, v0')
        a('s_lshr_b32 s52, s39, 4')
        a('s_mul_i32 s52, s52, %d' % (48 * 1024))
        a('s_add_u32 s52, s52, %d' % WS_H)
        a('s_lshl_b32 s55, s36, 11')
        a('s_add_u32 s55, s55, %d' % K1_STASH)
        a('v_add_u32 v14, s55, v13')

        def silu_mul(g0, u0, dst):
            t = 36
            bf16r_pair(a, t, t + 1, g0, g0 + 1, t + 8)
            bf16r_pair(a, t + 2, t + 3, g0 + 2, g0 + 3, t + 9)
            bf16r_pair(a, t + 4, t + 5, u0, u0 + 1, t + 10)
            bf16r_pair(a, t + 6, t + 7, u0 + 2, u0 + 3, t + 11)
            for r in range(4):
                a('v_mul_f32 v%d, %s, v%d' % (t + 8 + r, f32hex(-LOG2E), t + r))
            for r in range(4):
                a('v_exp_f32 v%d, v%d' % (t + 8 + r, t + 8 + r))
            for r in range(4):
                a('v_add_f32 v%d, 1.0, v%d' % (t + 8 + r, t + 8 + r))
            for r in range(4):
                a('v_rcp_f32 v%d, v%d' % (t + 8 + r, t + 8 + r))
            for r in range(4):
                a('v_mul_f32 v%d, v%d, v%d' % (t + r, t + r, t + 8 + r))
            bf16r_pair(a, t, t + 1, t, t + 1, t + 8)
            bf16r_pair(a, t + 2, t + 3, t + 2, t + 3, t + 9)
            for r in range(4):
                a('v_mul_f32 v%d, v%d, v%d' % (t + r, t + r, t + 4 + r))
            a('v_cvt_pk_bf16_f32 v%d, v%d, v%d' % (dst, t, t + 1))
            a('v_cvt_pk_bf16_f32 v%d, v%d, v%d' % (dst + 1, t + 2, t + 3))

        def two_pairs(pair0, ga, ua, gb, ub):
            a('s_lshl_b32 s54, s38, 1')
            a('s_add_u32 s54, s54, s44')
            a('s_add_u32 s54, s54, %d' % pair0)
            a('s_lshl_b32 s54, s54, 9')
            a('s_add_u32 s54, s54, s52')
            a('s_add_u32 s55, s54, %d' % (48 * 1024))
            for tile in range(2):
                d = 48 if tile == 0 else 52
                silu_mul(k1_acc(ga, tile), k1_acc(ua, tile), d)
                silu_mul(k1_acc(gb, tile), k1_acc(ub, tile), d + 2)
                a('buffer_store_dwordx4 %s, v13, s[28:31], s%d offen%s' % (vr(d, 4), 54 + tile, STF), tag='st')

        if p == 0:
            a('ds_write_b128 v14, %s offset:0' % vr(k1_acc(2, 0), 4), tag='stash')
            a('ds_write_b128 v14, %s offset:1024' % vr(k1_acc(2, 1), 4), tag='stash')
            two_pairs(0, 0, 3, 1, 4)
        else:
            a('ds_read_b128 v[48:51], v14 offset:0', tag='stash')
            a('ds_read_b128 v[52:55], v14 offset:1024', tag='stash')
            a.wait_lg('stash')
            a('s_add_u32 s54, s44, s38')
            a('s_add_u32 s54, s54, 4')
            a('s_lshr_b32 s55, s54, 1')
            a('s_lshl_b32 s55, s55, 10')
            a('s_and_b32 s54, s54, 1')
            a('s_lshl_b32 s54, s54, 3')
            a('s_add_u32 s54, s54, s55')
            a('s_add_u32 s54, s54, s52')
            a('s_add_u32 s55, s54, %d' % (48 * 1024))
            for tile in range(2):
                d = k1_acc(0, tile)
                silu_mul(48 + tile * 4, k1_acc(0, tile), d)
                a('buffer_store_dwordx2 %s, v13, s[28:31], s%d offen%s' % (vr(d, 2), 54 + tile, STF), tag='st')
            L_skip = a.newlabel('k1skip')
            a('s_cmp_lt_u32 s45, 10')
            a.branch('s_cbranch_scc1 %s' % L_skip)
            two_pairs(6, 3, 1, 4, 2)
            a.label(L_skip)


def kernel_desc(name, vgpr, sgpr=96):
    return '''.section .rodata,"a"
.p2align 6
.amdhsa_kernel %s
  .amdhsa_next_free_vgpr %d
  .amdhsa_next_free_sgpr %d
  .amdhsa_accum_offset %d
  .amdhsa_group_segment_fixed_size 0
  .amdhsa_kernarg_size 80
  .amdhsa_user_sgpr_count 2
  .amdhsa_user_sgpr_kernarg_segment_ptr 1
  .amdhsa_system_sgpr_workgroup_id_x 1
.end_amdhsa_kernel
.text
''' % (name, vgpr, sgpr, (vgpr + 3) // 4 * 4)


HEADER = '''; Kernarg layout (80 bytes): A_x, A_wqkv, A_wo, B_x, B_w_gate, B_w_up, B_w_down, d_out, d_debug, d_ws
'''


def main():
    launches = []
    a = Asm()
    a.raw('.amdgcn_target "amdgcn-amd-amdhsa--gfx950"')
    a.raw('.text')
    which = os.environ.get('GEN_KERNELS', '123')
    descs = []
    if '1' in which:
        gen_k1(a)
        launches.append('; @launch kernel=k1_kernel grid=(256,1,1) block=(512,1,1) lds=%d' % K1_LDS)
        descs.append(kernel_desc('k1_kernel', 256))
    try:
        import gen2
        gen2.emit(a, launches, descs, which)
    except ImportError:
        pass
    out = HEADER + '\n'.join(launches) + '\n' + a.text() + ''.join(descs)
    path = sys.argv[1] if len(sys.argv) > 1 else 'parallel_sum__sliding_block__swiglu_ffn__prompt.s'
    open(path, 'w').write(out)
    print('wrote', path, len(out), 'bytes')


if __name__ == '__main__':
    import gen
    gen.main()
```

```python
from asmlib import Asm, vr, sr
from gen import (WS_Q, WS_K, WS_VT, WS_H, WS_O, WS_F, WS_WD, WS_WO, WS_END, LOG2E, f32hex, make_srd, bf16r_pair,
                 kernel_desc, rt_start, rt_end, stamp, stamp_reset, stamp_dump)

G_SLOT = 20480
K2_LDS = 81920
K3_LDS = 102400


def gemm2(a, kind, wg_sreg):
    K = 1536 if kind == 'down' else 640
    nst = K // 128
    RING = 4 if kind == 'down' else 5
    AR = 5
    a_base = WS_H if kind == 'down' else WS_O
    w_base = WS_WD if kind == 'down' else WS_WO
    V_L16 = 1
    V_RD = 2
    V_RD2 = 3
    V_B = 16
    V_ACC = 56
    V_A = 76
    stamp_reset()
    stamp(a)
    if kind == 'out':
        a('s_load_dwordx2 s[6:7], s[0:1], 0')
        a('s_load_dwordx2 s[8:9], s[0:1], 56')
    a('s_load_dwordx2 s[12:13], s[0:1], 72')
    a('s_and_b32 s32, s%d, 7' % wg_sreg)
    a('s_lshr_b32 s33, s%d, 3' % wg_sreg)
    a('s_lshl_b32 s34, s32, 2')
    a('s_and_b32 s35, s33, 3')
    a('s_add_u32 s34, s34, s35')
    a('s_lshr_b32 s35, s33, 2')
    a('v_lshrrev_b32 v9, 6, v0')
    a('v_readfirstlane_b32 s36, v9')
    a('v_and_b32 v0, 63, v0')
    a('v_and_b32 v9, 15, v0')
    a('v_lshrrev_b32 v10, 4, v0')
    a('s_and_b32 s37, s36, 3')
    a('s_lshr_b32 s38, s36, 2')
    a('s_lshl_b32 s39, s34, 6')
    a('s_lshl_b32 s40, s37, 4')
    a('s_add_u32 s39, s39, s40')
    a('v_lshlrev_b32 v%d, 4, v0' % V_L16)
    a.wait_lg_all()
    make_srd(a, 28, 's12', 's13', WS_END)
    if kind == 'out':
        make_srd(a, 20, 's6', 's7', 2048 * 1280)
        make_srd(a, 24, 's8', 's9', 2048 * 1280)
    a('s_lshr_b32 s41, s39, 4')
    a('s_mul_i32 s41, s41, %d' % (K // 32 * 1024))
    a('s_lshl_b32 s42, s38, 10')
    a('s_add_u32 s41, s41, s42')
    a('s_add_u32 s41, s41, %d' % a_base)
    a('s_mul_i32 s42, s35, %d' % (K * 160))
    a('s_mul_i32 s44, s36, 2560')
    a('s_add_u32 s42, s42, s44')
    a('s_add_u32 s42, s42, %d' % w_base)
    a('v_bfe_u32 v11, v0, 2, 2')
    a('v_lshl_add_u32 v11, v10, 2, v11')
    a('v_mul_u32_u24 v11, 160, v11')
    a('v_and_b32 v12, 3, v0')
    a('v_lshl_add_u32 v11, v12, 3, v11')
    a('s_mul_i32 s43, s38, 5120')
    a('v_add_u32 v%d, s43, v11' % V_RD)
    a('v_add_u32 v%d, 61440, v%d' % (V_RD2, V_RD))

    def areg(t, q):
        return V_A + ((t % AR) * 2 + q) * 4

    def issue_stage(t):
        slot = t % RING
        a('s_add_u32 s45, s41, %d' % (t * 4096))
        for q in range(2):
            a('buffer_load_dwordx4 %s, v%d, s[28:31], s45 offen offset:%d' % (vr(areg(t, q), 4), V_L16, q * 2048),
              tag=('A', t))
        a('s_add_u32 s46, s42, %d' % (t * G_SLOT))
        for i in range(3):
            a('s_add_u32 m0, s44, %d' % (slot * G_SLOT))
            if i == 2:
                a('s_mov_b64 exec, 0xffffffff')
            a('buffer_load_dwordx4 v%d, s[28:31], s46 offen offset:%d lds' % (V_L16, i * 1024), tag=('D', t))
            if i == 2:
                a('s_mov_b64 exec, -1')

    for t in range(min(RING, nst)):
        issue_stage(t)

    def read_unit(n, j):
        t, q = divmod(n, 2)
        b = V_B + (n % 2) * 20 + j * 4
        o = (t % RING) * G_SLOT + q * 64 * 160 + j * 32
        rd = V_RD
        if o >= 61440:
            o -= 61440
            rd = V_RD2
        a('ds_read_b64_tr_b16 %s, v%d offset:%d' % (vr(b, 2), rd, o), tag=('B', n, j))
        a('ds_read_b64_tr_b16 %s, v%d offset:%d' % (vr(b + 2, 2), rd, o + 16 * 160), tag=('B', n, j))

    def stage_enter(t):
        a.wait_lg_all()
        a.wait_vm(('D', t))
        a('s_barrier')
        if t >= 1 and t + RING - 1 < nst:
            issue_stage(t + RING - 1)

    nk = nst * 2
    stamp(a)
    stage_enter(0)
    stamp(a)
    for j in range(5):
        read_unit(0, j)
    for n in range(nk):
        nxt = n + 1
        if nxt < nk and nxt % 2 == 0:
            stage_enter(nxt // 2)
            if nxt // 2 in (1, 2, 4, 8):
                stamp(a)
        t, q = divmod(n, 2)
        for j in range(5):
            a.wait_lg(('B', n, j))
            b = V_B + (n % 2) * 20 + j * 4
            acc = vr(V_ACC + j * 4, 4)
            a('v_mfma_f32_16x16x32_bf16 %s, %s, %s, %s' % (acc, vr(b, 4), vr(areg(t, q), 4), acc if n else '0'))
            if nxt < nk:
                read_unit(nxt, j)
    stamp(a)
    L_hi = a.newlabel('g2hi')
    L_done = a.newlabel('g2done')
    a('s_barrier')
    a('s_mul_i32 s45, s37, 5120')
    a('v_add_u32 v4, s45, v%d' % V_L16)
    a('s_cmp_eq_u32 s38, 0')
    a.branch('s_cbranch_scc1 %s' % L_hi)
    for j in range(5):
        a('ds_write_b128 v4, %s offset:%d' % (vr(V_ACC + j * 4, 4), j * 1024), tag='ex')
    a.wait_lg_all()
    a('s_barrier')
    a.branch('s_branch %s' % L_done)
    a.label(L_hi)
    for r in range(3):
        a('v_add_u32 v11, %d, v0' % (64 * r))
        a('v_mul_u32_u24 v12, 52429, v11')
        a('v_lshrrev_b32 v12, 19, v12')
        a('v_mul_u32_u24 v13, 10, v12')
        a('v_sub_u32 v13, v11, v13')
        a('v_add_u32 v14, s39, v12')
        a('v_mul_u32_u24 v14, 1280, v14')
        a('v_lshl_add_u32 v14, v13, 4, v14')
        a('s_mul_i32 s46, s35, 160')
        a('v_add_u32 v%d, s46, v14' % (5 + r))
        if r == 2:
            a('v_mov_b32 v14, 0x40000000')
            a('v_cmp_gt_u32 vcc, 32, v0')
            a('v_cndmask_b32 v7, v14, v7, vcc')
    X = 96
    if kind == 'out':
        a('s_mov_b32 s47, %d' % WS_F)
        for r in range(3):
            a('buffer_load_dwordx4 %s, v%d, s[20:23], 0 offen' % (vr(X + r * 4, 4), 5 + r), tag='X')
            a('buffer_load_dwordx4 %s, v%d, s[28:31], s47 offen' % (vr(X + 12 + r * 4, 4), 5 + r), tag='X')
    a('s_barrier')
    for j in range(5):
        a('ds_read_b128 %s, v4 offset:%d' % (vr(V_B + j * 4, 4), j * 1024), tag='ex')
    a.wait_lg_all()
    a('s_mul_i32 s45, s37, 2560')
    a('s_add_u32 s45, s45, 20480')
    a('v_mul_u32_u24 v11, 160, v9')
    a('v_lshl_add_u32 v11, v10, 3, v11')
    a('v_add_u32 v11, s45, v11')
    for j in range(5):
        ac = V_ACC + j * 4
        for r in range(4):
            a('v_add_f32 v%d, v%d, v%d' % (ac + r, ac + r, V_B + j * 4 + r))
        d = 36 + j * 2
        a('v_cvt_pk_bf16_f32 v%d, v%d, v%d' % (d, ac, ac + 1))
        a('v_cvt_pk_bf16_f32 v%d, v%d, v%d' % (d + 1, ac + 2, ac + 3))
        a('ds_write_b64 v11, %s offset:%d' % (vr(d, 2), j * 32), tag='tw')
    a.wait_lg_all()
    a('v_add_u32 v12, s45, v%d' % V_L16)
    for r in range(3):
        a('ds_read_b128 %s, v12 offset:%d' % (vr(16 + r * 4, 4), r * 1024), tag='tr')
    if kind == 'down':
        a('s_mov_b32 s47, %d' % WS_F)
        for r in range(3):
            a.wait_lg_all() if r == 0 else None
            a('buffer_store_dwordx4 %s, v%d, s[28:31], s47 offen' % (vr(16 + r * 4, 4), 5 + r), tag='st')
    else:
        a.wait_lg_all()
        a.wait_vm('X')
        for r in range(3):
            for q in range(4):
                av, xv, fv = 16 + r * 4 + q, X + r * 4 + q, X + 12 + r * 4 + q
                t = 56 + (q % 2) * 8
                a('v_lshlrev_b32 v%d, 16, v%d' % (t, av))
                a('v_and_b32 v%d, 0xffff0000, v%d' % (t + 1, av))
                a('v_lshlrev_b32 v%d, 16, v%d' % (t + 2, xv))
                a('v_and_b32 v%d, 0xffff0000, v%d' % (t + 3, xv))
                a('v_add_f32 v%d, v%d, v%d' % (t, t, t + 2))
                a('v_add_f32 v%d, v%d, v%d' % (t + 1, t + 1, t + 3))
                bf16r_pair(a, t, t + 1, t, t + 1, t + 4)
                a('v_lshlrev_b32 v%d, 16, v%d' % (t + 2, fv))
                a('v_and_b32 v%d, 0xffff0000, v%d' % (t + 3, fv))
                a('v_add_f32 v%d, v%d, v%d' % (t, t, t + 2))
                a('v_add_f32 v%d, v%d, v%d' % (t + 1, t + 1, t + 3))
                a('v_cvt_pk_bf16_f32 v%d, v%d, v%d' % (av, t, t + 1))
            a('buffer_store_dwordx4 %s, v%d, s[24:27], 0 offen' % (vr(16 + r * 4, 4), 5 + r), tag='st')
    a.label(L_done)


def attention(a, wg_sreg):
    V_Q = 16
    V_O = 20
    V_S = 28
    V_KV = 100

    def S(t):
        return V_S + t * 4

    stamp_reset()
    stamp(a)
    a('s_load_dwordx2 s[12:13], s[0:1], 72')
    a('s_and_b32 s32, s%d, 7' % wg_sreg)
    a('s_lshr_b32 s33, s%d, 3' % wg_sreg)
    a('s_lshl_b32 s34, s32, 2')
    a('s_and_b32 s35, s33, 3')
    a('s_add_u32 s34, s34, s35')
    a('s_lshr_b32 s35, s33, 2')
    a('v_lshrrev_b32 v1, 6, v0')
    a('v_readfirstlane_b32 s36, v1')
    a('v_and_b32 v0, 63, v0')
    a('v_and_b32 v1, 15, v0')
    a('v_lshrrev_b32 v2, 4, v0')
    a('v_lshlrev_b32 v3, 4, v0')
    a('s_lshl_b32 s37, s35, 3')
    a('s_add_u32 s37, s37, s36')
    a('s_lshl_b32 s37, s37, 5')
    a.wait_lg_all()
    a('s_lshl_b32 s38, s34, 17')
    for d, base in ((16, WS_Q), (20, WS_K), (24, WS_VT)):
        a('s_add_u32 s39, s38, %d' % base)
        a('s_add_u32 s%d, s12, s39' % d)
        a('s_addc_u32 s%d, s13, 0' % (d + 1))
        a('s_and_b32 s%d, s%d, 0xffff' % (d + 1, d + 1))
        a('s_mov_b32 s%d, 131072' % (d + 2))
        a('s_mov_b32 s%d, 0x00020000' % (d + 3))
    make_srd(a, 28, 's12', 's13', WS_END)
    a('s_lshl_b32 s43, s35, 14')
    a('s_lshl_b32 s44, s36, 11')
    a('s_add_u32 s45, s43, s44')
    a('v_add_u32 v10, s45, v3')
    a('v_add_u32 v11, 1024, v10')
    a('s_mov_b32 m0, s44')
    a('buffer_load_dwordx4 v10, s[16:19], 0 offen lds', tag='stg')
    a('s_add_u32 m0, s44, 1024')
    a('buffer_load_dwordx4 v11, s[16:19], 0 offen lds', tag='stg')
    a('s_lshl_b32 s44, s36, 12')
    a('s_sub_u32 s45, s43, %d' % (256 * 64))
    a('s_add_u32 s45, s45, s44')
    a('v_add_u32 v10, s45, v3')
    for i in range(4):
        a('v_add_u32 v11, %d, v10' % (i * 1024))
        a('s_add_u32 m0, s44, %d' % (16384 + i * 1024))
        a('buffer_load_dwordx4 v11, s[20:23], 0 offen lds', tag='stg')
        a('s_add_u32 m0, s44, %d' % (49152 + i * 1024))
        a('buffer_load_dwordx4 v11, s[24:27], 0 offen lds', tag='stg')
    a('v_lshlrev_b32 v4, 2, v2')
    for r in range(4):
        a('v_add_u32 v5, %d, v4' % r)
        a('v_cmp_gt_u32 s[%d:%d], v5, v1' % (48 + 2 * r, 49 + 2 * r))
        a('v_cmp_le_u32 s[%d:%d], v5, v1' % (56 + 2 * r, 57 + 2 * r))
    a('v_mov_b32 v15, %s' % f32hex(-1e30))
    a('v_cmp_eq_u32 s[66:67], 4, v1')
    a('v_mov_b32 v14, 0x3f803f80')
    a('v_cmp_eq_u32 s[64:65], 0, v2')
    a('v_xor_b32 v5, 16, v0')
    a('v_lshlrev_b32 v5, 2, v5')
    a('v_xor_b32 v6, 32, v0')
    a('v_lshlrev_b32 v6, 2, v6')
    a('v_add_u32 v7, 16, v1')
    a('v_lshlrev_b32 v7, 2, v7')
    a('s_mul_i32 s39, s34, 5')
    a('v_add_u32 v8, s39, v2')

    def gpos(dst, G, t1, t2):
        a('v_lshrrev_b32 v%d, 3, v%d' % (t1, G))
        a('v_lshlrev_b32 v%d, 10, v%d' % (t1, t1))
        a('v_and_b32 v%d, 3, v%d' % (t2, G))
        a('v_lshl_add_u32 v%d, v%d, 8, v%d' % (t1, t2, t1))
        a('v_bfe_u32 v%d, v%d, 2, 1' % (t2, G))
        a('v_lshl_add_u32 v%d, v%d, 3, v%d' % (dst, t2, t1))
    gpos(8, 8, 10, 11)
    a('s_add_u32 s39, s39, 4')
    a('v_mov_b32 v9, s39')
    gpos(9, 9, 10, 11)
    a('v_mov_b32 v10, 0x40000000')
    a('v_cndmask_b32 v9, v10, v9, s[64:65]')
    a('v_lshlrev_b32 v10, 4, v1')
    a('v_add_u32 v8, v8, v10')
    a('v_add_u32 v9, v9, v10')
    a('s_mov_b32 s40, %s' % f32hex(20 ** -0.5 * LOG2E))
    a('s_lshl_b32 s46, s36, 11')
    a('v_add_u32 v4, s46, v3')
    a('v_add_u32 v2, 49152, v4')
    a('s_mul_i32 s43, s37, 1280')
    a('s_add_u32 s43, s43, %d' % WS_O)
    a('s_sub_u32 s47, 256, s37')
    a('s_lshr_b32 s47, s47, 4')
    stamp(a)
    a.wait_vm_all()
    a('s_barrier')
    stamp(a)

    for qt in range(2):
        tiles = list(range(qt, 17 + qt))
        a('ds_read_b128 %s, v4 offset:%d' % (vr(V_Q, 4), qt * 1024), tag='Q')
        NB = 6
        for k, t in enumerate(tiles[:NB - 1]):
            a('ds_read_b128 %s, v4 offset:%d' % (vr(V_KV + (k % NB) * 4, 4), 16384 + t * 1024), tag=('K', t))
        a.wait_lg('Q')
        for r in (2, 3):
            a('v_cndmask_b32 v%d, 0, v%d, s[64:65]' % (V_Q + r, V_Q + r))
        for k, t in enumerate(tiles):
            kb = V_KV + (k % NB) * 4
            a.wait_lg(('K', t))
            for r in (2, 3):
                a('v_cndmask_b32 v%d, 0, v%d, s[64:65]' % (kb + r, kb + r))
            a('v_mfma_f32_16x16x32_bf16 %s, %s, %s, 0' % (vr(S(t), 4), vr(kb, 4), vr(V_Q, 4)))
            k2 = k + NB - 1
            if k2 < len(tiles):
                a('ds_read_b128 %s, v4 offset:%d' % (vr(V_KV + (k2 % NB) * 4, 4), 16384 + tiles[k2] * 1024), tag=('K', tiles[k2]))
        for b in range(2):
            for dt in range(2):
                a('ds_read_b128 %s, v2 offset:%d' % (vr(V_KV + (b % 3) * 8 + dt * 4, 4), b * 2048 + dt * 1024), tag=('V', b))
        tf, tl = qt, 16 + qt
        for r in range(4):
            a('v_cndmask_b32 v%d, v15, v%d, s[%d:%d]' % (S(tf) + r, S(tf) + r, 48 + 2 * r, 49 + 2 * r))
            a('v_cndmask_b32 v%d, v15, v%d, s[%d:%d]' % (S(tl) + r, S(tl) + r, 56 + 2 * r, 57 + 2 * r))
        L_noneg = a.newlabel('noneg')
        a('s_cmp_ge_u32 s37, 256')
        a.branch('s_cbranch_scc1 %s' % L_noneg)
        for t in range(qt, 16):
            a('s_cmp_le_u32 s47, %d' % t)
            a.branch('s_cbranch_scc1 %s' % L_noneg)
            for r in range(4):
                a('v_mov_b32 v%d, v15' % (S(t) + r))
        a.label(L_noneg)
        regs = [S(t) + r for t in tiles for r in range(4)]
        a('v_max3_f32 v10, v%d, v%d, v%d' % (regs[0], regs[1], regs[2]))
        a('v_max3_f32 v11, v%d, v%d, v%d' % (regs[3], regs[4], regs[5]))
        k = 6
        tog = 0
        while k + 1 < len(regs):
            mm = 10 + tog
            a('v_max3_f32 v%d, v%d, v%d, v%d' % (mm, mm, regs[k], regs[k + 1]))
            k += 2
            tog ^= 1
        if k < len(regs):
            a('v_max_f32 v10, v10, v%d' % regs[k])
        a('v_max_f32 v10, v10, v11')
        for addr in (5, 6):
            a('ds_bpermute_b32 v11, v%d, v10' % addr, tag='bp')
            a.wait_lg('bp')
            a('v_max_f32 v10, v10, v11')
        a('v_mul_f32 v10, s40, v10')
        for b in range(9):
            for t in (2 * b, 2 * b + 1):
                if t not in tiles:
                    continue
                for r in range(4):
                    a('v_fma_f32 v%d, v%d, s40, -v10' % (S(t) + r, S(t) + r))
                for r in range(4):
                    a('v_exp_f32 v%d, v%d' % (S(t) + r, S(t) + r))
            p = S(2 * b)
            q = S(2 * b + 1)
            if 2 * b not in tiles:
                a('v_cvt_pk_bf16_f32 v%d, v%d, v%d' % (p + 2, q, q + 1))
                a('v_cvt_pk_bf16_f32 v%d, v%d, v%d' % (p + 3, q + 2, q + 3))
                a('v_mov_b32 v%d, 0' % p)
                a('v_mov_b32 v%d, 0' % (p + 1))
            else:
                a('v_cvt_pk_bf16_f32 v%d, v%d, v%d' % (p, p, p + 1))
                a('v_cvt_pk_bf16_f32 v%d, v%d, v%d' % (p + 1, p + 2, p + 3))
                if 2 * b + 1 not in tiles:
                    a('v_mov_b32 v%d, 0' % (p + 2))
                    a('v_mov_b32 v%d, 0' % (p + 3))
                else:
                    a('v_cvt_pk_bf16_f32 v%d, v%d, v%d' % (p + 2, q, q + 1))
                    a('v_cvt_pk_bf16_f32 v%d, v%d, v%d' % (p + 3, q + 2, q + 3))
        for b in range(9):
            vb = V_KV + (b % 3) * 8
            a.wait_lg(('V', b))
            for r in range(4):
                a('v_cndmask_b32 v%d, v%d, v14, s[66:67]' % (vb + 4 + r, vb + 4 + r))
            for dt in range(2):
                o = vr(V_O + dt * 4, 4)
                a('v_mfma_f32_16x16x32_bf16 %s, %s, %s, %s' % (o, vr(vb + dt * 4, 4), vr(S(2 * b), 4), o if b else '0'))
            if b + 2 < 9:
                for dt in range(2):
                    a('ds_read_b128 %s, v2 offset:%d' % (vr(V_KV + ((b + 2) % 3) * 8 + dt * 4, 4), (b + 2) * 2048 + dt * 1024),
                      tag=('V', b + 2))
        a('ds_bpermute_b32 v10, v7, v%d' % (V_O + 4), tag='bp')
        a.wait_lg_all()
        a('v_rcp_f32 v10, v10')
        for dt in range(2):
            o = V_O + dt * 4
            for r in range(4):
                a('v_mul_f32 v%d, v%d, v10' % (o + r, o + r))
            a('v_cvt_pk_bf16_f32 v%d, v%d, v%d' % (12, o, o + 1) if dt == 0 else 'v_cvt_pk_bf16_f32 v%d, v%d, v%d' % (o, o, o + 1))
            if dt == 0:
                a('v_cvt_pk_bf16_f32 v13, v%d, v%d' % (o + 2, o + 3))
                a('buffer_store_dwordx2 v[12:13], v8, s[28:31], s43 offen', tag='st')
            else:
                a('v_cvt_pk_bf16_f32 v%d, v%d, v%d' % (o + 1, o + 2, o + 3))
                a('buffer_store_dwordx2 %s, v9, s[28:31], s43 offen' % vr(o, 2), tag='st')
        if qt == 0:
            a('s_add_u32 s43, s43, %d' % (20 * 1024))
            stamp(a)


def emit(a, launches, descs, which):
    if '2' in which:
        name = 'k2_kernel'
        a.raw('.globl %s' % name)
        a.raw('.p2align 8')
        a.raw('.type %s,@function' % name)
        a.raw('%s:' % name)
        a.hist = []
        a.vm = []
        a.lg = []
        a('s_cmp_ge_u32 s2, 512')
        a.branch('s_cbranch_scc1 .k2_end')
        rt_start(a)
        a('s_cmp_ge_u32 s2, 256')
        a.branch('s_cbranch_scc1 .k2_gemm')
        attention(a, 2)
        a.wait_vm_all()
        stamp(a)
        stamp_dump(a, 36)
        rt_end(a, 36, 1)
        a.branch('s_branch .k2_end')
        a.label('.k2_gemm')
        a.vm = []
        a.lg = []
        a('s_sub_u32 s3, s2, 256')
        gemm2(a, 'down', 3)
        a.wait_vm_all()
        stamp(a)
        stamp_dump(a, 36)
        rt_end(a, 36, 1)
        a.label('.k2_end')
        a('s_endpgm')
        launches.append('; @launch kernel=k2_kernel grid=(512,1,1) block=(512,1,1) lds=%d' % K2_LDS)
        descs.append(kernel_desc('k2_kernel', 128))
    if '3' in which:
        name = 'k3_kernel'
        a.raw('.globl %s' % name)
        a.raw('.p2align 8')
        a.raw('.type %s,@function' % name)
        a.raw('%s:' % name)
        a.hist = []
        a.vm = []
        a.lg = []
        a('s_cmp_ge_u32 s2, 256')
        a.branch('s_cbranch_scc1 .k3_end')
        rt_start(a)
        gemm2(a, 'out', 2)
        a.wait_vm_all()
        stamp(a)
        stamp_dump(a, 36)
        rt_end(a, 36, 2)
        a.label('.k3_end')
        a('s_endpgm')
        launches.append('; @launch kernel=k3_kernel grid=(256,1,1) block=(512,1,1) lds=%d' % K3_LDS)
        descs.append(kernel_desc('k3_kernel', 128))
```

```python
import sys
import os
sys.path.insert(0, os.path.dirname(os.path.abspath(__file__)))
from asmlib import Asm, vr, sr

WS_Q = 0
WS_K = 0x400000
WS_VT = 0x800000
WS_H = 0xC00000
WS_O = 0x1200000
WS_F = 0x1480000
WS_WD = 0x1700000
WS_WO = 0x18E0000
WS_END = 0x19B0000

LOG2E = 1.4426950408889634


def f32hex(x):
    import struct
    return '0x%08x' % struct.unpack('<I', struct.pack('<f', x))[0]


def make_srd(a, d, base_lo, base_hi, nrec):
    a('s_mov_b32 s%d, %s' % (d, base_lo))
    a('s_and_b32 s%d, %s, 0xffff' % (d + 1, base_hi))
    a('s_mov_b32 s%d, %s' % (d + 2, nrec if isinstance(nrec, str) else '0x%x' % nrec))
    a('s_mov_b32 s%d, 0x00020000' % (d + 3))


STAMP = os.environ.get('GEN_STAMP', '') != ''
_stamp_n = [0]


def stamp(a):
    if not STAMP:
        return
    i = _stamp_n[0]
    _stamp_n[0] += 1
    a.wait_lg_all()
    a('s_memtime s[%d:%d]' % (70 + 2 * i, 71 + 2 * i))
    a.wait_lg_all()


def stamp_reset(n=0):
    _stamp_n[0] = n


def rt_start(a):
    if not STAMP:
        return
    a('s_memrealtime s[92:93]')
    a('s_memtime s[90:91]')
    a.wait_lg_all()


def rt_end(a, wave_sreg, kidx):
    if not STAMP:
        return
    L = a.newlabel('nort')
    a('s_cmp_lg_u32 s%d, 0' % wave_sreg)
    a.branch('s_cbranch_scc1 %s' % L)
    a.wait_vm_all()
    a('s_memrealtime s[94:95]')
    a('s_memtime s[88:89]')
    a.wait_lg_all()
    a('s_mov_b32 s64, s12')
    a('s_and_b32 s65, s13, 0xffff')
    a('s_mov_b32 s66, 0x%x' % (WS_END + 65536))
    a('s_mov_b32 s67, 0x00020000')
    a('s_lshl_b32 s68, s2, 4')
    a('s_add_u32 s68, s68, %d' % (WS_END + kidx * 16384))
    a('v_mov_b32 v1, 0')
    a('v_mov_b32 v2, s92')
    a('v_mov_b32 v3, s94')
    a('s_sub_u32 s69, s88, s90')
    a('v_mov_b32 v4, s69')
    a('s_getreg_b32 s69, hwreg(HW_REG_XCC_ID)')
    a('v_mov_b32 v5, s69')
    a('buffer_store_dwordx4 v[2:5], v1, s[64:67], s68 offen')
    a.wait_vm_all()
    a.label(L)


def stamp_dump(a, wave_sreg):
    if not STAMP:
        return
    L = a.newlabel('nodump')
    a('s_cmp_lg_u32 s%d, 0' % wave_sreg)
    a.branch('s_cbranch_scc1 %s' % L)
    a('s_mov_b32 s68, 0')
    L2 = a.newlabel('dump')
    a('s_cmp_eq_u32 s2, 0')
    a.branch('s_cbranch_scc1 %s' % L2)
    a('s_mov_b32 s68, 64')
    a('s_cmp_eq_u32 s2, 101')
    a.branch('s_cbranch_scc1 %s' % L2)
    a('s_mov_b32 s68, 128')
    a('s_cmp_eq_u32 s2, 300')
    a.branch('s_cbranch_scc0 %s' % L)
    a.label(L2)
    a('s_load_dwordx2 s[64:65], s[0:1], 64')
    a.wait_lg_all()
    a('s_and_b32 s65, s65, 0xffff')
    a('s_mov_b32 s66, 256')
    a('s_mov_b32 s67, 0x00020000')
    a('v_mov_b32 v1, 0')
    for i in range(_stamp_n[0]):
        a('s_sub_u32 s69, s%d, s70' % (70 + 2 * i))
        a('v_mov_b32 v2, s69')
        a('buffer_store_dword v2, v1, s[64:67], s68 offen offset:%d' % (4 * i))
    a.wait_vm_all()
    a.label(L)


def bf16r_pair(a, dst_lo, dst_hi, src_lo, src_hi, tmp):
    a('v_cvt_pk_bf16_f32 v%d, v%d, v%d' % (tmp, src_lo, src_hi))
    a('v_lshlrev_b32 v%d, 16, v%d' % (dst_lo, tmp))
    a('v_and_b32 v%d, 0xffff0000, v%d' % (dst_hi, tmp))


K1_SLOT = 40960
K1_R2 = 24576
K1_STASH = 3 * K1_SLOT
K1_XS = 81920
K1_LDS = 163840
K1_CS = K1_STASH + 16384
K1_AB = K1_CS + 5120

V_DMA = 1
V_RD = 6
V_T = 11
V_B = 16
V_ACC = 56
V_A = 96


def k1_areg(tile, s):
    return V_A + (tile * 20 + s) * 4


XO = 66


def k1_xreg(rho, j):
    return (216 if j < 5 else 136) + (rho * 5 + (j % 5)) * 4


def k1_acc(j, tile):
    return V_ACC + (j * 2 + tile) * 4


def gen_k1(a):
    name = 'k1_kernel'
    a.raw('.globl %s' % name)
    a.raw('.p2align 8')
    a.raw('.type %s,@function' % name)
    a.raw('%s:' % name)
    L_end = '.k1_end'
    a('s_cmp_ge_u32 s2, 256')
    a.branch('s_cbranch_scc1 %s' % L_end)
    stamp_reset()
    rt_start(a)
    stamp(a)
    a('s_load_dwordx4 s[4:7], s[0:1], 0')
    a('s_load_dwordx4 s[8:11], s[0:1], 32')
    a('s_load_dwordx2 s[12:13], s[0:1], 72')
    a('s_load_dwordx2 s[64:65], s[0:1], 16')
    a('s_load_dwordx2 s[66:67], s[0:1], 48')
    a('s_and_b32 s32, s2, 7')
    a('s_lshr_b32 s33, s2, 3')
    a('s_and_b32 s34, s32, 1')
    a('s_lshl_b32 s34, s34, 3')
    a('s_and_b32 s35, s33, 7')
    a('s_add_u32 s34, s34, s35')
    a('s_lshr_b32 s35, s32, 1')
    a('s_lshl_b32 s35, s35, 2')
    a('s_lshr_b32 s36, s33, 3')
    a('s_add_u32 s35, s35, s36')
    a('v_lshrrev_b32 v11, 6, v0')
    a('v_readfirstlane_b32 s36, v11')
    a('v_and_b32 v0, 63, v0')
    a('s_and_b32 s37, s36, 3')
    a('s_lshr_b32 s38, s36, 2')
    a('s_lshl_b32 s39, s34, 7')
    a('s_lshl_b32 s40, s37, 5')
    a('s_add_u32 s39, s39, s40')
    a.wait_lg_all()
    make_srd(a, 24, 's4', 's5', 2048 * 1280)
    make_srd(a, 28, 's12', 's13', WS_END)
    a('v_and_b32 v11, 15, v0')
    a('v_lshrrev_b32 v12, 4, v0')
    a('s_mul_i32 s40, s36, 640')
    for i in range(10):
        a('v_add_u32 v16, s40, v0')
        if i:
            a('v_add_u32 v16, %d, v16' % (64 * i))
        a('v_mul_u32_u24 v17, 52429, v16')
        a('v_lshrrev_b32 v17, 21, v17')
        a('v_mul_u32_u24 v18, 40, v17')
        a('v_sub_u32 v18, v16, v18')
        a('v_bfe_u32 v19, v17, 1, 3')
        a('v_xor_b32 v18, v18, v19')
        a('v_mul_u32_u24 v17, 1280, v17')
        a('v_lshl_add_u32 v%d, v18, 4, v17' % (XO + i))
    a('s_mul_i32 s40, s34, %d' % (128 * 1280))
    a('s_add_u32 s41, s40, 640')
    a('s_mul_i32 s53, s36, 10240')
    a('s_add_u32 s53, s53, %d' % K1_XS)

    def x_dma(half):
        for i in range(10):
            a('s_add_u32 m0, s53, %d' % (i * 1024))
            a('buffer_load_dwordx4 v%d, s[24:27], s%d offen lds' % (XO + i, 40 + half), tag=('X', half))
    x_dma(0)
    for i in range(10):
        a('buffer_load_dwordx4 %s, v%d, s[24:27], s41 offen' % (vr(136 + i * 4, 4), XO + i), tag=('X', 1))
    L_gu = a.newlabel('k1gu')
    L_par = a.newlabel('k1par')
    a('s_cmp_ge_u32 s35, 6')
    a.branch('s_cbranch_scc1 %s' % L_gu)
    a('s_movk_i32 s42, 3840')
    a('s_mul_i32 s43, s35, 640')
    a('s_add_u32 s16, s6, s43')
    a('s_addc_u32 s17, s7, 0')
    a('s_sub_u32 s18, %d, s43' % (640 * 3840))
    a('s_add_u32 s43, s43, 192')
    a('s_movk_i32 s56, 512')
    a('s_add_u32 s20, s6, s43')
    a('s_addc_u32 s21, s7, 0')
    a('s_sub_u32 s22, %d, s43' % (640 * 3840))
    a('s_mov_b32 s44, 0')
    a('s_mov_b32 s45, 10')
    a.branch('s_branch %s' % L_par)
    a.label(L_gu)
    a('s_movk_i32 s42, 3072')
    a('s_sub_u32 s43, s35, 6')
    a('s_mul_i32 s44, s43, 10')
    a('s_movk_i32 s56, 192')
    a('s_cmp_lt_u32 s43, 9')
    a('s_cselect_b32 s45, 10, 6')
    a('s_lshl_b32 s43, s44, 5')
    a('s_add_u32 s16, s8, s43')
    a('s_addc_u32 s17, s9, 0')
    a('s_sub_u32 s18, %d, s43' % (640 * 3072))
    a('s_add_u32 s20, s10, s43')
    a('s_addc_u32 s21, s11, 0')
    a('s_sub_u32 s22, %d, s43' % (640 * 3072))
    a.label(L_par)
    a('s_and_b32 s17, s17, 0xffff')
    a('s_and_b32 s21, s21, 0xffff')
    a('s_mov_b32 s19, 0x00020000')
    a('s_mov_b32 s23, 0x00020000')
    a('s_lshl_b32 s46, s42, 7')
    a('s_mul_i32 s47, s36, 3072')
    a('s_lshl_b32 s48, s36, 11')
    a('s_add_u32 s48, s48, %d' % K1_R2)
    a('s_mul_i32 s49, s36, 192')
    for i in range(3):
        a('v_add_u32 v16, s49, v0')
        if i:
            a('v_add_u32 v16, %d, v16' % (64 * i))
        a('v_mul_u32_u24 v17, 43691, v16')
        a('v_lshrrev_b32 v17, 19, v17')
        a('v_mul_u32_u24 v18, 12, v17')
        a('v_sub_u32 v18, v16, v18')
        a('v_lshrrev_b32 v19, 1, v18')
        a('v_bfe_u32 v20, v17, 3, 1')
        a('v_xor_b32 v19, v19, v20')
        a('v_and_b32 v18, 1, v18')
        a('v_lshlrev_b32 v18, 4, v18')
        a('v_lshl_add_u32 v18, v19, 5, v18')
        a('v_mul_lo_u32 v17, v17, s42')
        a('v_add_u32 v%d, v17, v18' % (V_DMA + i))
    a('s_lshl_b32 s49, s36, 7')
    for i in range(2):
        a('v_add_u32 v16, s49, v0')
        if i:
            a('v_add_u32 v16, %d, v16' % (64 * i))
        a('v_lshrrev_b32 v17, 3, v16')
        a('v_and_b32 v18, 7, v16')
        a('v_lshrrev_b32 v19, 1, v18')
        a('v_bfe_u32 v20, v17, 1, 1')
        a('v_bfe_u32 v21, v17, 3, 1')
        a('v_lshl_or_b32 v20, v21, 1, v20')
        a('v_xor_b32 v19, v19, v20')
        a('v_and_b32 v18, 1, v18')
        a('v_lshlrev_b32 v18, 4, v18')
        a('v_lshl_add_u32 v18, v19, 5, v18')
        a('v_mul_lo_u32 v17, v17, s42')
        a('v_add_u32 v%d, v17, v18' % (V_DMA + 3 + i))

    def issue_dma(t):
        p, st = divmod(t, 5)
        slot = t % 3
        a('s_mul_i32 s50, s46, %d' % st)
        if p:
            a('s_add_u32 s51, s50, s56')
            a('s_add_u32 s50, s50, 128')
        else:
            a('s_mov_b32 s51, s50')
        srd1, srd2 = (16, 20) if p == 0 else (20, 16)
        for i in range(3):
            a('s_add_u32 m0, s47, %d' % (slot * K1_SLOT + i * 1024))
            a('buffer_load_dwordx4 v%d, %s, s50 offen lds' % (V_DMA + i, sr(srd1, 4)), tag=('D', t))
        for i in range(2):
            a('s_add_u32 m0, s48, %d' % (slot * K1_SLOT + i * 1024))
            a('buffer_load_dwordx4 v%d, %s, s51 offen lds' % (V_DMA + 3 + i, sr(srd2, 4)), tag=('D', t))

    for t in range(2):
        issue_dma(t)

    a('s_lshl_b32 s57, s2, 9')
    a('s_lshl_b32 s58, s36, 6')
    a('s_add_u32 s57, s57, s58')
    a('s_cmp_lt_u32 s57, 122880')
    a('s_cselect_b32 s60, s66, s64')
    a('s_cselect_b32 s61, s67, s65')
    a('s_cselect_b32 s62, %d, s57' % 0 if False else 's_cselect_b32 s58, 0, 1')
    a('s_and_b32 s61, s61, 0xffff')
    a('s_mov_b32 s63, 0x00020000')
    a('s_mul_i32 s59, s58, 122880')
    a('s_sub_u32 s57, s57, s59')
    a('s_cmp_eq_u32 s58, 0')
    a('s_cselect_b32 s62, %d, %d' % (1536 * 1280, 0) if False else 's_mov_b32 s62, %d' % (640 * 1280))
    a('s_cselect_b32 s62, %d, s62' % (1536 * 1280))
    a('s_mov_b32 s59, 640')
    a('s_cselect_b32 s59, 1536, s59')
    a('s_mov_b32 s68, %d' % WS_WO)
    a('s_cselect_b32 s68, %d, s68' % WS_WD)

    def repack_dst(c, dst, R):
        a('s_mov_b32 s69, 53687092')
        a('v_mul_hi_u32 v24, v%d, s69' % c)
        a('v_mul_u32_u24 v25, 80, v24')
        a('v_sub_u32 v25, v%d, v25' % c)
        a('v_mul_u32_u24 v26, 205, v25')
        a('v_lshrrev_b32 v26, 11, v26')
        a('v_mul_u32_u24 v27, 10, v26')
        a('v_sub_u32 v25, v25, v27')
        a('v_mul_lo_u32 v26, v26, %s' % R)
        a('v_add_u32 v24, v24, v26')
        a('v_mul_u32_u24 v24, 160, v24')
        a('v_lshl_add_u32 v%d, v25, 4, v24' % dst)
    a('v_add_u32 v64, s57, v0')
    a('v_lshlrev_b32 v22, 4, v64')
    a('buffer_load_dwordx4 v[56:59], v22, s[60:63], 0 offen', tag='RP')
    repack_dst(64, 64, 's59')
    a('v_add_u32 v64, s68, v64')
    a('s_mov_b32 s60, s64')
    a('s_and_b32 s61, s65, 0xffff')
    a('s_mov_b32 s62, %d' % (640 * 1280))
    a('s_lshl_b32 s57, s2, 9')
    a('s_lshl_b32 s58, s36, 6')
    a('s_add_u32 s57, s57, s58')
    a('s_add_u32 s57, s57, 8192')
    a('v_add_u32 v65, s57, v0')
    a('v_lshlrev_b32 v22, 4, v65')
    a('buffer_load_dwordx4 v[60:63], v22, s[60:63], 0 offen', tag='RP')
    a('v_cmp_gt_u32 vcc, 51200, v65')
    a('s_mov_b32 s59, 640')
    repack_dst(65, 65, 's59')
    a('v_add_u32 v65, %d, v65' % WS_WO)
    a('v_mov_b32 v24, 0x40000000')
    a('v_cndmask_b32 v65, v24, v65, vcc')
    stamp(a)
    a('s_lshl_b32 s50, s37, 5')
    for tile in range(2):
        a('v_add_u32 v24, s50, v11')
        if tile:
            a('v_add_u32 v24, 16, v24')
        a('v_bfe_u32 v25, v24, 1, 3')
        a('v_xor_b32 v25, v25, v12')
        a('v_mul_u32_u24 v24, 640, v24')
        a('v_add_u32 v24, %d, v24' % K1_XS)
        a('v_lshl_add_u32 v%d, v25, 4, v24' % (20 + tile * 2))
        a('v_xor_b32 v25, 4, v25')
        a('v_lshl_add_u32 v%d, v25, 4, v24' % (21 + tile * 2))
    for r in range(16, 20):
        a('v_mov_b32 v%d, 0' % r)
    a('s_mov_b32 s69, 0x3f803f80')
    a('v_lshl_add_u32 v26, v0, 4, s53')
    for half in range(2):
        if half == 0:
            a.wait_vm(('X', 0))
        a('s_barrier')
        for sp in range(10):
            for tile in range(2):
                a('ds_read_b128 %s, v%d offset:%d' % (vr(k1_areg(tile, half * 10 + sp), 4), 20 + tile * 2 + (sp & 1), (sp >> 1) * 128),
                  tag=('xr', sp, tile))
        if half == 0:
            a.wait_lg_all()
            a('s_barrier')
            a.wait_vm(('X', 1))
            for i in range(10):
                a('ds_write_b128 v26, %s offset:%d' % (vr(136 + i * 4, 4), i * 1024), tag='xw')
        for sp in range(10):
            for tile in range(2):
                a.wait_lg(('xr', sp, tile))
                base = k1_areg(tile, half * 10 + sp)
                for q in range(4):
                    a('v_dot2_f32_bf16 v%d, v%d, s69, v%d' % (16 + tile * 2, base + q, 16 + tile * 2))
                    a('v_dot2_f32_bf16 v%d, v%d, v%d, v%d' % (17 + tile * 2, base + q, base + q, 17 + tile * 2))
        a.wait_lg_all()
    stamp(a)
    a('v_xor_b32 v21, 16, v0')
    a('v_lshlrev_b32 v21, 2, v21')
    a('v_xor_b32 v22, 32, v0')
    a('v_lshlrev_b32 v22, 2, v22')
    for addr in (21, 22):
        for r in range(4):
            a('ds_bpermute_b32 v%d, v%d, v%d' % (24 + r, addr, 16 + r), tag='bp')
        a.wait_lg_all()
        for r in range(4):
            a('v_add_f32 v%d, v%d, v%d' % (16 + r, 16 + r, 24 + r))
    inv = f32hex(1.0 / 640.0)
    for tile in range(2):
        su, sq = 16 + tile * 2, 17 + tile * 2
        R = 28 + 2 * tile
        a('v_mul_f32 v24, %s, v%d' % (inv, su))
        a('v_mul_f32 v25, %s, v%d' % (inv, sq))
        a('v_fma_f32 v25, -v24, v24, v25')
        a('v_max_f32 v25, 0, v25')
        bf16r_pair(a, 24, 25, 24, 25, 26)
        a('v_add_f32 v25, %s, v25' % f32hex(1e-5))
        a('v_cvt_pk_bf16_f32 v26, v25, v25')
        a('v_lshlrev_b32 v25, 16, v26')
        a('v_sqrt_f32 v25, v25')
        a('v_cvt_pk_bf16_f32 v26, v25, v25')
        a('v_lshlrev_b32 v25, 16, v26')
        a('v_rcp_f32 v%d, v25' % R)
        a('v_mul_f32 v%d, v24, v%d' % (R + 1, R))
        a('v_sub_f32 v%d, 0, v%d' % (R + 1, R + 1))
    a('s_barrier')
    a('s_lshl_b32 s50, s36, 8')
    a('s_add_u32 s50, s50, %d' % K1_AB)
    a('v_lshlrev_b32 v24, 3, v11')
    a('v_add_u32 v24, s50, v24')
    a('ds_write_b64 v24, v[28:29] offset:0', tag='ab')
    a('ds_write_b64 v24, v[30:31] offset:128', tag='ab')
    a.wait_vm('RP')
    a('buffer_store_dwordx4 v[56:59], v64, s[28:31], 0 offen', tag='st')
    a('buffer_store_dwordx4 v[60:63], v65, s[28:31], 0 offen', tag='st')
    stamp(a)
    L_v = a.newlabel('k1v')
    L_g = a.newlabel('k1g')
    a('s_cmp_ge_u32 s35, 6')
    a.branch('s_cbranch_scc1 %s' % L_g)
    a('s_cmp_ge_u32 s35, 4')
    a.branch('s_cbranch_scc1 %s' % L_v)
    saved = (list(a.vm), list(a.lg))
    sn = _stamp_n[0]
    k1_body(a, 'qk')
    a.branch('s_branch %s' % L_end)
    a.label(L_v)
    a.vm, a.lg = list(saved[0]), list(saved[1])
    stamp_reset(sn)
    k1_body(a, 'v')
    a.branch('s_branch %s' % L_end)
    a.label(L_g)
    a.vm, a.lg = list(saved[0]), list(saved[1])
    stamp_reset(sn)
    k1_body(a, 'gu')
    a.label(L_end)
    a('s_endpgm')


def k1_body(a, kind):
    def issue_dma(t):
        p, st = divmod(t, 5)
        slot = t % 3
        a('s_mul_i32 s50, s46, %d' % st)
        if p:
            a('s_add_u32 s51, s50, s56')
            a('s_add_u32 s50, s50, 128')
        else:
            a('s_mov_b32 s51, s50')
        srd1, srd2 = (16, 20) if p == 0 else (20, 16)
        for i in range(3):
            a('s_add_u32 m0, s47, %d' % (slot * K1_SLOT + i * 1024))
            a('buffer_load_dwordx4 v%d, %s, s50 offen lds' % (V_DMA + i, sr(srd1, 4)), tag=('D', t))
        for i in range(2):
            a('s_add_u32 m0, s48, %d' % (slot * K1_SLOT + i * 1024))
            a('buffer_load_dwordx4 v%d, %s, s51 offen lds' % (V_DMA + 3 + i, sr(srd2, 4)), tag=('D', t))

    cur_slot = [0]
    R1MAP = [[(0, 2), (1, 3), (4, 5)], [(0, 1), (2, 4), (3, 5)]]

    def read_addrs(p):
        a('v_lshrrev_b32 v22, 4, v0')
        a('v_bfe_u32 v16, v0, 2, 2')
        a('v_and_b32 v17, 3, v0')
        a('v_lshl_add_u32 v18, v22, 3, v16')
        a('v_and_b32 v19, 1, v22')
        a('v_mul_u32_u24 v21, 192, v18')
        a('v_lshl_add_u32 v21, v17, 3, v21')
        base = cur_slot[0] * K1_SLOT
        if base:
            a('v_add_u32 v21, %d, v21' % base)
        for j in range(3):
            a('s_cmp_eq_u32 s38, 0')
            a('s_cselect_b32 s50, %d, %d' % R1MAP[p][j])
            a('v_xor_b32 v20, s50, v19')
            a('v_lshl_add_u32 v%d, v20, 5, v21' % (V_RD + j))
        a('v_lshrrev_b32 v20, 1, v16')
        a('v_lshl_or_b32 v19, v19, 1, v20')
        a('v_lshlrev_b32 v21, 7, v18')
        a('v_lshl_add_u32 v21, v17, 3, v21')
        a('v_add_u32 v21, %d, v21' % (base + K1_R2))
        a('s_lshl_b32 s49, s38, 1')
        for j in range(2):
            a('s_add_u32 s50, s49, %d' % j)
            a('v_xor_b32 v20, s50, v19')
            a('v_lshl_add_u32 v%d, v20, 5, v21' % (V_RD + 3 + j))

    def set_slot(slot):
        d = (slot - cur_slot[0]) * K1_SLOT
        if d:
            for j in range(5):
                if d > 0:
                    a('v_add_u32 v%d, %d, v%d' % (V_RD + j, d, V_RD + j))
                else:
                    a('v_subrev_u32 v%d, %d, v%d' % (V_RD + j, -d, V_RD + j))
        cur_slot[0] = slot

    def read_unit(n, j):
        ks = n % 4
        b = V_B + (n % 2) * 20 + j * 4
        if j < 3:
            o = ks * 6144
            a('ds_read_b64_tr_b16 %s, v%d offset:%d' % (vr(b, 2), V_RD + j, o), tag=('B', n, j))
            a('ds_read_b64_tr_b16 %s, v%d offset:%d' % (vr(b + 2, 2), V_RD + j, o + 768), tag=('B', n, j))
        else:
            o = ks * 4096
            a('ds_read_b64_tr_b16 %s, v%d offset:%d' % (vr(b, 2), V_RD + j, o), tag=('B', n, j))
            a('ds_read_b64_tr_b16 %s, v%d offset:%d' % (vr(b + 2, 2), V_RD + j, o + 512), tag=('B', n, j))

    def stage_enter(t):
        a.wait_lg_all()
        a.wait_vm(('D', t))
        a('s_barrier')
        if t + 2 <= 9:
            issue_dma(t + 2)
        if t % 5 == 0:
            cur_slot[0] = t % 3
            read_addrs(t // 5)
        else:
            set_slot(t % 3)

    stage_enter(0)
    stamp(a)
    for j in range(5):
        read_unit(0, j)
    for n in range(40):
        p, s = divmod(n, 20)
        nxt = n + 1
        if s == 0:
            for j in range(5):
                a('v_mov_b32 v%d, 0' % (11 + j))
        if nxt < 40 and nxt % 4 == 0:
            stage_enter(nxt // 4)
        L_cs = a.newlabel('k1cs')
        a('s_cmp_eq_u32 s37, %d' % (s % 4))
        a.branch('s_cbranch_scc0 %s' % L_cs, flush=False)
        sv = list(a.lg)
        a.wait_lg(('B', n, 4))
        for q in range(4):
            for j in range(5):
                b = V_B + (n % 2) * 20 + j * 4
                a('v_dot2_f32_bf16 v%d, v%d, s69, v%d' % (11 + j, b + q, 11 + j))
        a.lg = sv
        a.label(L_cs, flush=False)
        for j in range(5):
            a.wait_lg(('B', n, j))
            b = V_B + (n % 2) * 20 + j * 4
            for tile in range(2):
                acc = vr(k1_acc(j, tile), 4)
                c = acc if s else '0'
                A = vr(k1_areg(tile, s), 4)
                B = vr(b, 4)
                if kind == 'v':
                    a('v_mfma_f32_16x16x32_bf16 %s, %s, %s, %s' % (acc, A, B, c))
                else:
                    a('v_mfma_f32_16x16x32_bf16 %s, %s, %s, %s' % (acc, B, A, c))
            if nxt < 40:
                read_unit(nxt, j)
        if s == 19:
            stamp(a)
            R1MAP = [[(0, 2), (1, 3), (4, 5)], [(0, 1), (2, 4), (3, 5)]]
            a('v_xor_b32 v36, 16, v0')
            a('v_lshlrev_b32 v36, 2, v36')
            a('v_xor_b32 v37, 32, v0')
            a('v_lshlrev_b32 v37, 2, v37')
            for addr in (36, 37):
                for j in range(5):
                    a('ds_bpermute_b32 v%d, v%d, v%d' % (40 + j, addr, 11 + j), tag='bp')
                a.wait_lg_all()
                for j in range(5):
                    a('v_add_f32 v%d, v%d, v%d' % (11 + j, 11 + j, 40 + j))
            a('v_and_b32 v36, 15, v0')
            a('v_lshlrev_b32 v36, 2, v36')
            a('s_mul_i32 s51, s37, 1280')
            for j in range(5):
                u0, u1 = R1MAP[p][j] if j < 3 else (6 + (j - 3), 8 + (j - 3))
                a('s_cmp_eq_u32 s38, 0')
                a('s_cselect_b32 s50, %d, %d' % (u0, u1))
                a('s_lshl_b32 s50, s50, 6')
                a('s_add_u32 s50, s50, s51')
                a('s_add_u32 s50, s50, %d' % (K1_CS + p * 640))
                a('v_add_u32 v37, s50, v36')
                a('ds_write_b32 v37, v%d' % (11 + j), tag='csa')
            a.wait_lg_all()
            a('s_barrier')
            a('v_and_b32 v11, 15, v0')
            a('v_lshrrev_b32 v12, 4, v0')
            k1_lnfix(a, kind, p)
            k1_epilogue(a, kind, p)
            stamp(a)
    if STAMP:
        a.wait_vm_all()
        stamp(a)
    stamp_dump(a, 36)
    rt_end(a, 36, 0)


def k1_lnfix(a, kind, p):
    R1MAP = [[(0, 2), (1, 3), (4, 5)], [(0, 1), (2, 4), (3, 5)]]
    a('s_lshl_b32 s50, s36, 8')
    a('s_add_u32 s50, s50, %d' % K1_AB)
    if kind != 'v':
        a('v_lshl_add_u32 v36, v11, 3, s50')
        a('ds_read_b64 v[40:41], v36 offset:0', tag='ab')
        a('ds_read_b64 v[42:43], v36 offset:128', tag='ab')
        a('v_lshlrev_b32 v37, 4, v12')
        for j in range(5):
            u0, u1 = R1MAP[p][j] if j < 3 else (6 + (j - 3), 8 + (j - 3))
            a('s_cmp_eq_u32 s38, 0')
            a('s_cselect_b32 s51, %d, %d' % (u0, u1))
            a('s_lshl_b32 s51, s51, 6')
            a('s_add_u32 s51, s51, %d' % (K1_CS + p * 640))
            a('v_add_u32 v38, s51, v37')
            c = 44
            for rg in range(3):
                a('ds_read_b128 %s, v38 offset:%d' % (vr(c + rg * 4, 4), rg * 1280), tag='cs')
            a.wait_lg_all()
            for r in range(4):
                a('v_add_f32 v%d, v%d, v%d' % (c + r, c + r, c + 4 + r))
            a('ds_read_b128 %s, v38 offset:%d' % (vr(c + 4, 4), 3 * 1280), tag='cs')
            for r in range(4):
                a('v_add_f32 v%d, v%d, v%d' % (c + r, c + r, c + 8 + r))
            a.wait_lg_all()
            for r in range(4):
                a('v_add_f32 v%d, v%d, v%d' % (c + r, c + r, c + 4 + r))
            for tile in range(2):
                ac = k1_acc(j, tile)
                for r in range(4):
                    a('v_mul_f32 v%d, v%d, v%d' % (ac + r, 40 + 2 * tile, ac + r))
                for r in range(4):
                    a('v_fma_f32 v%d, v%d, v%d, v%d' % (ac + r, 41 + 2 * tile, c + r, ac + r))
    else:
        a('v_lshl_add_u32 v36, v12, 5, s50')
        for tile in range(2):
            a('ds_read_b128 %s, v36 offset:%d' % (vr(40 + tile * 8, 4), tile * 128), tag='ab')
            a('ds_read_b128 %s, v36 offset:%d' % (vr(44 + tile * 8, 4), tile * 128 + 16), tag='ab')
        a('v_lshlrev_b32 v37, 2, v11')
        for j in range(5):
            u0, u1 = R1MAP[p][j] if j < 3 else (6 + (j - 3), 8 + (j - 3))
            a('s_cmp_eq_u32 s38, 0')
            a('s_cselect_b32 s51, %d, %d' % (u0, u1))
            a('s_lshl_b32 s51, s51, 6')
            a('s_add_u32 s51, s51, %d' % (K1_CS + p * 640))
            a('v_add_u32 v38, s51, v37')
            a('ds_read_b32 v39, v38', tag='cs')
            a('ds_read_b32 v13, v38 offset:1280', tag='cs')
            a('ds_read_b32 v14, v38 offset:2560', tag='cs')
            a('ds_read_b32 v15, v38 offset:3840', tag='cs')
            a.wait_lg_all()
            a('v_add_f32 v39, v39, v13')
            a('v_add_f32 v14, v14, v15')
            a('v_add_f32 v39, v39, v14')
            for tile in range(2):
                ac = k1_acc(j, tile)
                for r in range(4):
                    a('v_mul_f32 v%d, v%d, v%d' % (ac + r, 40 + tile * 8 + 2 * r, ac + r))
                for r in range(4):
                    a('v_fma_f32 v%d, v%d, v39, v%d' % (ac + r, 41 + tile * 8 + 2 * r, ac + r))


def k1_epilogue(a, kind, p):
    T = 36
    R1MAP = [[(0, 2), (1, 3), (4, 5)], [(0, 1), (2, 4), (3, 5)]]
    if p == 0:
        units = [R1MAP[0][j] for j in range(3)] + [(6, 8), (7, 9)]
    else:
        units = [(10 + R1MAP[1][j][0], 10 + R1MAP[1][j][1]) for j in range(3)] + [(16, 18), (17, 19)]
    if kind == 'qk':
        a('s_and_b32 s52, s35, 1')
        a('s_mul_i32 s52, s52, 80')
        a('s_lshr_b32 s53, s35, 1')
        a('s_mul_i32 s53, s53, %d' % WS_K)
        a('s_lshl_b32 s55, s39, 6')
        a('s_add_u32 s53, s53, s55')
        a('v_lshlrev_b32 v13, 4, v11')
        for j in range(5):
            a('s_cmp_eq_u32 s38, 0')
            a('s_cselect_b32 s54, %d, %d' % (units[j][0], units[j][1]))
            a('s_lshl_b32 s54, s54, 2')
            a('s_add_u32 s54, s54, s52')
            a('v_add_u32 v%d, s54, v12' % T)
            a('v_mul_u32_u24 v%d, 205, v%d' % (T + 1, T))
            a('v_lshrrev_b32 v%d, 10, v%d' % (T + 1, T + 1))
            a('v_mul_u32_u24 v%d, 5, v%d' % (T + 2, T + 1))
            a('v_sub_u32 v%d, v%d, v%d' % (T + 2, T, T + 2))
            a('v_and_b32 v%d, 3, v%d' % (T + 3, T + 2))
            a('v_lshrrev_b32 v%d, 2, v%d' % (T + 2, T + 2))
            a('v_lshlrev_b32 v%d, 17, v%d' % (T + 1, T + 1))
            a('v_lshl_add_u32 v%d, v%d, 8, v%d' % (T + 1, T + 3, T + 1))
            a('v_lshl_add_u32 v%d, v%d, 3, v%d' % (T + 1, T + 2, T + 1))
            a('v_add_u32 v%d, v%d, v13' % (T + 1, T + 1))
            for tile in range(2):
                ac = k1_acc(j, tile)
                d = T + 4 + tile * 2
                a('v_cvt_pk_bf16_f32 v%d, v%d, v%d' % (d, ac, ac + 1))
                a('v_cvt_pk_bf16_f32 v%d, v%d, v%d' % (d + 1, ac + 2, ac + 3))
                a('buffer_store_dwordx2 %s, v%d, s[28:31], s53 offen offset:%d' % (vr(d, 2), T + 1, tile * 1024), tag='st')
            T = 36 + ((T - 36 + 8) % 16)
    elif kind == 'v':
        a('s_sub_u32 s52, s35, 4')
        a('s_mul_i32 s52, s52, 320')
        a('s_lshl_b32 s53, s39, 6')
        a('s_add_u32 s53, s53, %d' % WS_VT)
        a('v_lshlrev_b32 v13, 8, v12')
        for j in range(5):
            a('s_cmp_eq_u32 s38, 0')
            a('s_cselect_b32 s54, %d, %d' % (units[j][0], units[j][1]))
            a('s_lshl_b32 s54, s54, 4')
            a('s_add_u32 s54, s54, s52')
            a('v_add_u32 v%d, s54, v11' % (T + 4))
            a('v_mul_u32_u24 v%d, 3277, v%d' % (T + 5, T + 4))
            a('v_lshrrev_b32 v%d, 16, v%d' % (T + 5, T + 5))
            a('v_mul_u32_u24 v%d, 20, v%d' % (T + 6, T + 5))
            a('v_sub_u32 v%d, v%d, v%d' % (T + 6, T + 4, T + 6))
            a('v_lshrrev_b32 v%d, 4, v%d' % (T + 7, T + 6))
            a('v_and_b32 v%d, 15, v%d' % (T + 6, T + 6))
            a('v_lshlrev_b32 v%d, 17, v%d' % (T + 5, T + 5))
            a('v_lshl_add_u32 v%d, v%d, 10, v%d' % (T + 5, T + 7, T + 5))
            a('v_lshl_add_u32 v%d, v%d, 4, v%d' % (T + 5, T + 6, T + 5))
            a('v_add_u32 v%d, v%d, v13' % (T + 5, T + 5))
            d = T
            for tile in range(2):
                ac = k1_acc(j, tile)
                a('v_cvt_pk_bf16_f32 v%d, v%d, v%d' % (d + tile * 2, ac, ac + 1))
                a('v_cvt_pk_bf16_f32 v%d, v%d, v%d' % (d + tile * 2 + 1, ac + 2, ac + 3))
            a('buffer_store_dwordx4 %s, v%d, s[28:31], s53 offen' % (vr(d, 4), T + 5), tag='st')
            T = 36 + ((T - 36 + 8) % 16)
    else:
        a('v_lshlrev_b32 v13, 4, v0')
        a('s_lshr_b32 s52, s39, 4')
        a('s_mul_i32 s52, s52, %d' % (48 * 1024))
        a('s_add_u32 s52, s52, %d' % WS_H)
        a('s_lshl_b32 s55, s36, 11')
        a('s_add_u32 s55, s55, %d' % K1_STASH)
        a('v_add_u32 v14, s55, v13')

        def silu_mul(g0, u0, dst):
            t = 36
            bf16r_pair(a, t, t + 1, g0, g0 + 1, t + 8)
            bf16r_pair(a, t + 2, t + 3, g0 + 2, g0 + 3, t + 9)
            bf16r_pair(a, t + 4, t + 5, u0, u0 + 1, t + 10)
            bf16r_pair(a, t + 6, t + 7, u0 + 2, u0 + 3, t + 11)
            for r in range(4):
                a('v_mul_f32 v%d, %s, v%d' % (t + 8 + r, f32hex(-LOG2E), t + r))
            for r in range(4):
                a('v_exp_f32 v%d, v%d' % (t + 8 + r, t + 8 + r))
            for r in range(4):
                a('v_add_f32 v%d, 1.0, v%d' % (t + 8 + r, t + 8 + r))
            for r in range(4):
                a('v_rcp_f32 v%d, v%d' % (t + 8 + r, t + 8 + r))
            for r in range(4):
                a('v_mul_f32 v%d, v%d, v%d' % (t + r, t + r, t + 8 + r))
            bf16r_pair(a, t, t + 1, t, t + 1, t + 8)
            bf16r_pair(a, t + 2, t + 3, t + 2, t + 3, t + 9)
            for r in range(4):
                a('v_mul_f32 v%d, v%d, v%d' % (t + r, t + r, t + 4 + r))
            a('v_cvt_pk_bf16_f32 v%d, v%d, v%d' % (dst, t, t + 1))
            a('v_cvt_pk_bf16_f32 v%d, v%d, v%d' % (dst + 1, t + 2, t + 3))

        def two_pairs(pair0, ga, ua, gb, ub):
            a('s_lshl_b32 s54, s38, 1')
            a('s_add_u32 s54, s54, s44')
            a('s_add_u32 s54, s54, %d' % pair0)
            a('s_lshl_b32 s54, s54, 9')
            a('s_add_u32 s54, s54, s52')
            a('s_add_u32 s55, s54, %d' % (48 * 1024))
            for tile in range(2):
                d = 48 if tile == 0 else 52
                silu_mul(k1_acc(ga, tile), k1_acc(ua, tile), d)
                silu_mul(k1_acc(gb, tile), k1_acc(ub, tile), d + 2)
                a('buffer_store_dwordx4 %s, v13, s[28:31], s%d offen' % (vr(d, 4), 54 + tile), tag='st')

        if p == 0:
            a('ds_write_b128 v14, %s offset:0' % vr(k1_acc(2, 0), 4), tag='stash')
            a('ds_write_b128 v14, %s offset:1024' % vr(k1_acc(2, 1), 4), tag='stash')
            two_pairs(0, 0, 3, 1, 4)
        else:
            a('ds_read_b128 v[48:51], v14 offset:0', tag='stash')
            a('ds_read_b128 v[52:55], v14 offset:1024', tag='stash')
            a.wait_lg('stash')
            a('s_add_u32 s54, s44, s38')
            a('s_add_u32 s54, s54, 4')
            a('s_lshr_b32 s55, s54, 1')
            a('s_lshl_b32 s55, s55, 10')
            a('s_and_b32 s54, s54, 1')
            a('s_lshl_b32 s54, s54, 3')
            a('s_add_u32 s54, s54, s55')
            a('s_add_u32 s54, s54, s52')
            a('s_add_u32 s55, s54, %d' % (48 * 1024))
            for tile in range(2):
                d = k1_acc(0, tile)
                silu_mul(48 + tile * 4, k1_acc(0, tile), d)
                a('buffer_store_dwordx2 %s, v13, s[28:31], s%d offen' % (vr(d, 2), 54 + tile), tag='st')
            L_skip = a.newlabel('k1skip')
            a('s_cmp_lt_u32 s45, 10')
            a.branch('s_cbranch_scc1 %s' % L_skip)
            two_pairs(6, 3, 1, 4, 2)
            a.label(L_skip)


def kernel_desc(name, vgpr, sgpr=96):
    return '''.section .rodata,"a"
.p2align 6
.amdhsa_kernel %s
  .amdhsa_next_free_vgpr %d
  .amdhsa_next_free_sgpr %d
  .amdhsa_accum_offset %d
  .amdhsa_group_segment_fixed_size 0
  .amdhsa_kernarg_size 80
  .amdhsa_user_sgpr_count 2
  .amdhsa_user_sgpr_kernarg_segment_ptr 1
  .amdhsa_system_sgpr_workgroup_id_x 1
.end_amdhsa_kernel
.text
''' % (name, vgpr, sgpr, (vgpr + 3) // 4 * 4)


HEADER = '''; Kernarg layout (80 bytes): A_x, A_wqkv, A_wo, B_x, B_w_gate, B_w_up, B_w_down, d_out, d_debug, d_ws
'''


def main():
    launches = []
    a = Asm()
    a.raw('.amdgcn_target "amdgcn-amd-amdhsa--gfx950"')
    a.raw('.text')
    which = os.environ.get('GEN_KERNELS', '123')
    descs = []
    if '1' in which:
        gen_k1(a)
        launches.append('; @launch kernel=k1_kernel grid=(256,1,1) block=(512,1,1) lds=%d' % K1_LDS)
        descs.append(kernel_desc('k1_kernel', 256))
    try:
        import gen2
        gen2.emit(a, launches, descs, which)
    except ImportError:
        pass
    out = HEADER + '\n'.join(launches) + '\n' + a.text() + ''.join(descs)
    path = sys.argv[1] if len(sys.argv) > 1 else 'parallel_sum__sliding_block__swiglu_ffn__prompt.s'
    open(path, 'w').write(out)
    print('wrote', path, len(out), 'bytes')


if __name__ == '__main__':
    main()
```

```python
import os
from asmlib import Asm, vr, sr
from gen import (WS_Q, WS_K, WS_VT, WS_H, WS_O, WS_F, WS_WD, WS_WO, WS_END, WS_CNT, LOG2E, f32hex, make_srd, bf16r_pair,
                 kernel_desc, rt_start, rt_end, stamp, stamp_reset, stamp_dump)

G_SLOT = 20480
K2_LDS = 81920
K3_LDS = 102400


def gemm_fused(a, wg_sreg):
    NS1, NS = 12, 17
    RING = 4
    AR = 4
    V_L16 = 1
    V_RD = 2
    V_RD2 = 3
    V_B = 16
    V_ACC = 56
    V_A = 96
    stamp_reset()
    stamp(a)
    if os.environ.get('GEN_GPRIO'):
        a('s_setprio %s' % os.environ['GEN_GPRIO'])
    a('s_load_dwordx2 s[6:7], s[0:1], 0')
    a('s_load_dwordx2 s[8:9], s[0:1], 56')
    a('s_load_dwordx2 s[10:11], s[0:1], 64')
    a('s_load_dwordx2 s[12:13], s[0:1], 72')
    a('s_and_b32 s32, s%d, 7' % wg_sreg)
    a('s_lshr_b32 s33, s%d, 3' % wg_sreg)
    a('s_and_b32 s34, s32, 3')
    a('s_lshl_b32 s34, s34, 3')
    a('s_and_b32 s35, s33, 7')
    a('s_add_u32 s34, s34, s35')
    a('s_lshr_b32 s35, s32, 2')
    a('s_lshl_b32 s35, s35, 2')
    a('s_lshr_b32 s40, s33, 3')
    a('s_add_u32 s35, s35, s40')
    a('v_lshrrev_b32 v9, 6, v0')
    a('v_readfirstlane_b32 s36, v9')
    a('v_and_b32 v0, 63, v0')
    a('v_and_b32 v9, 15, v0')
    a('v_lshrrev_b32 v10, 4, v0')
    a('s_and_b32 s37, s36, 3')
    a('s_lshr_b32 s38, s36, 2')
    a('s_lshl_b32 s39, s34, 6')
    a('s_lshl_b32 s40, s37, 4')
    a('s_add_u32 s39, s39, s40')
    a('v_lshlrev_b32 v%d, 4, v0' % V_L16)
    a.wait_lg_all()
    make_srd(a, 28, 's12', 's13', WS_END)
    make_srd(a, 20, 's6', 's7', 2048 * 1280)
    make_srd(a, 24, 's8', 's9', 2048 * 1280)
    make_srd(a, 16, 's10', 's11', 256)
    a('s_lshr_b32 s40, s39, 4')
    a('s_lshl_b32 s42, s38, 10')
    a('s_mul_i32 s41, s40, %d' % (48 * 1024))
    a('s_add_u32 s41, s41, s42')
    a('s_add_u32 s41, s41, %d' % WS_H)
    a('s_mul_i32 s48, s40, %d' % (20 * 1024))
    a('s_add_u32 s48, s48, s42')
    a('s_add_u32 s48, s48, %d' % WS_O)
    a('s_mul_i32 s44, s36, 2560')
    a('s_mul_i32 s42, s35, %d' % (1536 * 160))
    a('s_add_u32 s42, s42, s44')
    a('s_add_u32 s42, s42, %d' % WS_WD)
    a('s_mul_i32 s49, s35, %d' % (640 * 160))
    a('s_add_u32 s49, s49, s44')
    a('s_add_u32 s49, s49, %d' % WS_WO)
    a('v_bfe_u32 v11, v0, 2, 2')
    a('v_lshl_add_u32 v11, v10, 2, v11')
    a('v_mul_u32_u24 v11, 160, v11')
    a('v_and_b32 v12, 3, v0')
    a('v_lshl_add_u32 v11, v12, 3, v11')
    a('s_mul_i32 s43, s38, 5120')
    a('v_add_u32 v%d, s43, v11' % V_RD)
    a('v_add_u32 v%d, 61440, v%d' % (V_RD2, V_RD))

    def areg(t, q):
        return V_A + ((t % AR) * 2 + q) * 4

    def issue_a(slot4, fl=''):
        for q in range(2):
            a('buffer_load_dwordx4 %s, v%d, s[28:31], s45 offen offset:%d%s' % (vr(areg(slot4, q), 4), V_L16, q * 2048, fl))

    def issue_b(slot4):
        a('s_add_u32 m0, s44, %d' % (slot4 * G_SLOT))
        for i in range(3):
            if i == 2:
                a('s_mov_b64 exec, 0xffffffff')
            a('buffer_load_dwordx4 v%d, s[28:31], s46 offen offset:%d lds' % (V_L16, i * 1024))
            if i == 2:
                a('s_mov_b64 exec, -1')

    def adv_b():
        a('s_add_u32 s46, s46, %d' % G_SLOT)
        a('s_add_u32 s47, s47, 1')
        a('s_cmp_eq_u32 s47, %d' % NS1)
        a('s_cselect_b32 s46, s49, s46')

    def adv_a():
        a('s_add_u32 s45, s45, 4096')

    def poll():
        L = a.newlabel('poll')
        Lskip = a.newlabel('pollskip')
        a('s_cmp_lg_u32 s36, 0')
        a.branch('s_cbranch_scc1 %s' % Lskip)
        a('s_lshr_b32 s50, s34, 2')
        a('s_lshl_b32 s50, s50, 8')
        a('s_add_u32 s50, s50, %d' % WS_CNT)
        a('v_mov_b32 v12, 0')
        a.label(L)
        a('buffer_load_dword v11, v12, s[28:31], s50 offen sc1')
        a('s_waitcnt vmcnt(0)')
        a('v_readfirstlane_b32 s51, v11')
        a('s_cmp_ge_u32 s51, 32')
        Ld = a.newlabel('polled')
        a.branch('s_cbranch_scc1 %s' % Ld)
        a('s_sleep 16')
        a.branch('s_branch %s' % L)
        a.label(Ld)
        a.label(Lskip)
        a('s_barrier')

    a('s_mov_b32 s45, s41')
    a('s_mov_b32 s46, s42')
    a('s_mov_b32 s47, 0')
    for t in range(RING):
        issue_a(t)
        adv_a()
        issue_b(t)
        adv_b()
    for r in range(3):
        a('v_add_u32 v11, %d, v0' % (64 * r))
        a('v_mul_u32_u24 v12, 52429, v11')
        a('v_lshrrev_b32 v12, 19, v12')
        a('v_mul_u32_u24 v13, 10, v12')
        a('v_sub_u32 v13, v11, v13')
        a('v_add_u32 v14, s39, v12')
        a('v_mul_u32_u24 v14, 1280, v14')
        a('v_lshl_add_u32 v14, v13, 4, v14')
        a('s_mul_i32 s50, s35, 160')
        a('v_add_u32 v%d, s50, v14' % (5 + r))
        if r == 2:
            a('v_mov_b32 v14, 0x40000000')
            a('v_cmp_gt_u32 vcc, 32, v0')
            a('v_cndmask_b32 v7, v14, v7, vcc')
    X = 112
    for r in range(20):
        a('v_mov_b32 v%d, 0' % (V_ACC + r))

    def read_unit(n, j):
        t, q = divmod(n % 8, 2)
        b = V_B + (n % 2) * 20 + j * 4
        o = t * G_SLOT + q * 64 * 160 + j * 32
        rd = V_RD
        if o >= 61440:
            o -= 61440
            rd = V_RD2
        a('ds_read_b64_tr_b16 %s, v%d offset:%d' % (vr(b, 2), rd, o), tag=('B', n % 8, j))
        a('ds_read_b64_tr_b16 %s, v%d offset:%d' % (vr(b + 2, 2), rd, o + 16 * 160), tag=('B', n % 8, j))

    def kstep(n, last=False, tail=False):
        t, q = divmod(n, 2)
        if q == 1 and not last:
            a.wait_lg_all()
            a('s_waitcnt vmcnt(12)')
            a('s_barrier')
            issue_b(t)
            adv_b()
        if q == 0 and tail:
            for r in range(3):
                a('buffer_load_dwordx4 %s, v%d, s[20:23], 0 offen' % (vr(X + r * 4, 4), 5 + r))
            a('s_waitcnt vmcnt(16)')
        elif q == 0:
            issue_a((t + 3) % 4, ' sc1')
            adv_a()
            a('s_waitcnt vmcnt(15)')
        for j in range(5):
            a.wait_lg(('B', n, j))
            b = V_B + (n % 2) * 20 + j * 4
            acc = vr(V_ACC + j * 4, 4)
            a('v_mfma_f32_16x16x32_bf16 %s, %s, %s, %s' % (acc, vr(b, 4), vr(areg(t, q), 4), acc))
            if not last:
                read_unit(n + 1, j)

    stamp(a)
    a('s_waitcnt vmcnt(15)')
    a('s_barrier')
    stamp(a)
    a.lg = []
    for j in range(5):
        read_unit(0, j)
    a('s_sub_u32 s45, s45, 4096')
    a('s_mov_b32 s52, 0')
    L_loop = a.newlabel('gloop')
    L_ph2 = a.newlabel('gph2')
    L_tail = a.newlabel('gtail')
    a.label(L_loop)
    a.lg = [('B', 0, j) for j in range(5) for _ in range(2)]
    for n in range(8):
        kstep(n)
    a('s_add_u32 s52, s52, 1')
    a('s_cmp_lt_u32 s52, 3')
    a.branch('s_cbranch_scc1 %s' % L_loop)
    a('s_cmp_eq_u32 s52, 4')
    a.branch('s_cbranch_scc1 %s' % L_tail)
    stamp(a)
    for r in range(20):
        a('v_mov_b32 v%d, v%d' % (V_ACC + 20 + r, V_ACC + r))
    for r in range(20):
        a('v_mov_b32 v%d, 0' % (V_ACC + r))
    poll()
    a('s_waitcnt vmcnt(0)')
    a('s_mov_b32 s45, s48')
    for t in range(3):
        issue_a(t, ' sc1')
        adv_a()
    a('s_waitcnt vmcnt(0)')
    stamp(a)
    a.branch('s_branch %s' % L_loop)
    a.label(L_tail)
    a.lg = [('B', 0, j) for j in range(5) for _ in range(2)]
    kstep(0, tail=True)
    kstep(1, last=True)
    a.vm = []
    stamp(a)
    L_hi = a.newlabel('g2hi')
    L_done = a.newlabel('g2done')
    a('s_waitcnt vmcnt(0)')
    a('s_barrier')
    a('s_mul_i32 s45, s37, 10240')
    a('v_add_u32 v4, s45, v%d' % V_L16)
    a('s_cmp_eq_u32 s38, 0')
    a.branch('s_cbranch_scc1 %s' % L_hi)
    for j in range(10):
        a('ds_write_b128 v4, %s offset:%d' % (vr(V_ACC + j * 4, 4), j * 1024), tag='ex')
    a.wait_lg_all()
    a('s_barrier')
    a.branch('s_branch %s' % L_done)
    a.label(L_hi)
    a('s_barrier')
    for j in range(10):
        a('ds_read_b128 %s, v4 offset:%d' % (vr(V_B + j * 4, 4), j * 1024), tag='ex')
    a.wait_lg_all()
    a('s_mul_i32 s45, s37, 5120')
    a('s_add_u32 s45, s45, 40960')
    a('v_mul_u32_u24 v11, 160, v9')
    a('v_lshl_add_u32 v11, v10, 3, v11')
    a('v_add_u32 v11, s45, v11')
    for j in range(10):
        ac = V_ACC + j * 4
        for r in range(4):
            a('v_add_f32 v%d, v%d, v%d' % (ac + r, ac + r, V_B + j * 4 + r))
        d = 96 + (j % 4) * 2
        a('v_cvt_pk_bf16_f32 v%d, v%d, v%d' % (d, ac, ac + 1))
        a('v_cvt_pk_bf16_f32 v%d, v%d, v%d' % (d + 1, ac + 2, ac + 3))
        a('ds_write_b64 v11, %s offset:%d' % (vr(d, 2), (1 - j // 5) * 2560 + (j % 5) * 32), tag='tw')
    a.wait_lg_all()
    a('v_add_u32 v12, s45, v%d' % V_L16)
    for r in range(3):
        a('ds_read_b128 %s, v12 offset:%d' % (vr(16 + r * 4, 4), r * 1024), tag='tr')
        a('ds_read_b128 %s, v12 offset:%d' % (vr(28 + r * 4, 4), 2560 + r * 1024), tag='tr')
    a.wait_lg_all()
    for r in range(3):
        for q in range(4):
            fv, av, xv = 16 + r * 4 + q, 28 + r * 4 + q, X + r * 4 + q
            t = 56 + (q % 2) * 8
            a('v_lshlrev_b32 v%d, 16, v%d' % (t, av))
            a('v_and_b32 v%d, 0xffff0000, v%d' % (t + 1, av))
            a('v_lshlrev_b32 v%d, 16, v%d' % (t + 2, xv))
            a('v_and_b32 v%d, 0xffff0000, v%d' % (t + 3, xv))
            a('v_add_f32 v%d, v%d, v%d' % (t, t, t + 2))
            a('v_add_f32 v%d, v%d, v%d' % (t + 1, t + 1, t + 3))
            bf16r_pair(a, t, t + 1, t, t + 1, t + 4)
            a('v_lshlrev_b32 v%d, 16, v%d' % (t + 2, fv))
            a('v_and_b32 v%d, 0xffff0000, v%d' % (t + 3, fv))
            a('v_add_f32 v%d, v%d, v%d' % (t, t, t + 2))
            a('v_add_f32 v%d, v%d, v%d' % (t + 1, t + 1, t + 3))
            a('v_cvt_pk_bf16_f32 v%d, v%d, v%d' % (av, t, t + 1))
        a('buffer_store_dwordx4 %s, v%d, s[24:27], 0 offen' % (vr(28 + r * 4, 4), 5 + r), tag='st')
    a.label(L_done)


def attention(a, wg_sreg):
    V_Q = 16
    V_O = 20
    V_S = 28
    V_KV = 100

    def S(t):
        return V_S + t * 4

    stamp_reset()
    stamp(a)
    a('s_setprio 3')
    a('s_load_dwordx2 s[12:13], s[0:1], 72')
    a('s_load_dwordx2 s[10:11], s[0:1], 64')
    a('s_and_b32 s32, s%d, 7' % wg_sreg)
    a('s_lshr_b32 s33, s%d, 3' % wg_sreg)
    a('s_lshl_b32 s34, s32, 2')
    a('s_and_b32 s35, s33, 3')
    a('s_add_u32 s34, s34, s35')
    a('s_lshr_b32 s35, s33, 2')
    a('v_lshrrev_b32 v1, 6, v0')
    a('v_readfirstlane_b32 s36, v1')
    a('v_and_b32 v0, 63, v0')
    a('v_and_b32 v1, 15, v0')
    a('v_lshrrev_b32 v2, 4, v0')
    a('v_lshlrev_b32 v3, 4, v0')
    a('s_lshl_b32 s37, s35, 3')
    a('s_add_u32 s37, s37, s36')
    a('s_lshl_b32 s37, s37, 5')
    a.wait_lg_all()
    a('s_mul_i32 s38, s34, 81920')
    for d, base in ((16, WS_Q), (20, WS_K), (24, WS_VT)):
        a('s_add_u32 s39, s38, %d' % base)
        a('s_add_u32 s%d, s12, s39' % d)
        a('s_addc_u32 s%d, s13, 0' % (d + 1))
        a('s_and_b32 s%d, s%d, 0xffff' % (d + 1, d + 1))
        a('s_mov_b32 s%d, 81920' % (d + 2))
        a('s_mov_b32 s%d, 0x00020000' % (d + 3))
    make_srd(a, 28, 's12', 's13', WS_END)
    a('s_mul_i32 s43, s35, 10240')
    a('s_mul_i32 s44, s36, 1280')
    a('s_add_u32 s45, s43, s44')
    a('v_add_u32 v10, s45, v3')
    a('v_add_u32 v11, 1024, v10')
    a('s_mov_b32 m0, s44')
    a('buffer_load_dwordx4 v10, s[16:19], 0 offen lds', tag='stg')
    a('s_add_u32 m0, s44, 1024')
    a('s_mov_b64 exec, 0xffff')
    a('buffer_load_dwordx4 v11, s[16:19], 0 offen lds', tag='stg')
    a('s_mov_b64 exec, -1')
    a('s_mul_i32 s44, s36, 2560')
    a('s_sub_u32 s45, s43, 10240')
    a('s_add_u32 s45, s45, s44')
    a('v_add_u32 v10, s45, v3')
    for i in range(3):
        a('v_add_u32 v11, %d, v10' % (i * 1024))
        if i == 2:
            a('s_mov_b64 exec, 0xffffffff')
        a('s_add_u32 m0, s44, %d' % (10240 + i * 1024))
        a('buffer_load_dwordx4 v11, s[20:23], 0 offen lds', tag='stg')
        a('s_add_u32 m0, s44, %d' % (30720 + i * 1024))
        a('buffer_load_dwordx4 v11, s[24:27], 0 offen lds', tag='stg')
        if i == 2:
            a('s_mov_b64 exec, -1')
    a('v_lshlrev_b32 v4, 2, v2')
    for r in range(4):
        a('v_add_u32 v5, %d, v4' % r)
        a('v_cmp_gt_u32 s[%d:%d], v5, v1' % (48 + 2 * r, 49 + 2 * r))
        a('v_cmp_le_u32 s[%d:%d], v5, v1' % (56 + 2 * r, 57 + 2 * r))
    a('v_mov_b32 v15, %s' % f32hex(-1e30))
    a('v_cmp_eq_u32 s[66:67], 4, v1')
    a('v_mov_b32 v14, 0x3f803f80')
    a('v_cmp_eq_u32 s[64:65], 0, v2')
    a('v_xor_b32 v5, 16, v0')
    a('v_lshlrev_b32 v5, 2, v5')
    a('v_xor_b32 v6, 32, v0')
    a('v_lshlrev_b32 v6, 2, v6')
    a('v_add_u32 v7, 16, v1')
    a('v_lshlrev_b32 v7, 2, v7')
    a('s_mul_i32 s39, s34, 5')
    a('v_add_u32 v8, s39, v2')

    def gpos(dst, G, t1, t2):
        a('v_lshrrev_b32 v%d, 3, v%d' % (t1, G))
        a('v_lshlrev_b32 v%d, 10, v%d' % (t1, t1))
        a('v_and_b32 v%d, 3, v%d' % (t2, G))
        a('v_lshl_add_u32 v%d, v%d, 8, v%d' % (t1, t2, t1))
        a('v_bfe_u32 v%d, v%d, 2, 1' % (t2, G))
        a('v_lshl_add_u32 v%d, v%d, 3, v%d' % (dst, t2, t1))
    gpos(8, 8, 10, 11)
    a('s_add_u32 s39, s39, 4')
    a('v_mov_b32 v9, s39')
    gpos(9, 9, 10, 11)
    a('v_mov_b32 v10, 0x40000000')
    a('v_cndmask_b32 v9, v10, v9, s[64:65]')
    a('v_lshlrev_b32 v10, 4, v1')
    a('v_add_u32 v8, v8, v10')
    a('v_add_u32 v9, v9, v10')
    a('s_mov_b32 s40, %s' % f32hex(20 ** -0.5 * LOG2E))
    a('s_mul_i32 s46, s36, 1280')
    a('v_lshlrev_b32 v4, 3, v0')
    a('v_add_u32 v4, s46, v4')
    a('v_lshlrev_b32 v13, 3, v1')
    a('v_add_u32 v13, s46, v13')
    a('v_add_u32 v13, 512, v13')
    a('v_add_u32 v12, s46, v3')
    a('v_add_u32 v12, 30720, v12')
    a('v_and_b32 v3, 3, v1')
    a('v_lshl_add_u32 v3, v2, 2, v3')
    a('v_lshlrev_b32 v3, 4, v3')
    a('v_add_u32 v3, s46, v3')
    a('v_add_u32 v3, %d, v3' % (30720 + 1024))
    a('v_mov_b32 v2, v12')
    a('s_mul_i32 s43, s37, 1280')
    a('s_add_u32 s43, s43, %d' % WS_O)
    a('s_sub_u32 s47, 256, s37')
    a('s_lshr_b32 s47, s47, 4')
    stamp(a)
    a.wait_vm_all()
    a('s_barrier')
    stamp(a)

    a('s_mov_b32 s42, 0')
    a('s_mov_b32 s41, 0')
    L_loop = a.newlabel('aloop')
    a.label(L_loop)
    a.lg = []
    tiles = list(range(18))
    a('v_add_u32 v10, s41, v4')
    a('v_add_u32 v11, s41, v13')
    a('ds_read_b64 %s, v10' % vr(V_Q, 2), tag='Q')
    a('ds_read_b64 %s, v11' % vr(V_Q + 2, 2), tag='Q')
    NB = 6
    for k, t in enumerate(tiles[:NB - 1]):
        a('ds_read_b64 %s, v4 offset:%d' % (vr(V_KV + (k % NB) * 4, 2), 10240 + t * 640), tag=('K', t))
        a('ds_read_b64 %s, v13 offset:%d' % (vr(V_KV + (k % NB) * 4 + 2, 2), 10240 + t * 640), tag=('K', t))
    a.wait_lg('Q')
    for r in (2, 3):
        a('v_cndmask_b32 v%d, 0, v%d, s[64:65]' % (V_Q + r, V_Q + r))
    for k, t in enumerate(tiles):
        kb = V_KV + (k % NB) * 4
        a.wait_lg(('K', t))
        for r in (2, 3):
            a('v_cndmask_b32 v%d, 0, v%d, s[64:65]' % (kb + r, kb + r))
        a('v_mfma_f32_16x16x32_bf16 %s, %s, %s, 0' % (vr(S(t), 4), vr(kb, 4), vr(V_Q, 4)))
        k2 = k + NB - 1
        if k2 < len(tiles):
            a('ds_read_b64 %s, v4 offset:%d' % (vr(V_KV + (k2 % NB) * 4, 2), 10240 + tiles[k2] * 640), tag=('K', tiles[k2]))
            a('ds_read_b64 %s, v13 offset:%d' % (vr(V_KV + (k2 % NB) * 4 + 2, 2), 10240 + tiles[k2] * 640), tag=('K', tiles[k2]))
    for b in range(2):
        for dt in range(2):
            a('ds_read_b128 %s, v%d offset:%d' % (vr(V_KV + (b % 3) * 8 + dt * 4, 4), 2 + dt, b * 1280), tag=('V', b))
    a('s_cmp_eq_u32 s42, 0')
    for k, t in enumerate((0, 1, 16, 17)):
        for r in range(4):
            F = 's[%d:%d]' % (48 + 2 * r, 49 + 2 * r)
            L = 's[%d:%d]' % (56 + 2 * r, 57 + 2 * r)
            v0_, v1_ = ((F, '0'), ('-1', F), (L, '-1'), ('0', L))[k]
            a('s_cselect_b64 s[44:45], %s, %s' % (v0_, v1_))
            a('v_cndmask_b32 v%d, v15, v%d, s[44:45]' % (S(t) + r, S(t) + r))
    L_noneg = a.newlabel('noneg')
    a('s_cmp_ge_u32 s37, 256')
    a.branch('s_cbranch_scc1 %s' % L_noneg)
    for t in range(16):
        a('s_cmp_le_u32 s47, %d' % t)
        a.branch('s_cbranch_scc1 %s' % L_noneg)
        for r in range(4):
            a('v_mov_b32 v%d, v15' % (S(t) + r))
    a.label(L_noneg)
    regs = [S(t) + r for t in tiles for r in range(4)]
    a('v_max3_f32 v10, v%d, v%d, v%d' % (regs[0], regs[1], regs[2]))
    a('v_max3_f32 v11, v%d, v%d, v%d' % (regs[3], regs[4], regs[5]))
    k = 6
    tog = 0
    while k + 1 < len(regs):
        mm = 10 + tog
        a('v_max3_f32 v%d, v%d, v%d, v%d' % (mm, mm, regs[k], regs[k + 1]))
        k += 2
        tog ^= 1
    if k < len(regs):
        a('v_max_f32 v10, v10, v%d' % regs[k])
    a('v_max_f32 v10, v10, v11')
    for addr in (5, 6):
        a('ds_bpermute_b32 v11, v%d, v10' % addr, tag='bp')
        a.wait_lg('bp')
        a('v_max_f32 v10, v10, v11')
    a('v_mul_f32 v10, s40, v10')
    a('v_sub_f32 v10, 0, v10')
    a('v_mov_b32 v11, s40')
    for b in range(9):
        for t in (2 * b, 2 * b + 1):
            for r in range(4):
                a('v_fma_f32 v%d, v%d, v11, v10' % (S(t) + r, S(t) + r))
            for r in range(4):
                a('v_exp_f32 v%d, v%d' % (S(t) + r, S(t) + r))
        p = S(2 * b)
        q = S(2 * b + 1)
        a('v_cvt_pk_bf16_f32 v%d, v%d, v%d' % (p, p, p + 1))
        a('v_cvt_pk_bf16_f32 v%d, v%d, v%d' % (p + 1, p + 2, p + 3))
        a('v_cvt_pk_bf16_f32 v%d, v%d, v%d' % (p + 2, q, q + 1))
        a('v_cvt_pk_bf16_f32 v%d, v%d, v%d' % (p + 3, q + 2, q + 3))
    for b in range(9):
        vb = V_KV + (b % 3) * 8
        a.wait_lg(('V', b))
        for r in range(4):
            a('v_cndmask_b32 v%d, v%d, v14, s[66:67]' % (vb + 4 + r, vb + 4 + r))
        for dt in range(2):
            o = vr(V_O + dt * 4, 4)
            a('v_mfma_f32_16x16x32_bf16 %s, %s, %s, %s' % (o, vr(vb + dt * 4, 4), vr(S(2 * b), 4), o if b else '0'))
        if b + 2 < 9:
            for dt in range(2):
                a('ds_read_b128 %s, v%d offset:%d' % (vr(V_KV + ((b + 2) % 3) * 8 + dt * 4, 4), 2 + dt, (b + 2) * 1280),
                  tag=('V', b + 2))
    a('ds_bpermute_b32 v10, v7, v%d' % (V_O + 4), tag='bp')
    a.wait_lg_all()
    a('v_rcp_f32 v10, v10')
    for dt in range(2):
        o = V_O + dt * 4
        for r in range(4):
            a('v_mul_f32 v%d, v%d, v10' % (o + r, o + r))
        d = V_Q if dt == 0 else o
        a('v_cvt_pk_bf16_f32 v%d, v%d, v%d' % (d, o, o + 1))
        a('v_cvt_pk_bf16_f32 v%d, v%d, v%d' % (d + 1, o + 2, o + 3))
        a('buffer_store_dwordx2 %s, v%d, s[28:31], s43 offen sc1' % (vr(d, 2), 8 + dt), tag='st')
    a('s_add_u32 s43, s43, %d' % (20 * 1024))
    a('s_add_u32 s41, s41, 640')
    a('s_add_u32 s42, s42, 1')
    a('s_cmp_lt_u32 s42, 2')
    a.branch('s_cbranch_scc1 %s' % L_loop)
    stamp(a)
    a.wait_vm_all()
    stamp(a)
    a('s_barrier')
    stamp(a)
    L_np = a.newlabel('nopub')
    a('s_cmp_lg_u32 s36, 0')
    a.branch('s_cbranch_scc1 %s' % L_np)
    a('s_lshl_b32 s44, s35, 8')
    a('s_add_u32 s44, s44, %d' % WS_CNT)
    a('v_mov_b32 v10, 1')
    a('v_mov_b32 v11, 0')
    a('s_mov_b64 exec, 1')
    a('buffer_atomic_add v10, v11, s[28:31], s44 offen sc1')
    a('s_mov_b64 exec, -1')
    a.label(L_np)


def emit(a, launches, descs, which):
    if '2' in which:
        name = 'k2_kernel'
        a.raw('.globl %s' % name)
        a.raw('.p2align 8')
        a.raw('.type %s,@function' % name)
        a.raw('%s:' % name)
        a.hist = []
        a.vm = []
        a.lg = []
        a('s_cmp_ge_u32 s2, 512')
        a.branch('s_cbranch_scc1 .k2_end')
        rt_start(a)
        a('s_cmp_ge_u32 s2, 256')
        a.branch('s_cbranch_scc1 .k2_gemm')
        attention(a, 2)
        a.wait_vm_all()
        stamp(a)
        stamp_dump(a, 36)
        rt_end(a, 36, 1)
        a.branch('s_branch .k2_end')
        a.label('.k2_gemm')
        a.vm = []
        a.lg = []
        a('s_sub_u32 s3, s2, 256')
        gemm_fused(a, 3)
        a.wait_vm_all()
        stamp(a)
        stamp_dump(a, 36)
        rt_end(a, 36, 1)
        a.label('.k2_end')
        a('s_endpgm')
        launches.append('; @launch kernel=k2_kernel grid=(512,1,1) block=(512,1,1) lds=%d' % K2_LDS)
        descs.append(kernel_desc('k2_kernel', 128))
```

```python
import sys
import os
sys.path.insert(0, os.path.dirname(os.path.abspath(__file__)))
from asmlib import Asm, vr, sr

WS_Q = 0
WS_K = 0x400000
WS_VT = 0x800000
WS_H = 0xC00000
WS_O = 0x1200000
WS_F = 0x1480000
WS_WD = 0x1700000
WS_WO = 0x18E0000
WS_CNT = 0x19B0000
WS_END = 0x19B1000

LOG2E = 1.4426950408889634
STF = os.environ.get('GEN_STF', '')


def f32hex(x):
    import struct
    return '0x%08x' % struct.unpack('<I', struct.pack('<f', x))[0]


def make_srd(a, d, base_lo, base_hi, nrec):
    a('s_mov_b32 s%d, %s' % (d, base_lo))
    a('s_and_b32 s%d, %s, 0xffff' % (d + 1, base_hi))
    a('s_mov_b32 s%d, %s' % (d + 2, nrec if isinstance(nrec, str) else '0x%x' % nrec))
    a('s_mov_b32 s%d, 0x00020000' % (d + 3))


STAMP = os.environ.get('GEN_STAMP', '') != ''
_stamp_n = [0]


def stamp(a):
    if not STAMP:
        return
    i = _stamp_n[0]
    _stamp_n[0] += 1
    a.wait_lg_all()
    a('s_memtime s[%d:%d]' % (70 + 2 * i, 71 + 2 * i))
    a.wait_lg_all()


def stamp_reset(n=0):
    _stamp_n[0] = n


def rt_start(a):
    if not STAMP:
        return
    a('s_memrealtime s[92:93]')
    a('s_memtime s[90:91]')
    a.wait_lg_all()


def rt_end(a, wave_sreg, kidx):
    if not STAMP:
        return
    L = a.newlabel('nort')
    a('s_cmp_lg_u32 s%d, 0' % wave_sreg)
    a.branch('s_cbranch_scc1 %s' % L)
    a.wait_vm_all()
    a('s_memrealtime s[94:95]')
    a('s_memtime s[88:89]')
    a.wait_lg_all()
    a('s_mov_b32 s64, s12')
    a('s_and_b32 s65, s13, 0xffff')
    a('s_mov_b32 s66, 0x%x' % (WS_END + 65536))
    a('s_mov_b32 s67, 0x00020000')
    a('s_lshl_b32 s68, s2, 4')
    a('s_add_u32 s68, s68, %d' % (WS_END + kidx * 16384))
    a('v_mov_b32 v1, 0')
    a('v_mov_b32 v2, s92')
    a('v_mov_b32 v3, s94')
    a('s_sub_u32 s69, s88, s90')
    a('v_mov_b32 v4, s69')
    a('s_getreg_b32 s69, hwreg(HW_REG_XCC_ID)')
    a('v_mov_b32 v5, s69')
    a('buffer_store_dwordx4 v[2:5], v1, s[64:67], s68 offen')
    a.wait_vm_all()
    a.label(L)


def stamp_dump(a, wave_sreg):
    if not STAMP:
        return
    if os.environ.get('GEN_STAMP') == 'w':
        L = a.newlabel('nodump')
        a('s_cmp_lg_u32 s2, 0')
        a.branch('s_cbranch_scc1 %s' % L)
        a('s_load_dwordx2 s[64:65], s[0:1], 64')
        a.wait_lg_all()
        a('s_and_b32 s65, s65, 0xffff')
        a('s_mov_b32 s66, 256')
        a('s_mov_b32 s67, 0x00020000')
        a('s_lshl_b32 s68, s%d, 5' % wave_sreg)
        a('v_mov_b32 v1, 0')
        for i in range(min(8, _stamp_n[0])):
            a('v_mov_b32 v2, s%d' % (70 + 2 * i))
            a('buffer_store_dword v2, v1, s[64:67], s68 offen offset:%d' % (4 * i))
        a.wait_vm_all()
        a.label(L)
        return
    L = a.newlabel('nodump')
    a('s_cmp_lg_u32 s%d, 0' % wave_sreg)
    a.branch('s_cbranch_scc1 %s' % L)
    a('s_mov_b32 s68, 0')
    L2 = a.newlabel('dump')
    a('s_cmp_eq_u32 s2, 0')
    a.branch('s_cbranch_scc1 %s' % L2)
    a('s_mov_b32 s68, 64')
    a('s_cmp_eq_u32 s2, 101')
    a.branch('s_cbranch_scc1 %s' % L2)
    a('s_mov_b32 s68, 128')
    a('s_cmp_eq_u32 s2, 300')
    a.branch('s_cbranch_scc0 %s' % L)
    a.label(L2)
    a('s_load_dwordx2 s[64:65], s[0:1], 64')
    a.wait_lg_all()
    a('s_and_b32 s65, s65, 0xffff')
    a('s_mov_b32 s66, 256')
    a('s_mov_b32 s67, 0x00020000')
    a('v_mov_b32 v1, 0')
    for i in range(_stamp_n[0]):
        a('s_sub_u32 s69, s%d, s70' % (70 + 2 * i))
        a('v_mov_b32 v2, s69')
        a('buffer_store_dword v2, v1, s[64:67], s68 offen offset:%d' % (4 * i))
    a.wait_vm_all()
    a.label(L)


def bf16r_pair(a, dst_lo, dst_hi, src_lo, src_hi, tmp):
    a('v_cvt_pk_bf16_f32 v%d, v%d, v%d' % (tmp, src_lo, src_hi))
    a('v_lshlrev_b32 v%d, 16, v%d' % (dst_lo, tmp))
    a('v_and_b32 v%d, 0xffff0000, v%d' % (dst_hi, tmp))


K1_SLOT = 40960
K1_R2 = 24576
K1_STASH = 3 * K1_SLOT
K1_XS = 81920
K1_LDS = 163840

V_DMA = 1
V_RD = 6
V_T = 11
V_B = 16
V_ACC = 56
V_A = 96


def k1_areg(tile, s):
    return V_A + (tile * 20 + s) * 4


def k1_xreg(rho, j):
    return (216 if j < 5 else 136) + (rho * 5 + (j % 5)) * 4


def k1_acc(j, tile):
    return V_ACC + (j * 2 + tile) * 4


def gen_k1(a):
    name = 'k1_kernel'
    a.raw('.globl %s' % name)
    a.raw('.p2align 8')
    a.raw('.type %s,@function' % name)
    a.raw('%s:' % name)
    L_end = '.k1_end'
    a('s_cmp_ge_u32 s2, 256')
    a.branch('s_cbranch_scc1 %s' % L_end)
    stamp_reset()
    rt_start(a)
    stamp(a)
    a('s_load_dwordx4 s[4:7], s[0:1], 0')
    a('s_load_dwordx4 s[8:11], s[0:1], 32')
    a('s_load_dwordx2 s[12:13], s[0:1], 72')
    a('s_load_dwordx2 s[64:65], s[0:1], 16')
    a('s_load_dwordx2 s[66:67], s[0:1], 48')
    a('s_and_b32 s32, s2, 7')
    a('s_lshr_b32 s33, s2, 3')
    LR = int(os.environ.get('GEN_LR', '1'))
    a('s_and_b32 s34, s32, %d' % ((1 << LR) - 1))
    a('s_lshl_b32 s34, s34, %d' % (4 - LR))
    a('s_and_b32 s35, s33, %d' % ((16 >> LR) - 1))
    a('s_add_u32 s34, s34, s35')
    a('s_lshr_b32 s35, s32, %d' % LR)
    a('s_lshl_b32 s35, s35, %d' % (1 + LR))
    a('s_lshr_b32 s36, s33, %d' % (4 - LR))
    a('s_add_u32 s35, s35, s36')
    a('v_lshrrev_b32 v11, 6, v0')
    a('v_readfirstlane_b32 s36, v11')
    a('v_and_b32 v0, 63, v0')
    a('s_and_b32 s37, s36, 3')
    a('s_lshr_b32 s38, s36, 2')
    a('s_lshl_b32 s39, s34, 7')
    a('s_lshl_b32 s40, s37, 5')
    a('s_add_u32 s39, s39, s40')
    a.wait_lg_all()
    make_srd(a, 24, 's4', 's5', 2048 * 1280)
    make_srd(a, 28, 's12', 's13', WS_END)
    a('v_and_b32 v11, 15, v0')
    a('v_lshrrev_b32 v12, 4, v0')
    a('v_lshrrev_b32 v13, 3, v0')
    a('v_mul_u32_u24 v13, 1280, v13')
    a('v_and_b32 v14, 7, v0')
    a('v_lshl_add_u32 v13, v14, 4, v13')
    a('s_lshl_b32 s40, s34, 7')
    a('s_lshl_b32 s41, s36, 4')
    a('s_add_u32 s40, s40, s41')
    a('s_mul_i32 s40, s40, 1280')
    a('s_add_u32 s41, s40, 10240')
    for j in range(10):
        for rho in range(2):
            a('buffer_load_dwordx4 %s, v13, s[24:27], s%d offen offset:%d' % (vr(k1_xreg(rho, j), 4), 40 + rho, j * 128),
              tag=('X', rho, j))
    a('s_barrier')
    L_gu = a.newlabel('k1gu')
    L_par = a.newlabel('k1par')
    a('s_cmp_ge_u32 s35, 6')
    a.branch('s_cbranch_scc1 %s' % L_gu)
    a('s_movk_i32 s42, 3840')
    a('s_mul_i32 s43, s35, 640')
    a('s_add_u32 s16, s6, s43')
    a('s_addc_u32 s17, s7, 0')
    a('s_sub_u32 s18, %d, s43' % (640 * 3840))
    a('s_add_u32 s43, s43, 192')
    a('s_movk_i32 s56, 512')
    a('s_add_u32 s20, s6, s43')
    a('s_addc_u32 s21, s7, 0')
    a('s_sub_u32 s22, %d, s43' % (640 * 3840))
    a('s_mov_b32 s44, 0')
    a('s_mov_b32 s45, 10')
    a.branch('s_branch %s' % L_par)
    a.label(L_gu)
    a('s_movk_i32 s42, 3072')
    a('s_sub_u32 s43, s35, 6')
    a('s_mul_i32 s44, s43, 10')
    a('s_movk_i32 s56, 192')
    a('s_cmp_lt_u32 s43, 9')
    a('s_cselect_b32 s45, 10, 6')
    a('s_lshl_b32 s43, s44, 5')
    a('s_add_u32 s16, s8, s43')
    a('s_addc_u32 s17, s9, 0')
    a('s_sub_u32 s18, %d, s43' % (640 * 3072))
    a('s_add_u32 s20, s10, s43')
    a('s_addc_u32 s21, s11, 0')
    a('s_sub_u32 s22, %d, s43' % (640 * 3072))
    a.label(L_par)
    a('s_and_b32 s17, s17, 0xffff')
    a('s_and_b32 s21, s21, 0xffff')
    a('s_mov_b32 s19, 0x00020000')
    a('s_mov_b32 s23, 0x00020000')
    a('s_lshl_b32 s46, s42, 7')
    a('s_mul_i32 s47, s36, 3072')
    a('s_lshl_b32 s48, s36, 11')
    a('s_add_u32 s48, s48, %d' % K1_R2)
    a('s_mul_i32 s49, s36, 192')
    for i in range(3):
        a('v_add_u32 v16, s49, v0')
        if i:
            a('v_add_u32 v16, %d, v16' % (64 * i))
        a('v_mul_u32_u24 v17, 43691, v16')
        a('v_lshrrev_b32 v17, 19, v17')
        a('v_mul_u32_u24 v18, 12, v17')
        a('v_sub_u32 v18, v16, v18')
        a('v_lshrrev_b32 v19, 1, v18')
        a('v_bfe_u32 v20, v17, 3, 1')
        a('v_xor_b32 v19, v19, v20')
        a('v_and_b32 v18, 1, v18')
        a('v_lshlrev_b32 v18, 4, v18')
        a('v_lshl_add_u32 v18, v19, 5, v18')
        a('v_mul_lo_u32 v17, v17, s42')
        a('v_add_u32 v%d, v17, v18' % (V_DMA + i))
    a('s_lshl_b32 s49, s36, 7')
    for i in range(2):
        a('v_add_u32 v16, s49, v0')
        if i:
            a('v_add_u32 v16, %d, v16' % (64 * i))
        a('v_lshrrev_b32 v17, 3, v16')
        a('v_and_b32 v18, 7, v16')
        a('v_lshrrev_b32 v19, 1, v18')
        a('v_bfe_u32 v20, v17, 1, 1')
        a('v_bfe_u32 v21, v17, 3, 1')
        a('v_lshl_or_b32 v20, v21, 1, v20')
        a('v_xor_b32 v19, v19, v20')
        a('v_and_b32 v18, 1, v18')
        a('v_lshlrev_b32 v18, 4, v18')
        a('v_lshl_add_u32 v18, v19, 5, v18')
        a('v_mul_lo_u32 v17, v17, s42')
        a('v_add_u32 v%d, v17, v18' % (V_DMA + 3 + i))

    def issue_dma(t):
        p, st = divmod(t, 5)
        slot = t % 3
        a('s_mul_i32 s50, s46, %d' % st)
        if p:
            a('s_add_u32 s51, s50, s56')
            a('s_add_u32 s50, s50, 128')
        else:
            a('s_mov_b32 s51, s50')
        srd1, srd2 = (16, 20) if p == 0 else (20, 16)
        for i in range(3):
            a('s_add_u32 m0, s47, %d' % (slot * K1_SLOT + i * 1024))
            a('buffer_load_dwordx4 v%d, %s, s50 offen lds' % (V_DMA + i, sr(srd1, 4)), tag=('D', t))
        for i in range(2):
            a('s_add_u32 m0, s48, %d' % (slot * K1_SLOT + i * 1024))
            a('buffer_load_dwordx4 v%d, %s, s51 offen lds' % (V_DMA + 3 + i, sr(srd2, 4)), tag=('D', t))

    for t in range(2):
        issue_dma(t)

    a('s_lshl_b32 s57, s2, 9')
    a('s_lshl_b32 s58, s36, 6')
    a('s_add_u32 s57, s57, s58')
    a('s_cmp_lt_u32 s57, 122880')
    a('s_cselect_b32 s60, s66, s64')
    a('s_cselect_b32 s61, s67, s65')
    a('s_cselect_b32 s62, %d, s57' % 0 if False else 's_cselect_b32 s58, 0, 1')
    a('s_and_b32 s61, s61, 0xffff')
    a('s_mov_b32 s63, 0x00020000')
    a('s_mul_i32 s59, s58, 122880')
    a('s_sub_u32 s57, s57, s59')
    a('s_cmp_eq_u32 s58, 0')
    a('s_cselect_b32 s62, %d, %d' % (1536 * 1280, 0) if False else 's_mov_b32 s62, %d' % (640 * 1280))
    a('s_cselect_b32 s62, %d, s62' % (1536 * 1280))
    a('s_mov_b32 s59, 640')
    a('s_cselect_b32 s59, 1536, s59')
    a('s_mov_b32 s68, %d' % WS_WO)
    a('s_cselect_b32 s68, %d, s68' % WS_WD)

    def repack_dst(c, dst, R):
        a('s_mov_b32 s69, 53687092')
        a('v_mul_hi_u32 v24, v%d, s69' % c)
        a('v_mul_u32_u24 v25, 80, v24')
        a('v_sub_u32 v25, v%d, v25' % c)
        a('v_mul_u32_u24 v26, 205, v25')
        a('v_lshrrev_b32 v26, 11, v26')
        a('v_mul_u32_u24 v27, 10, v26')
        a('v_sub_u32 v25, v25, v27')
        a('v_mul_lo_u32 v26, v26, %s' % R)
        a('v_add_u32 v24, v24, v26')
        a('v_mul_u32_u24 v24, 160, v24')
        a('v_lshl_add_u32 v%d, v25, 4, v24' % dst)
    a('v_add_u32 v64, s57, v0')
    a('v_lshlrev_b32 v22, 4, v64')
    a('buffer_load_dwordx4 v[56:59], v22, s[60:63], 0 offen', tag='RP')
    repack_dst(64, 64, 's59')
    a('v_add_u32 v64, s68, v64')
    a('s_mov_b32 s60, s64')
    a('s_and_b32 s61, s65, 0xffff')
    a('s_mov_b32 s62, %d' % (640 * 1280))
    a('s_lshl_b32 s57, s2, 9')
    a('s_lshl_b32 s58, s36, 6')
    a('s_add_u32 s57, s57, s58')
    a('s_add_u32 s57, s57, 8192')
    a('v_add_u32 v65, s57, v0')
    a('v_lshlrev_b32 v22, 4, v65')
    a('buffer_load_dwordx4 v[60:63], v22, s[60:63], 0 offen', tag='RP')
    a('v_cmp_gt_u32 vcc, 51200, v65')
    a('s_mov_b32 s59, 640')
    repack_dst(65, 65, 's59')
    a('v_add_u32 v65, %d, v65' % WS_WO)
    a('v_mov_b32 v24, 0x40000000')
    a('v_cndmask_b32 v65, v24, v65, vcc')
    stamp(a)
    for r in range(16, 20):
        a('v_mov_b32 v%d, 0' % r)
    a('v_mov_b32 v20, 0x3f803f80')
    for j in range(10):
        for rho in range(2):
            a.wait_vm(('X', rho, j))
            base = k1_xreg(rho, j)
            for q in range(4):
                a('v_dot2_f32_bf16 v%d, v%d, v20, v%d' % (16 + rho * 2, base + q, 16 + rho * 2))
                a('v_dot2_f32_bf16 v%d, v%d, v%d, v%d' % (17 + rho * 2, base + q, base + q, 17 + rho * 2))
    stamp(a)
    for ctl in ('quad_perm:[1,0,3,2]', 'quad_perm:[2,3,0,1]', 'row_half_mirror'):
        for r in range(16, 20):
            a('v_add_f32_dpp v%d, v%d, v%d %s row_mask:0xf bank_mask:0xf' % (r, r, r, ctl))
    inv = f32hex(1.0 / 640.0)
    for tile in range(2):
        su, sq = 16 + tile * 2, 17 + tile * 2
        R, C = 28 + 4 * tile, 30 + 4 * tile
        a('v_mul_f32 v24, %s, v%d' % (inv, su))
        a('v_mul_f32 v25, %s, v%d' % (inv, sq))
        a('v_fma_f32 v25, -v24, v24, v25')
        a('v_max_f32 v25, 0, v25')
        bf16r_pair(a, 24, 25, 24, 25, 26)
        a('v_add_f32 v25, %s, v25' % f32hex(1e-5))
        a('v_cvt_pk_bf16_f32 v26, v25, v25')
        a('v_lshlrev_b32 v25, 16, v26')
        a('v_sqrt_f32 v25, v25')
        a('v_cvt_pk_bf16_f32 v26, v25, v25')
        a('v_lshlrev_b32 v25, 16, v26')
        a('v_rcp_f32 v%d, v25' % R)
        a('v_mul_f32 v%d, v24, v%d' % (C, R))
        a('v_sub_f32 v%d, 0, v%d' % (C, C))
        a('v_mov_b32 v%d, v%d' % (R + 1, R))
        a('v_mov_b32 v%d, v%d' % (C + 1, C))
    a('s_lshl_b32 s49, s36, 4')
    for rho in range(2):
        a('v_lshrrev_b32 v24, 3, v0')
        a('v_add_u32 v24, s49, v24')
        if rho:
            a('v_add_u32 v24, 8, v24')
        a('v_bfe_u32 v25, v24, 1, 3')
        a('v_xor_b32 v25, v25, v14')
        a('v_mul_u32_u24 v24, 640, v24')
        a('v_lshl_add_u32 v24, v25, 4, v24')
        a('v_add_u32 v%d, %d, v24' % (16 + rho, K1_XS))
    a('s_lshl_b32 s49, s37, 5')
    for tile in range(2):
        a('v_add_u32 v24, s49, v11')
        if tile:
            a('v_add_u32 v24, 16, v24')
        a('v_bfe_u32 v25, v24, 1, 3')
        a('v_xor_b32 v25, v25, v12')
        a('v_mul_u32_u24 v24, 640, v24')
        a('v_add_u32 v24, %d, v24' % K1_XS)
        a('v_lshl_add_u32 v%d, v25, 4, v24' % (20 + tile * 2))
        a('v_xor_b32 v25, 4, v25')
        a('v_lshl_add_u32 v%d, v25, 4, v24' % (21 + tile * 2))
    n = 0
    for half in range(2):
        for j in range(half * 5, half * 5 + 5):
            for rho in range(2):
                R, C = 28 + 4 * rho, 30 + 4 * rho
                base = k1_xreg(rho, j)
                tp = [40 + 2 * ((n + q) % 8) for q in range(4)]
                n += 4
                for q in range(4):
                    a('v_lshlrev_b32 v%d, 16, v%d' % (tp[q], base + q))
                    a('v_and_b32 v%d, 0xffff0000, v%d' % (tp[q] + 1, base + q))
                for q in range(4):
                    a('v_pk_fma_f32 %s, %s, %s, %s' % (vr(tp[q], 2), vr(tp[q], 2), vr(R, 2), vr(C, 2)))
                for q in range(4):
                    a('v_cvt_pk_bf16_f32 v%d, v%d, v%d' % (base + q, tp[q], tp[q] + 1))
                if half == 0:
                    a('ds_write_b128 v%d, %s offset:%d' % (16 + rho, vr(base, 4), (j % 5) * 128), tag='xw')
        if half == 1:
            a.wait_lg_all()
            a('s_barrier')
            for j in range(5, 10):
                for rho in range(2):
                    a('ds_write_b128 v%d, %s offset:%d' % (16 + rho, vr(k1_xreg(rho, j), 4), (j % 5) * 128), tag='xw')
        a.wait_lg_all()
        a('s_barrier')
        for sp in range(10):
            for tile in range(2):
                a('ds_read_b128 %s, v%d offset:%d' % (vr(k1_areg(tile, half * 10 + sp), 4), 20 + tile * 2 + (sp & 1), (sp >> 1) * 128),
                  tag='xr')
    a.wait_lg_all()
    stamp(a)
    L_nz = a.newlabel('k1nz')
    a('s_or_b32 s57, s2, s36')
    a('s_cmp_lg_u32 s57, 0')
    a.branch('s_cbranch_scc1 %s' % L_nz)
    sv = list(a.vm)
    a('v_mov_b32 v24, 0')
    a('v_mov_b32 v25, 0')
    a('v_mov_b32 v26, 0')
    a('v_mov_b32 v27, 0')
    a('v_lshlrev_b32 v22, 5, v0')
    a('s_mov_b32 s57, %d' % WS_CNT)
    a('buffer_store_dwordx4 v[24:27], v22, s[28:31], s57 offen')
    a('buffer_store_dwordx4 v[24:27], v22, s[28:31], s57 offen offset:16')
    a('s_waitcnt vmcnt(0)')
    a.vm = sv
    a.label(L_nz)
    a.wait_vm('RP')
    a('buffer_store_dwordx4 v[56:59], v64, s[28:31], 0 offen' + STF, tag='st')
    a('buffer_store_dwordx4 v[60:63], v65, s[28:31], 0 offen' + STF, tag='st')
    stamp(a)
    L_v = a.newlabel('k1v')
    L_g = a.newlabel('k1g')
    a('s_cmp_ge_u32 s35, 6')
    a.branch('s_cbranch_scc1 %s' % L_g)
    a('s_cmp_ge_u32 s35, 4')
    a.branch('s_cbranch_scc1 %s' % L_v)
    saved = (list(a.vm), list(a.lg))
    sn = _stamp_n[0]
    k1_body(a, 'qk')
    a.branch('s_branch %s' % L_end)
    a.label(L_v)
    a.vm, a.lg = list(saved[0]), list(saved[1])
    stamp_reset(sn)
    k1_body(a, 'v')
    a.branch('s_branch %s' % L_end)
    a.label(L_g)
    a.vm, a.lg = list(saved[0]), list(saved[1])
    stamp_reset(sn)
    k1_body(a, 'gu')
    a.label(L_end)
    a('s_endpgm')


def k1_body(a, kind):
    def issue_dma(t):
        p, st = divmod(t, 5)
        slot = t % 3
        a('s_mul_i32 s50, s46, %d' % st)
        if p:
            a('s_add_u32 s51, s50, s56')
            a('s_add_u32 s50, s50, 128')
        else:
            a('s_mov_b32 s51, s50')
        srd1, srd2 = (16, 20) if p == 0 else (20, 16)
        for i in range(3):
            a('s_add_u32 m0, s47, %d' % (slot * K1_SLOT + i * 1024))
            a('buffer_load_dwordx4 v%d, %s, s50 offen lds' % (V_DMA + i, sr(srd1, 4)), tag=('D', t))
        for i in range(2):
            a('s_add_u32 m0, s48, %d' % (slot * K1_SLOT + i * 1024))
            a('buffer_load_dwordx4 v%d, %s, s51 offen lds' % (V_DMA + 3 + i, sr(srd2, 4)), tag=('D', t))

    pending = []

    def dma_pieces(t):
        p, st = divmod(t, 5)
        slot = t % 3
        srd1, srd2 = (16, 20) if p == 0 else (20, 16)
        out = []

        def head():
            a('s_mul_i32 s50, s46, %d' % st)
            if p:
                a('s_add_u32 s51, s50, s56')
                a('s_add_u32 s50, s50, 128')
            else:
                a('s_mov_b32 s51, s50')
        for i in range(3):
            def piece(i=i):
                if i == 0:
                    head()
                a('s_add_u32 m0, s47, %d' % (slot * K1_SLOT + i * 1024))
                a('buffer_load_dwordx4 v%d, %s, s50 offen lds' % (V_DMA + i, sr(srd1, 4)), tag=('D', t))
            out.append(piece)
        for i in range(2):
            def piece(i=i):
                a('s_add_u32 m0, s48, %d' % (slot * K1_SLOT + i * 1024))
                a('buffer_load_dwordx4 v%d, %s, s51 offen lds' % (V_DMA + 3 + i, sr(srd2, 4)), tag=('D', t))
            out.append(piece)
        return out

    cur_slot = [0]
    R1MAP = [[(0, 2), (1, 3), (4, 5)], [(0, 1), (2, 4), (3, 5)]]

    def read_addrs(p):
        a('v_bfe_u32 v16, v0, 2, 2')
        a('v_and_b32 v17, 3, v0')
        a('v_lshl_add_u32 v18, v12, 3, v16')
        a('v_and_b32 v19, 1, v12')
        a('v_mul_u32_u24 v21, 192, v18')
        a('v_lshl_add_u32 v21, v17, 3, v21')
        base = cur_slot[0] * K1_SLOT
        if base:
            a('v_add_u32 v21, %d, v21' % base)
        for j in range(3):
            a('s_cmp_eq_u32 s38, 0')
            a('s_cselect_b32 s50, %d, %d' % R1MAP[p][j])
            a('v_xor_b32 v20, s50, v19')
            a('v_lshl_add_u32 v%d, v20, 5, v21' % (V_RD + j))
        a('v_lshrrev_b32 v20, 1, v16')
        a('v_lshl_or_b32 v19, v19, 1, v20')
        a('v_lshlrev_b32 v21, 7, v18')
        a('v_lshl_add_u32 v21, v17, 3, v21')
        a('v_add_u32 v21, %d, v21' % (base + K1_R2))
        a('s_lshl_b32 s49, s38, 1')
        for j in range(2):
            a('s_add_u32 s50, s49, %d' % j)
            a('v_xor_b32 v20, s50, v19')
            a('v_lshl_add_u32 v%d, v20, 5, v21' % (V_RD + 3 + j))

    def set_slot(slot):
        d = (slot - cur_slot[0]) * K1_SLOT
        if d:
            for j in range(5):
                if d > 0:
                    a('v_add_u32 v%d, %d, v%d' % (V_RD + j, d, V_RD + j))
                else:
                    a('v_subrev_u32 v%d, %d, v%d' % (V_RD + j, -d, V_RD + j))
        cur_slot[0] = slot

    def read_unit(n, j):
        ks = n % 4
        b = V_B + (n % 2) * 20 + j * 4
        if j < 3:
            o = ks * 6144
            a('ds_read_b64_tr_b16 %s, v%d offset:%d' % (vr(b, 2), V_RD + j, o), tag=('B', n, j))
            a('ds_read_b64_tr_b16 %s, v%d offset:%d' % (vr(b + 2, 2), V_RD + j, o + 768), tag=('B', n, j))
        else:
            o = ks * 4096
            a('ds_read_b64_tr_b16 %s, v%d offset:%d' % (vr(b, 2), V_RD + j, o), tag=('B', n, j))
            a('ds_read_b64_tr_b16 %s, v%d offset:%d' % (vr(b + 2, 2), V_RD + j, o + 512), tag=('B', n, j))

    def stage_enter(t):
        a.wait_lg_all()
        a.wait_vm(('D', t))
        a('s_barrier')
        if t + 2 <= 9:
            pending.extend(dma_pieces(t + 2))
        if t % 5 == 0:
            cur_slot[0] = t % 3
            read_addrs(t // 5)
        else:
            set_slot(t % 3)

    a('v_and_b32 v11, 15, v0')
    a('v_lshrrev_b32 v12, 4, v0')
    stage_enter(0)
    stamp(a)
    for j in range(5):
        read_unit(0, j)
    for n in range(40):
        p, s = divmod(n, 20)
        nxt = n + 1
        if nxt < 40 and nxt % 4 == 0:
            stage_enter(nxt // 4)
        for j in range(5):
            a.wait_lg(('B', n, j))
            b = V_B + (n % 2) * 20 + j * 4
            for tile in range(2):
                acc = vr(k1_acc(j, tile), 4)
                c = acc if s else '0'
                A = vr(k1_areg(tile, s), 4)
                B = vr(b, 4)
                if kind == 'v':
                    a('v_mfma_f32_16x16x32_bf16 %s, %s, %s, %s' % (acc, A, B, c))
                else:
                    a('v_mfma_f32_16x16x32_bf16 %s, %s, %s, %s' % (acc, B, A, c))
            if nxt < 40:
                read_unit(nxt, j)
            if pending and j in (1, 3):
                pending.pop(0)()
        if s == 19:
            stamp(a)
            k1_epilogue(a, kind, p)
            stamp(a)
    if STAMP:
        a.wait_vm_all()
        stamp(a)
    stamp_dump(a, 36)
    rt_end(a, 36, 0)


def k1_epilogue(a, kind, p):
    T = 36
    R1MAP = [[(0, 2), (1, 3), (4, 5)], [(0, 1), (2, 4), (3, 5)]]
    if p == 0:
        units = [R1MAP[0][j] for j in range(3)] + [(6, 8), (7, 9)]
    else:
        units = [(10 + R1MAP[1][j][0], 10 + R1MAP[1][j][1]) for j in range(3)] + [(16, 18), (17, 19)]
    if kind == 'qk':
        a('s_and_b32 s52, s35, 1')
        a('s_mul_i32 s52, s52, 80')
        a('s_lshr_b32 s53, s35, 1')
        a('s_mul_i32 s53, s53, %d' % WS_K)
        a('s_mul_i32 s55, s39, 40')
        a('s_add_u32 s53, s53, s55')
        a('v_lshlrev_b32 v13, 3, v11')
        for j in range(5):
            a('s_cmp_eq_u32 s38, 0')
            a('s_cselect_b32 s54, %d, %d' % (units[j][0], units[j][1]))
            a('s_lshl_b32 s54, s54, 2')
            a('s_add_u32 s54, s54, s52')
            a('v_add_u32 v%d, s54, v12' % T)
            a('v_mul_u32_u24 v%d, 205, v%d' % (T + 1, T))
            a('v_lshrrev_b32 v%d, 10, v%d' % (T + 1, T + 1))
            a('v_mul_u32_u24 v%d, 5, v%d' % (T + 2, T + 1))
            a('v_sub_u32 v%d, v%d, v%d' % (T + 2, T, T + 2))
            a('v_mul_u32_u24 v%d, 81920, v%d' % (T + 1, T + 1))
            a('v_lshl_add_u32 v%d, v%d, 7, v%d' % (T + 1, T + 2, T + 1))
            a('v_add_u32 v%d, v%d, v13' % (T + 1, T + 1))
            for tile in range(2):
                ac = k1_acc(j, tile)
                d = T + 4 + tile * 2
                a('v_cvt_pk_bf16_f32 v%d, v%d, v%d' % (d, ac, ac + 1))
                a('v_cvt_pk_bf16_f32 v%d, v%d, v%d' % (d + 1, ac + 2, ac + 3))
                a('buffer_store_dwordx2 %s, v%d, s[28:31], s53 offen offset:%d%s' % (vr(d, 2), T + 1, tile * 640, STF), tag='st')
            T = 36 + ((T - 36 + 8) % 16)
    elif kind == 'v':
        a('s_sub_u32 s52, s35, 4')
        a('s_mul_i32 s52, s52, 320')
        a('s_mul_i32 s53, s39, 40')
        a('s_add_u32 s53, s53, %d' % WS_VT)
        a('v_lshlrev_b32 v13, 8, v12')
        a('v_lshlrev_b32 v14, 6, v12')
        a('v_add_u32 v14, 1024, v14')
        for j in range(5):
            a('s_cmp_eq_u32 s38, 0')
            a('s_cselect_b32 s54, %d, %d' % (units[j][0], units[j][1]))
            a('s_lshl_b32 s54, s54, 4')
            a('s_add_u32 s54, s54, s52')
            a('v_add_u32 v%d, s54, v11' % (T + 4))
            a('v_mul_u32_u24 v%d, 3277, v%d' % (T + 5, T + 4))
            a('v_lshrrev_b32 v%d, 16, v%d' % (T + 5, T + 5))
            a('v_mul_u32_u24 v%d, 20, v%d' % (T + 6, T + 5))
            a('v_sub_u32 v%d, v%d, v%d' % (T + 6, T + 4, T + 6))
            a('v_cmp_le_u32 vcc, 16, v%d' % (T + 6))
            a('v_cndmask_b32 v%d, v13, v14, vcc' % (T + 7))
            a('v_and_b32 v%d, 15, v%d' % (T + 6, T + 6))
            a('v_mul_u32_u24 v%d, 81920, v%d' % (T + 5, T + 5))
            a('v_lshl_add_u32 v%d, v%d, 4, v%d' % (T + 5, T + 6, T + 5))
            a('v_add_u32 v%d, v%d, v%d' % (T + 5, T + 5, T + 7))
            d = T
            for tile in range(2):
                ac = k1_acc(j, tile)
                a('v_cvt_pk_bf16_f32 v%d, v%d, v%d' % (d + tile * 2, ac, ac + 1))
                a('v_cvt_pk_bf16_f32 v%d, v%d, v%d' % (d + tile * 2 + 1, ac + 2, ac + 3))
            a('buffer_store_dwordx4 %s, v%d, s[28:31], s53 offen%s' % (vr(d, 4), T + 5, STF), tag='st')
            T = 36 + ((T - 36 + 8) % 16)
    else:
        a('v_lshlrev_b32 v13, 4, v0')
        a('s_lshr_b32 s52, s39, 4')
        a('s_mul_i32 s52, s52, %d' % (48 * 1024))
        a('s_add_u32 s52, s52, %d' % WS_H)
        a('s_lshl_b32 s55, s36, 11')
        a('s_add_u32 s55, s55, %d' % K1_STASH)
        a('v_add_u32 v14, s55, v13')

        def silu_mul(g0, u0, dst):
            t = 36
            bf16r_pair(a, t, t + 1, g0, g0 + 1, t + 8)
            bf16r_pair(a, t + 2, t + 3, g0 + 2, g0 + 3, t + 9)
            bf16r_pair(a, t + 4, t + 5, u0, u0 + 1, t + 10)
            bf16r_pair(a, t + 6, t + 7, u0 + 2, u0 + 3, t + 11)
            for r in range(4):
                a('v_mul_f32 v%d, %s, v%d' % (t + 8 + r, f32hex(-LOG2E), t + r))
            for r in range(4):
                a('v_exp_f32 v%d, v%d' % (t + 8 + r, t + 8 + r))
            for r in range(4):
                a('v_add_f32 v%d, 1.0, v%d' % (t + 8 + r, t + 8 + r))
            for r in range(4):
                a('v_rcp_f32 v%d, v%d' % (t + 8 + r, t + 8 + r))
            for r in range(4):
                a('v_mul_f32 v%d, v%d, v%d' % (t + r, t + r, t + 8 + r))
            bf16r_pair(a, t, t + 1, t, t + 1, t + 8)
            bf16r_pair(a, t + 2, t + 3, t + 2, t + 3, t + 9)
            for r in range(4):
                a('v_mul_f32 v%d, v%d, v%d' % (t + r, t + r, t + 4 + r))
            a('v_cvt_pk_bf16_f32 v%d, v%d, v%d' % (dst, t, t + 1))
            a('v_cvt_pk_bf16_f32 v%d, v%d, v%d' % (dst + 1, t + 2, t + 3))

        def two_pairs(pair0, ga, ua, gb, ub):
            a('s_lshl_b32 s54, s38, 1')
            a('s_add_u32 s54, s54, s44')
            a('s_add_u32 s54, s54, %d' % pair0)
            a('s_lshl_b32 s54, s54, 9')
            a('s_add_u32 s54, s54, s52')
            a('s_add_u32 s55, s54, %d' % (48 * 1024))
            for tile in range(2):
                d = 48 if tile == 0 else 52
                silu_mul(k1_acc(ga, tile), k1_acc(ua, tile), d)
                silu_mul(k1_acc(gb, tile), k1_acc(ub, tile), d + 2)
                a('buffer_store_dwordx4 %s, v13, s[28:31], s%d offen%s' % (vr(d, 4), 54 + tile, STF), tag='st')

        if p == 0:
            a('ds_write_b128 v14, %s offset:0' % vr(k1_acc(2, 0), 4), tag='stash')
            a('ds_write_b128 v14, %s offset:1024' % vr(k1_acc(2, 1), 4), tag='stash')
            two_pairs(0, 0, 3, 1, 4)
        else:
            a('ds_read_b128 v[48:51], v14 offset:0', tag='stash')
            a('ds_read_b128 v[52:55], v14 offset:1024', tag='stash')
            a.wait_lg('stash')
            a('s_add_u32 s54, s44, s38')
            a('s_add_u32 s54, s54, 4')
            a('s_lshr_b32 s55, s54, 1')
            a('s_lshl_b32 s55, s55, 10')
            a('s_and_b32 s54, s54, 1')
            a('s_lshl_b32 s54, s54, 3')
            a('s_add_u32 s54, s54, s55')
            a('s_add_u32 s54, s54, s52')
            a('s_add_u32 s55, s54, %d' % (48 * 1024))
            for tile in range(2):
                d = k1_acc(0, tile)
                silu_mul(48 + tile * 4, k1_acc(0, tile), d)
                a('buffer_store_dwordx2 %s, v13, s[28:31], s%d offen%s' % (vr(d, 2), 54 + tile, STF), tag='st')
            L_skip = a.newlabel('k1skip')
            a('s_cmp_lt_u32 s45, 10')
            a.branch('s_cbranch_scc1 %s' % L_skip)
            two_pairs(6, 3, 1, 4, 2)
            a.label(L_skip)


def kernel_desc(name, vgpr, sgpr=96):
    return '''.section .rodata,"a"
.p2align 6
.amdhsa_kernel %s
  .amdhsa_next_free_vgpr %d
  .amdhsa_next_free_sgpr %d
  .amdhsa_accum_offset %d
  .amdhsa_group_segment_fixed_size 0
  .amdhsa_kernarg_size 80
  .amdhsa_user_sgpr_count 2
  .amdhsa_user_sgpr_kernarg_segment_ptr 1
  .amdhsa_system_sgpr_workgroup_id_x 1
.end_amdhsa_kernel
.text
''' % (name, vgpr, sgpr, (vgpr + 3) // 4 * 4)


HEADER = '''; Kernarg layout (80 bytes): A_x, A_wqkv, A_wo, B_x, B_w_gate, B_w_up, B_w_down, d_out, d_debug, d_ws
'''


def main():
    launches = []
    a = Asm()
    a.raw('.amdgcn_target "amdgcn-amd-amdhsa--gfx950"')
    a.raw('.text')
    which = os.environ.get('GEN_KERNELS', '123')
    descs = []
    if '1' in which:
        gen_k1(a)
        launches.append('; @launch kernel=k1_kernel grid=(256,1,1) block=(512,1,1) lds=%d' % K1_LDS)
        descs.append(kernel_desc('k1_kernel', 256))
    try:
        import gen2
        gen2.emit(a, launches, descs, which)
    except ImportError:
        pass
    out = HEADER + '\n'.join(launches) + '\n' + a.text() + ''.join(descs)
    path = sys.argv[1] if len(sys.argv) > 1 else 'parallel_sum__sliding_block__swiglu_ffn__prompt.s'
    open(path, 'w').write(out)
    print('wrote', path, len(out), 'bytes')


if __name__ == '__main__':
    import gen
    gen.main()
```

```python
import os
from asmlib import Asm, vr, sr
from gen import (WS_Q, WS_K, WS_VT, WS_H, WS_O, WS_F, WS_WD, WS_WO, WS_END, WS_CNT, LOG2E, f32hex, make_srd, bf16r_pair,
                 kernel_desc, rt_start, rt_end, stamp, stamp_reset, stamp_dump)

G_SLOT = 20480
K2_LDS = 81920
K3_LDS = 102400


def gemm_fused(a, wg_sreg):
    NS1, NS = 12, 17
    RING = 4
    AR = 4
    V_L16 = 1
    V_RD = 2
    V_RD2 = 3
    V_B = 16
    V_ACC = 56
    V_A = 96
    stamp_reset()
    stamp(a)
    if os.environ.get('GEN_GPRIO'):
        a('s_setprio %s' % os.environ['GEN_GPRIO'])
    a('s_load_dwordx2 s[6:7], s[0:1], 0')
    a('s_load_dwordx2 s[8:9], s[0:1], 56')
    a('s_load_dwordx2 s[10:11], s[0:1], 64')
    a('s_load_dwordx2 s[12:13], s[0:1], 72')
    a('s_and_b32 s32, s%d, 7' % wg_sreg)
    a('s_lshr_b32 s33, s%d, 3' % wg_sreg)
    a('s_and_b32 s34, s32, 3')
    a('s_lshl_b32 s34, s34, 3')
    a('s_and_b32 s35, s33, 7')
    a('s_add_u32 s34, s34, s35')
    a('s_lshr_b32 s35, s32, 2')
    a('s_lshl_b32 s35, s35, 2')
    a('s_lshr_b32 s40, s33, 3')
    a('s_add_u32 s35, s35, s40')
    a('v_lshrrev_b32 v9, 6, v0')
    a('v_readfirstlane_b32 s36, v9')
    a('v_and_b32 v0, 63, v0')
    a('v_and_b32 v9, 15, v0')
    a('v_lshrrev_b32 v10, 4, v0')
    a('s_and_b32 s37, s36, 3')
    a('s_lshr_b32 s38, s36, 2')
    a('s_lshl_b32 s39, s34, 6')
    a('s_lshl_b32 s40, s37, 4')
    a('s_add_u32 s39, s39, s40')
    a('v_lshlrev_b32 v%d, 4, v0' % V_L16)
    a.wait_lg_all()
    make_srd(a, 28, 's12', 's13', WS_END)
    make_srd(a, 20, 's6', 's7', 2048 * 1280)
    make_srd(a, 24, 's8', 's9', 2048 * 1280)
    make_srd(a, 16, 's10', 's11', 256)
    a('s_lshr_b32 s40, s39, 4')
    a('s_lshl_b32 s42, s38, 10')
    a('s_mul_i32 s41, s40, %d' % (48 * 1024))
    a('s_add_u32 s41, s41, s42')
    a('s_add_u32 s41, s41, %d' % WS_H)
    a('s_mul_i32 s48, s40, %d' % (20 * 1024))
    a('s_add_u32 s48, s48, s42')
    a('s_add_u32 s48, s48, %d' % WS_O)
    a('s_mul_i32 s44, s36, 2560')
    a('s_mul_i32 s42, s35, %d' % (1536 * 160))
    a('s_add_u32 s42, s42, s44')
    a('s_add_u32 s42, s42, %d' % WS_WD)
    a('s_mul_i32 s49, s35, %d' % (640 * 160))
    a('s_add_u32 s49, s49, s44')
    a('s_add_u32 s49, s49, %d' % WS_WO)
    a('v_bfe_u32 v11, v0, 2, 2')
    a('v_lshl_add_u32 v11, v10, 2, v11')
    a('v_mul_u32_u24 v11, 160, v11')
    a('v_and_b32 v12, 3, v0')
    a('v_lshl_add_u32 v11, v12, 3, v11')
    a('s_mul_i32 s43, s38, 5120')
    a('v_add_u32 v%d, s43, v11' % V_RD)
    a('v_add_u32 v%d, 61440, v%d' % (V_RD2, V_RD))

    def areg(t, q):
        return V_A + ((t % AR) * 2 + q) * 4

    def issue_a(slot4, fl=''):
        for q in range(2):
            a('buffer_load_dwordx4 %s, v%d, s[28:31], s45 offen offset:%d%s' % (vr(areg(slot4, q), 4), V_L16, q * 2048, fl))

    def issue_b(slot4):
        a('s_add_u32 m0, s44, %d' % (slot4 * G_SLOT))
        for i in range(3):
            if i == 2:
                a('s_mov_b64 exec, 0xffffffff')
            a('buffer_load_dwordx4 v%d, s[28:31], s46 offen offset:%d lds' % (V_L16, i * 1024))
            if i == 2:
                a('s_mov_b64 exec, -1')

    def adv_b():
        a('s_add_u32 s46, s46, %d' % G_SLOT)
        a('s_add_u32 s47, s47, 1')
        a('s_cmp_eq_u32 s47, %d' % NS1)
        a('s_cselect_b32 s46, s49, s46')
        a('s_cmp_ge_u32 s47, %d' % NS)
        a('s_cselect_b32 s46, s53, s46')

    def adv_a():
        a('s_add_u32 s45, s45, 4096')
        a('s_cmp_eq_u32 s45, s54')
        a('s_cselect_b32 s45, s53, s45')

    def poll():
        L = a.newlabel('poll')
        Lskip = a.newlabel('pollskip')
        a('s_cmp_lg_u32 s36, 0')
        a.branch('s_cbranch_scc1 %s' % Lskip)
        a('s_lshr_b32 s50, s34, 2')
        a('s_lshl_b32 s50, s50, 8')
        a('s_add_u32 s50, s50, %d' % WS_CNT)
        a('v_mov_b32 v12, 0')
        a.label(L)
        a('buffer_load_dword v11, v12, s[28:31], s50 offen sc1')
        a('s_waitcnt vmcnt(0)')
        a('v_readfirstlane_b32 s51, v11')
        a('s_cmp_ge_u32 s51, 32')
        Ld = a.newlabel('polled')
        a.branch('s_cbranch_scc1 %s' % Ld)
        a('s_sleep 16')
        a.branch('s_branch %s' % L)
        a.label(Ld)
        a.label(Lskip)
        a('s_barrier')

    a('s_mov_b32 s53, 0x70000000')
    a('s_add_u32 s54, s41, %d' % (NS1 * 4096))
    a('s_mov_b32 s45, s41')
    a('s_mov_b32 s46, s42')
    a('s_mov_b32 s47, 0')
    for t in range(RING):
        issue_a(t)
        adv_a()
        issue_b(t)
        adv_b()
    for r in range(3):
        a('v_add_u32 v11, %d, v0' % (64 * r))
        a('v_mul_u32_u24 v12, 52429, v11')
        a('v_lshrrev_b32 v12, 19, v12')
        a('v_mul_u32_u24 v13, 10, v12')
        a('v_sub_u32 v13, v11, v13')
        a('v_add_u32 v14, s39, v12')
        a('v_mul_u32_u24 v14, 1280, v14')
        a('v_lshl_add_u32 v14, v13, 4, v14')
        a('s_mul_i32 s50, s35, 160')
        a('v_add_u32 v%d, s50, v14' % (5 + r))
        if r == 2:
            a('v_mov_b32 v14, 0x40000000')
            a('v_cmp_gt_u32 vcc, 32, v0')
            a('v_cndmask_b32 v7, v14, v7, vcc')
    X = 112
    for r in range(20):
        a('v_mov_b32 v%d, 0' % (V_ACC + r))

    def read_unit(n, j):
        t, q = divmod(n % 8, 2)
        b = V_B + (n % 2) * 20 + j * 4
        o = t * G_SLOT + q * 64 * 160 + j * 32
        rd = V_RD
        if o >= 61440:
            o -= 61440
            rd = V_RD2
        a('ds_read_b64_tr_b16 %s, v%d offset:%d' % (vr(b, 2), rd, o), tag=('B', n % 8, j))
        a('ds_read_b64_tr_b16 %s, v%d offset:%d' % (vr(b + 2, 2), rd, o + 16 * 160), tag=('B', n % 8, j))

    def kstep(n, last=False, tail=False):
        t, q = divmod(n, 2)
        if q == 1 and not last:
            a.wait_lg_all()
            a('s_waitcnt vmcnt(12)')
            a('s_barrier')
            issue_b(t)
            adv_b()
        if q == 0 and tail:
            for r in range(3):
                a('buffer_load_dwordx4 %s, v%d, s[20:23], 0 offen' % (vr(X + r * 4, 4), 5 + r))
            a('s_waitcnt vmcnt(16)')
        elif q == 0:
            issue_a((t + 3) % 4, ' sc1')
            adv_a()
            a('s_waitcnt vmcnt(15)')
        for j in range(5):
            a.wait_lg(('B', n, j))
            b = V_B + (n % 2) * 20 + j * 4
            acc = vr(V_ACC + j * 4, 4)
            a('v_mfma_f32_16x16x32_bf16 %s, %s, %s, %s' % (acc, vr(b, 4), vr(areg(t, q), 4), acc))
            if not last:
                read_unit(n + 1, j)

    stamp(a)
    a('s_waitcnt vmcnt(15)')
    a('s_barrier')
    stamp(a)
    a.lg = []
    for j in range(5):
        read_unit(0, j)
    a('s_sub_u32 s45, s45, 4096')
    a('s_mov_b32 s52, 0')
    L_loop = a.newlabel('gloop')
    L_ph2 = a.newlabel('gph2')
    L_tail = a.newlabel('gtail')
    a.label(L_loop)
    a.lg = [('B', 0, j) for j in range(5) for _ in range(2)]
    for n in range(8):
        kstep(n)
    a('s_add_u32 s52, s52, 1')
    a('s_cmp_lt_u32 s52, 3')
    a.branch('s_cbranch_scc1 %s' % L_loop)
    a('s_cmp_eq_u32 s52, 4')
    a.branch('s_cbranch_scc1 %s' % L_tail)
    stamp(a)
    for r in range(20):
        a('v_mov_b32 v%d, v%d' % (V_ACC + 20 + r, V_ACC + r))
    for r in range(20):
        a('v_mov_b32 v%d, 0' % (V_ACC + r))
    poll()
    a('s_waitcnt vmcnt(0)')
    a('s_mov_b32 s45, s48')
    a('s_add_u32 s54, s48, %d' % ((NS - NS1) * 4096))
    for t in range(3):
        issue_a(t, ' sc1')
        adv_a()
    a('s_waitcnt vmcnt(0)')
    stamp(a)
    a.branch('s_branch %s' % L_loop)
    a.label(L_tail)
    a.lg = [('B', 0, j) for j in range(5) for _ in range(2)]
    kstep(0, tail=True)
    kstep(1, last=True)
    a.vm = []
    stamp(a)
    L_hi = a.newlabel('g2hi')
    L_done = a.newlabel('g2done')
    a('s_waitcnt vmcnt(0)')
    a('s_barrier')
    a('s_mul_i32 s45, s37, 10240')
    a('v_add_u32 v4, s45, v%d' % V_L16)
    a('s_cmp_eq_u32 s38, 0')
    a.branch('s_cbranch_scc1 %s' % L_hi)
    for j in range(10):
        a('ds_write_b128 v4, %s offset:%d' % (vr(V_ACC + j * 4, 4), j * 1024), tag='ex')
    a.wait_lg_all()
    a('s_barrier')
    a.branch('s_branch %s' % L_done)
    a.label(L_hi)
    a('s_barrier')
    for j in range(10):
        a('ds_read_b128 %s, v4 offset:%d' % (vr(V_B + j * 4, 4), j * 1024), tag='ex')
    a.wait_lg_all()
    a('s_mul_i32 s45, s37, 5120')
    a('s_add_u32 s45, s45, 40960')
    a('v_mul_u32_u24 v11, 160, v9')
    a('v_lshl_add_u32 v11, v10, 3, v11')
    a('v_add_u32 v11, s45, v11')
    for j in range(10):
        ac = V_ACC + j * 4
        for r in range(4):
            a('v_add_f32 v%d, v%d, v%d' % (ac + r, ac + r, V_B + j * 4 + r))
        d = 96 + (j % 4) * 2
        a('v_cvt_pk_bf16_f32 v%d, v%d, v%d' % (d, ac, ac + 1))
        a('v_cvt_pk_bf16_f32 v%d, v%d, v%d' % (d + 1, ac + 2, ac + 3))
        a('ds_write_b64 v11, %s offset:%d' % (vr(d, 2), (1 - j // 5) * 2560 + (j % 5) * 32), tag='tw')
    a.wait_lg_all()
    a('v_add_u32 v12, s45, v%d' % V_L16)
    for r in range(3):
        a('ds_read_b128 %s, v12 offset:%d' % (vr(16 + r * 4, 4), r * 1024), tag='tr')
        a('ds_read_b128 %s, v12 offset:%d' % (vr(28 + r * 4, 4), 2560 + r * 1024), tag='tr')
    a.wait_lg_all()
    for r in range(3):
        for q in range(4):
            fv, av, xv = 16 + r * 4 + q, 28 + r * 4 + q, X + r * 4 + q
            t = 56 + (q % 2) * 8
            a('v_lshlrev_b32 v%d, 16, v%d' % (t, av))
            a('v_and_b32 v%d, 0xffff0000, v%d' % (t + 1, av))
            a('v_lshlrev_b32 v%d, 16, v%d' % (t + 2, xv))
            a('v_and_b32 v%d, 0xffff0000, v%d' % (t + 3, xv))
            a('v_add_f32 v%d, v%d, v%d' % (t, t, t + 2))
            a('v_add_f32 v%d, v%d, v%d' % (t + 1, t + 1, t + 3))
            bf16r_pair(a, t, t + 1, t, t + 1, t + 4)
            a('v_lshlrev_b32 v%d, 16, v%d' % (t + 2, fv))
            a('v_and_b32 v%d, 0xffff0000, v%d' % (t + 3, fv))
            a('v_add_f32 v%d, v%d, v%d' % (t, t, t + 2))
            a('v_add_f32 v%d, v%d, v%d' % (t + 1, t + 1, t + 3))
            a('v_cvt_pk_bf16_f32 v%d, v%d, v%d' % (av, t, t + 1))
        a('buffer_store_dwordx4 %s, v%d, s[24:27], 0 offen' % (vr(28 + r * 4, 4), 5 + r), tag='st')
    a.label(L_done)


def attention(a, wg_sreg):
    V_Q = 16
    V_O = 20
    V_S = 28
    V_KV = 100

    def S(t):
        return V_S + t * 4

    stamp_reset()
    stamp(a)
    a('s_setprio 3')
    a('s_load_dwordx2 s[12:13], s[0:1], 72')
    a('s_load_dwordx2 s[10:11], s[0:1], 64')
    a('s_and_b32 s32, s%d, 7' % wg_sreg)
    a('s_lshr_b32 s33, s%d, 3' % wg_sreg)
    a('s_lshl_b32 s34, s32, 2')
    a('s_and_b32 s35, s33, 3')
    a('s_add_u32 s34, s34, s35')
    a('s_lshr_b32 s35, s33, 2')
    a('v_lshrrev_b32 v1, 6, v0')
    a('v_readfirstlane_b32 s36, v1')
    a('v_and_b32 v0, 63, v0')
    a('v_and_b32 v1, 15, v0')
    a('v_lshrrev_b32 v2, 4, v0')
    a('v_lshlrev_b32 v3, 4, v0')
    a('s_lshl_b32 s37, s35, 3')
    a('s_add_u32 s37, s37, s36')
    a('s_lshl_b32 s37, s37, 5')
    a.wait_lg_all()
    a('s_mul_i32 s38, s34, 81920')
    for d, base in ((16, WS_Q), (20, WS_K), (24, WS_VT)):
        a('s_add_u32 s39, s38, %d' % base)
        a('s_add_u32 s%d, s12, s39' % d)
        a('s_addc_u32 s%d, s13, 0' % (d + 1))
        a('s_and_b32 s%d, s%d, 0xffff' % (d + 1, d + 1))
        a('s_mov_b32 s%d, 81920' % (d + 2))
        a('s_mov_b32 s%d, 0x00020000' % (d + 3))
    make_srd(a, 28, 's12', 's13', WS_END)
    a('s_mul_i32 s43, s35, 10240')
    a('s_mul_i32 s44, s36, 1280')
    a('s_add_u32 s45, s43, s44')
    a('v_add_u32 v10, s45, v3')
    a('v_add_u32 v11, 1024, v10')
    a('s_mov_b32 m0, s44')
    a('buffer_load_dwordx4 v10, s[16:19], 0 offen lds', tag='stg')
    a('s_add_u32 m0, s44, 1024')
    a('s_mov_b64 exec, 0xffff')
    a('buffer_load_dwordx4 v11, s[16:19], 0 offen lds', tag='stg')
    a('s_mov_b64 exec, -1')
    a('s_mul_i32 s44, s36, 2560')
    a('s_sub_u32 s45, s43, 10240')
    a('s_add_u32 s45, s45, s44')
    a('v_add_u32 v10, s45, v3')
    for i in range(3):
        a('v_add_u32 v11, %d, v10' % (i * 1024))
        if i == 2:
            a('s_mov_b64 exec, 0xffffffff')
        a('s_add_u32 m0, s44, %d' % (10240 + i * 1024))
        a('buffer_load_dwordx4 v11, s[20:23], 0 offen lds', tag='stg')
        a('s_add_u32 m0, s44, %d' % (30720 + i * 1024))
        a('buffer_load_dwordx4 v11, s[24:27], 0 offen lds', tag='stg')
        if i == 2:
            a('s_mov_b64 exec, -1')
    a('v_lshlrev_b32 v4, 2, v2')
    for r in range(4):
        a('v_add_u32 v5, %d, v4' % r)
        a('v_cmp_gt_u32 s[%d:%d], v5, v1' % (48 + 2 * r, 49 + 2 * r))
        a('v_cmp_le_u32 s[%d:%d], v5, v1' % (56 + 2 * r, 57 + 2 * r))
    a('v_mov_b32 v15, %s' % f32hex(-1e30))
    a('v_cmp_eq_u32 s[66:67], 4, v1')
    a('v_mov_b32 v14, 0x3f803f80')
    a('v_cmp_eq_u32 s[64:65], 0, v2')
    a('v_xor_b32 v5, 16, v0')
    a('v_lshlrev_b32 v5, 2, v5')
    a('v_xor_b32 v6, 32, v0')
    a('v_lshlrev_b32 v6, 2, v6')
    a('v_add_u32 v7, 16, v1')
    a('v_lshlrev_b32 v7, 2, v7')
    a('s_mul_i32 s39, s34, 5')
    a('v_add_u32 v8, s39, v2')

    def gpos(dst, G, t1, t2):
        a('v_lshrrev_b32 v%d, 3, v%d' % (t1, G))
        a('v_lshlrev_b32 v%d, 10, v%d' % (t1, t1))
        a('v_and_b32 v%d, 3, v%d' % (t2, G))
        a('v_lshl_add_u32 v%d, v%d, 8, v%d' % (t1, t2, t1))
        a('v_bfe_u32 v%d, v%d, 2, 1' % (t2, G))
        a('v_lshl_add_u32 v%d, v%d, 3, v%d' % (dst, t2, t1))
    gpos(8, 8, 10, 11)
    a('s_add_u32 s39, s39, 4')
    a('v_mov_b32 v9, s39')
    gpos(9, 9, 10, 11)
    a('v_mov_b32 v10, 0x40000000')
    a('v_cndmask_b32 v9, v10, v9, s[64:65]')
    a('v_lshlrev_b32 v10, 4, v1')
    a('v_add_u32 v8, v8, v10')
    a('v_add_u32 v9, v9, v10')
    a('s_mov_b32 s40, %s' % f32hex(20 ** -0.5 * LOG2E))
    a('s_mul_i32 s46, s36, 1280')
    a('v_lshlrev_b32 v4, 3, v0')
    a('v_add_u32 v4, s46, v4')
    a('v_lshlrev_b32 v13, 3, v1')
    a('v_add_u32 v13, s46, v13')
    a('v_add_u32 v13, 512, v13')
    a('v_add_u32 v12, s46, v3')
    a('v_add_u32 v12, 30720, v12')
    a('v_and_b32 v3, 3, v1')
    a('v_lshl_add_u32 v3, v2, 2, v3')
    a('v_lshlrev_b32 v3, 4, v3')
    a('v_add_u32 v3, s46, v3')
    a('v_add_u32 v3, %d, v3' % (30720 + 1024))
    a('v_mov_b32 v2, v12')
    a('s_mul_i32 s43, s37, 1280')
    a('s_add_u32 s43, s43, %d' % WS_O)
    a('s_sub_u32 s47, 256, s37')
    a('s_lshr_b32 s47, s47, 4')
    stamp(a)
    a.wait_vm_all()
    a('s_barrier')
    stamp(a)

    a('s_mov_b32 s42, 0')
    a('s_mov_b32 s41, 0')
    L_loop = a.newlabel('aloop')
    a.label(L_loop)
    a.lg = []
    tiles = list(range(18))
    a('v_add_u32 v10, s41, v4')
    a('v_add_u32 v11, s41, v13')
    a('ds_read_b64 %s, v10' % vr(V_Q, 2), tag='Q')
    a('ds_read_b64 %s, v11' % vr(V_Q + 2, 2), tag='Q')
    NB = 6
    for k, t in enumerate(tiles[:NB - 1]):
        a('ds_read_b64 %s, v4 offset:%d' % (vr(V_KV + (k % NB) * 4, 2), 10240 + t * 640), tag=('K', t))
        a('ds_read_b64 %s, v13 offset:%d' % (vr(V_KV + (k % NB) * 4 + 2, 2), 10240 + t * 640), tag=('K', t))
    a.wait_lg('Q')
    for r in (2, 3):
        a('v_cndmask_b32 v%d, 0, v%d, s[64:65]' % (V_Q + r, V_Q + r))
    for k, t in enumerate(tiles):
        kb = V_KV + (k % NB) * 4
        a.wait_lg(('K', t))
        for r in (2, 3):
            a('v_cndmask_b32 v%d, 0, v%d, s[64:65]' % (kb + r, kb + r))
        a('v_mfma_f32_16x16x32_bf16 %s, %s, %s, 0' % (vr(S(t), 4), vr(kb, 4), vr(V_Q, 4)))
        k2 = k + NB - 1
        if k2 < len(tiles):
            a('ds_read_b64 %s, v4 offset:%d' % (vr(V_KV + (k2 % NB) * 4, 2), 10240 + tiles[k2] * 640), tag=('K', tiles[k2]))
            a('ds_read_b64 %s, v13 offset:%d' % (vr(V_KV + (k2 % NB) * 4 + 2, 2), 10240 + tiles[k2] * 640), tag=('K', tiles[k2]))
    for b in range(2):
        for dt in range(2):
            a('ds_read_b128 %s, v%d offset:%d' % (vr(V_KV + (b % 3) * 8 + dt * 4, 4), 2 + dt, b * 1280), tag=('V', b))
    a('s_cmp_eq_u32 s42, 0')
    for k, t in enumerate((0, 1, 16, 17)):
        for r in range(4):
            F = 's[%d:%d]' % (48 + 2 * r, 49 + 2 * r)
            L = 's[%d:%d]' % (56 + 2 * r, 57 + 2 * r)
            v0_, v1_ = ((F, '0'), ('-1', F), (L, '-1'), ('0', L))[k]
            a('s_cselect_b64 s[44:45], %s, %s' % (v0_, v1_))
            a('v_cndmask_b32 v%d, v15, v%d, s[44:45]' % (S(t) + r, S(t) + r))
    L_noneg = a.newlabel('noneg')
    a('s_cmp_ge_u32 s37, 256')
    a.branch('s_cbranch_scc1 %s' % L_noneg)
    for t in range(16):
        a('s_cmp_le_u32 s47, %d' % t)
        a.branch('s_cbranch_scc1 %s' % L_noneg)
        for r in range(4):
            a('v_mov_b32 v%d, v15' % (S(t) + r))
    a.label(L_noneg)
    regs = [S(t) + r for t in tiles for r in range(4)]
    a('v_max3_f32 v10, v%d, v%d, v%d' % (regs[0], regs[1], regs[2]))
    a('v_max3_f32 v11, v%d, v%d, v%d' % (regs[3], regs[4], regs[5]))
    k = 6
    tog = 0
    while k + 1 < len(regs):
        mm = 10 + tog
        a('v_max3_f32 v%d, v%d, v%d, v%d' % (mm, mm, regs[k], regs[k + 1]))
        k += 2
        tog ^= 1
    if k < len(regs):
        a('v_max_f32 v10, v10, v%d' % regs[k])
    a('v_max_f32 v10, v10, v11')
    for addr in (5, 6):
        a('ds_bpermute_b32 v11, v%d, v10' % addr, tag='bp')
        a.wait_lg('bp')
        a('v_max_f32 v10, v10, v11')
    a('v_mul_f32 v10, s40, v10')
    a('v_sub_f32 v10, 0, v10')
    a('v_mov_b32 v11, s40')
    for b in range(9):
        for t in (2 * b, 2 * b + 1):
            for r in range(4):
                a('v_fma_f32 v%d, v%d, v11, v10' % (S(t) + r, S(t) + r))
            for r in range(4):
                a('v_exp_f32 v%d, v%d' % (S(t) + r, S(t) + r))
        p = S(2 * b)
        q = S(2 * b + 1)
        a('v_cvt_pk_bf16_f32 v%d, v%d, v%d' % (p, p, p + 1))
        a('v_cvt_pk_bf16_f32 v%d, v%d, v%d' % (p + 1, p + 2, p + 3))
        a('v_cvt_pk_bf16_f32 v%d, v%d, v%d' % (p + 2, q, q + 1))
        a('v_cvt_pk_bf16_f32 v%d, v%d, v%d' % (p + 3, q + 2, q + 3))
    for b in range(9):
        vb = V_KV + (b % 3) * 8
        a.wait_lg(('V', b))
        for r in range(4):
            a('v_cndmask_b32 v%d, v%d, v14, s[66:67]' % (vb + 4 + r, vb + 4 + r))
        for dt in range(2):
            o = vr(V_O + dt * 4, 4)
            a('v_mfma_f32_16x16x32_bf16 %s, %s, %s, %s' % (o, vr(vb + dt * 4, 4), vr(S(2 * b), 4), o if b else '0'))
        if b + 2 < 9:
            for dt in range(2):
                a('ds_read_b128 %s, v%d offset:%d' % (vr(V_KV + ((b + 2) % 3) * 8 + dt * 4, 4), 2 + dt, (b + 2) * 1280),
                  tag=('V', b + 2))
    a('ds_bpermute_b32 v10, v7, v%d' % (V_O + 4), tag='bp')
    a.wait_lg_all()
    a('v_rcp_f32 v10, v10')
    for dt in range(2):
        o = V_O + dt * 4
        for r in range(4):
            a('v_mul_f32 v%d, v%d, v10' % (o + r, o + r))
        d = V_Q if dt == 0 else o
        a('v_cvt_pk_bf16_f32 v%d, v%d, v%d' % (d, o, o + 1))
        a('v_cvt_pk_bf16_f32 v%d, v%d, v%d' % (d + 1, o + 2, o + 3))
        a('buffer_store_dwordx2 %s, v%d, s[28:31], s43 offen sc1' % (vr(d, 2), 8 + dt), tag='st')
    a('s_add_u32 s43, s43, %d' % (20 * 1024))
    a('s_add_u32 s41, s41, 640')
    a('s_add_u32 s42, s42, 1')
    a('s_cmp_lt_u32 s42, 2')
    a.branch('s_cbranch_scc1 %s' % L_loop)
    stamp(a)
    a.wait_vm_all()
    stamp(a)
    a('s_barrier')
    stamp(a)
    L_np = a.newlabel('nopub')
    a('s_cmp_lg_u32 s36, 0')
    a.branch('s_cbranch_scc1 %s' % L_np)
    a('s_lshl_b32 s44, s35, 8')
    a('s_add_u32 s44, s44, %d' % WS_CNT)
    a('v_mov_b32 v10, 1')
    a('v_mov_b32 v11, 0')
    a('s_mov_b64 exec, 1')
    a('buffer_atomic_add v10, v11, s[28:31], s44 offen sc1')
    a('s_mov_b64 exec, -1')
    a.label(L_np)


def emit(a, launches, descs, which):
    if '2' in which:
        name = 'k2_kernel'
        a.raw('.globl %s' % name)
        a.raw('.p2align 8')
        a.raw('.type %s,@function' % name)
        a.raw('%s:' % name)
        a.hist = []
        a.vm = []
        a.lg = []
        a('s_cmp_ge_u32 s2, 512')
        a.branch('s_cbranch_scc1 .k2_end')
        rt_start(a)
        a('s_cmp_ge_u32 s2, 256')
        a.branch('s_cbranch_scc1 .k2_gemm')
        attention(a, 2)
        a.wait_vm_all()
        stamp(a)
        stamp_dump(a, 36)
        rt_end(a, 36, 1)
        a.branch('s_branch .k2_end')
        a.label('.k2_gemm')
        a.vm = []
        a.lg = []
        a('s_sub_u32 s3, s2, 256')
        gemm_fused(a, 3)
        a.wait_vm_all()
        stamp(a)
        stamp_dump(a, 36)
        rt_end(a, 36, 1)
        a.label('.k2_end')
        a('s_endpgm')
        launches.append('; @launch kernel=k2_kernel grid=(512,1,1) block=(512,1,1) lds=%d' % K2_LDS)
        descs.append(kernel_desc('k2_kernel', 128))
```

```python
import sys
import os
sys.path.insert(0, os.path.dirname(os.path.abspath(__file__)))
from asmlib import Asm, vr, sr

WS_Q = 0
WS_K = 0x400000
WS_VT = 0x800000
WS_H = 0xC00000
WS_O = 0x1200000
WS_F = 0x1480000
WS_WD = 0x1700000
WS_WO = 0x18E0000
WS_CNT = 0x19B0000
WS_END = 0x19B1000

LOG2E = 1.4426950408889634
STF = os.environ.get('GEN_STF', '')


def f32hex(x):
    import struct
    return '0x%08x' % struct.unpack('<I', struct.pack('<f', x))[0]


def make_srd(a, d, base_lo, base_hi, nrec):
    a('s_mov_b32 s%d, %s' % (d, base_lo))
    a('s_and_b32 s%d, %s, 0xffff' % (d + 1, base_hi))
    a('s_mov_b32 s%d, %s' % (d + 2, nrec if isinstance(nrec, str) else '0x%x' % nrec))
    a('s_mov_b32 s%d, 0x00020000' % (d + 3))


STAMP = os.environ.get('GEN_STAMP', '') != ''
_stamp_n = [0]


def stamp(a):
    if not STAMP:
        return
    i = _stamp_n[0]
    _stamp_n[0] += 1
    a.wait_lg_all()
    a('s_memtime s[%d:%d]' % (70 + 2 * i, 71 + 2 * i))
    a.wait_lg_all()


def stamp_reset(n=0):
    _stamp_n[0] = n


def rt_start(a):
    if not STAMP:
        return
    a('s_memrealtime s[92:93]')
    a('s_memtime s[90:91]')
    a.wait_lg_all()


def rt_end(a, wave_sreg, kidx):
    if not STAMP:
        return
    L = a.newlabel('nort')
    a('s_cmp_lg_u32 s%d, 0' % wave_sreg)
    a.branch('s_cbranch_scc1 %s' % L)
    a.wait_vm_all()
    a('s_memrealtime s[94:95]')
    a('s_memtime s[88:89]')
    a.wait_lg_all()
    a('s_mov_b32 s64, s12')
    a('s_and_b32 s65, s13, 0xffff')
    a('s_mov_b32 s66, 0x%x' % (WS_END + 65536))
    a('s_mov_b32 s67, 0x00020000')
    a('s_lshl_b32 s68, s2, 4')
    a('s_add_u32 s68, s68, %d' % (WS_END + kidx * 16384))
    a('v_mov_b32 v1, 0')
    a('v_mov_b32 v2, s92')
    a('v_mov_b32 v3, s94')
    a('s_sub_u32 s69, s88, s90')
    a('v_mov_b32 v4, s69')
    a('s_getreg_b32 s69, hwreg(HW_REG_XCC_ID)')
    a('v_mov_b32 v5, s69')
    a('buffer_store_dwordx4 v[2:5], v1, s[64:67], s68 offen')
    a.wait_vm_all()
    a.label(L)


def stamp_dump(a, wave_sreg):
    if not STAMP:
        return
    if os.environ.get('GEN_STAMP') == 'w':
        L = a.newlabel('nodump')
        a('s_cmp_lg_u32 s2, %s' % os.environ.get('GEN_WG', '0'))
        a.branch('s_cbranch_scc1 %s' % L)
        a('s_load_dwordx2 s[64:65], s[0:1], 64')
        a.wait_lg_all()
        a('s_and_b32 s65, s65, 0xffff')
        a('s_mov_b32 s66, 256')
        a('s_mov_b32 s67, 0x00020000')
        a('s_lshl_b32 s68, s%d, 5' % wave_sreg)
        a('v_mov_b32 v1, 0')
        for i in range(min(8, _stamp_n[0])):
            a('v_mov_b32 v2, s%d' % (70 + 2 * i))
            a('buffer_store_dword v2, v1, s[64:67], s68 offen offset:%d' % (4 * i))
        a.wait_vm_all()
        a.label(L)
        return
    L = a.newlabel('nodump')
    a('s_cmp_lg_u32 s%d, 0' % wave_sreg)
    a.branch('s_cbranch_scc1 %s' % L)
    a('s_mov_b32 s68, 0')
    L2 = a.newlabel('dump')
    a('s_cmp_eq_u32 s2, 0')
    a.branch('s_cbranch_scc1 %s' % L2)
    a('s_mov_b32 s68, 64')
    a('s_cmp_eq_u32 s2, 101')
    a.branch('s_cbranch_scc1 %s' % L2)
    a('s_mov_b32 s68, 128')
    a('s_cmp_eq_u32 s2, 300')
    a.branch('s_cbranch_scc0 %s' % L)
    a.label(L2)
    a('s_load_dwordx2 s[64:65], s[0:1], 64')
    a.wait_lg_all()
    a('s_and_b32 s65, s65, 0xffff')
    a('s_mov_b32 s66, 256')
    a('s_mov_b32 s67, 0x00020000')
    a('v_mov_b32 v1, 0')
    for i in range(_stamp_n[0]):
        a('s_sub_u32 s69, s%d, s70' % (70 + 2 * i))
        a('v_mov_b32 v2, s69')
        a('buffer_store_dword v2, v1, s[64:67], s68 offen offset:%d' % (4 * i))
    a.wait_vm_all()
    a.label(L)


def bf16r_pair(a, dst_lo, dst_hi, src_lo, src_hi, tmp):
    a('v_cvt_pk_bf16_f32 v%d, v%d, v%d' % (tmp, src_lo, src_hi))
    a('v_lshlrev_b32 v%d, 16, v%d' % (dst_lo, tmp))
    a('v_and_b32 v%d, 0xffff0000, v%d' % (dst_hi, tmp))


K1_SLOT = 40960
K1_R2 = 24576
K1_STASH = 3 * K1_SLOT
K1_XS = 81920
K1_LDS = 163840

V_DMA = 1
V_RD = 6
V_T = 11
V_B = 16
V_ACC = 56
V_A = 96


def k1_areg(tile, s):
    return V_A + (tile * 20 + s) * 4


def k1_xreg(rho, j):
    return (216 if j < 5 else 136) + (rho * 5 + (j % 5)) * 4


def k1_acc(j, tile):
    return V_ACC + (j * 2 + tile) * 4


def gen_k1(a):
    name = 'k1_kernel'
    a.raw('.globl %s' % name)
    a.raw('.p2align 8')
    a.raw('.type %s,@function' % name)
    a.raw('%s:' % name)
    L_end = '.k1_end'
    a('s_cmp_ge_u32 s2, 256')
    a.branch('s_cbranch_scc1 %s' % L_end)
    stamp_reset()
    rt_start(a)
    stamp(a)
    a('s_load_dwordx4 s[4:7], s[0:1], 0')
    a('s_load_dwordx4 s[8:11], s[0:1], 32')
    a('s_load_dwordx2 s[12:13], s[0:1], 72')
    a('s_load_dwordx2 s[64:65], s[0:1], 16')
    a('s_load_dwordx2 s[66:67], s[0:1], 48')
    a('s_and_b32 s32, s2, 7')
    a('s_lshr_b32 s33, s2, 3')
    LR = int(os.environ.get('GEN_LR', '1'))
    a('s_and_b32 s34, s32, %d' % ((1 << LR) - 1))
    a('s_lshl_b32 s34, s34, %d' % (4 - LR))
    a('s_and_b32 s35, s33, %d' % ((16 >> LR) - 1))
    a('s_add_u32 s34, s34, s35')
    a('s_lshr_b32 s35, s32, %d' % LR)
    a('s_lshl_b32 s35, s35, %d' % (1 + LR))
    a('s_lshr_b32 s36, s33, %d' % (4 - LR))
    a('s_add_u32 s35, s35, s36')
    a('v_lshrrev_b32 v11, 6, v0')
    a('v_readfirstlane_b32 s36, v11')
    a('v_and_b32 v0, 63, v0')
    a('s_and_b32 s37, s36, 3')
    a('s_lshr_b32 s38, s36, 2')
    a('s_lshl_b32 s39, s34, 7')
    a('s_lshl_b32 s40, s37, 5')
    a('s_add_u32 s39, s39, s40')
    a.wait_lg_all()
    make_srd(a, 24, 's4', 's5', 2048 * 1280)
    make_srd(a, 28, 's12', 's13', WS_END)
    a('v_and_b32 v11, 15, v0')
    a('v_lshrrev_b32 v12, 4, v0')
    a('v_lshrrev_b32 v13, 3, v0')
    a('v_mul_u32_u24 v13, 1280, v13')
    a('v_and_b32 v14, 7, v0')
    a('v_lshl_add_u32 v13, v14, 4, v13')
    a('s_lshl_b32 s40, s34, 7')
    a('s_lshl_b32 s41, s36, 4')
    a('s_add_u32 s40, s40, s41')
    a('s_mul_i32 s40, s40, 1280')
    a('s_add_u32 s41, s40, 10240')
    for j in range(10):
        for rho in range(2):
            a('buffer_load_dwordx4 %s, v13, s[24:27], s%d offen offset:%d' % (vr(k1_xreg(rho, j), 4), 40 + rho, j * 128),
              tag=('X', rho, j))
    a('s_barrier')
    L_gu = a.newlabel('k1gu')
    L_par = a.newlabel('k1par')
    a('s_cmp_ge_u32 s35, 6')
    a.branch('s_cbranch_scc1 %s' % L_gu)
    a('s_movk_i32 s42, 3840')
    a('s_mul_i32 s43, s35, 640')
    a('s_add_u32 s16, s6, s43')
    a('s_addc_u32 s17, s7, 0')
    a('s_sub_u32 s18, %d, s43' % (640 * 3840))
    a('s_add_u32 s43, s43, 192')
    a('s_movk_i32 s56, 512')
    a('s_add_u32 s20, s6, s43')
    a('s_addc_u32 s21, s7, 0')
    a('s_sub_u32 s22, %d, s43' % (640 * 3840))
    a('s_mov_b32 s44, 0')
    a('s_mov_b32 s45, 10')
    a.branch('s_branch %s' % L_par)
    a.label(L_gu)
    a('s_movk_i32 s42, 3072')
    a('s_sub_u32 s43, s35, 6')
    a('s_mul_i32 s44, s43, 10')
    a('s_movk_i32 s56, 192')
    KS = int(os.environ.get('GEN_KS', '0'))
    a('s_sub_u32 s45, s44, 4')
    a('s_cmp_gt_u32 s43, %d' % KS)
    a('s_cselect_b32 s44, s45, s44')
    a('s_cmp_eq_u32 s43, %d' % KS)
    a('s_cselect_b32 s45, 6, 10')
    a('s_lshl_b32 s43, s44, 5')
    a('s_add_u32 s16, s8, s43')
    a('s_addc_u32 s17, s9, 0')
    a('s_sub_u32 s18, %d, s43' % (640 * 3072))
    a('s_add_u32 s20, s10, s43')
    a('s_addc_u32 s21, s11, 0')
    a('s_sub_u32 s22, %d, s43' % (640 * 3072))
    a.label(L_par)
    a('s_and_b32 s17, s17, 0xffff')
    a('s_and_b32 s21, s21, 0xffff')
    a('s_mov_b32 s19, 0x00020000')
    a('s_mov_b32 s23, 0x00020000')
    a('s_lshl_b32 s46, s42, 7')
    a('s_mul_i32 s47, s36, 3072')
    a('s_lshl_b32 s48, s36, 11')
    a('s_add_u32 s48, s48, %d' % K1_R2)
    a('s_mul_i32 s49, s36, 192')
    for i in range(3):
        a('v_add_u32 v16, s49, v0')
        if i:
            a('v_add_u32 v16, %d, v16' % (64 * i))
        a('v_mul_u32_u24 v17, 43691, v16')
        a('v_lshrrev_b32 v17, 19, v17')
        a('v_mul_u32_u24 v18, 12, v17')
        a('v_sub_u32 v18, v16, v18')
        a('v_lshrrev_b32 v19, 1, v18')
        a('v_bfe_u32 v20, v17, 3, 1')
        a('v_xor_b32 v19, v19, v20')
        a('v_and_b32 v18, 1, v18')
        a('v_lshlrev_b32 v18, 4, v18')
        a('v_lshl_add_u32 v18, v19, 5, v18')
        a('v_mul_lo_u32 v17, v17, s42')
        a('v_add_u32 v%d, v17, v18' % (V_DMA + i))
    a('s_lshl_b32 s49, s36, 7')
    for i in range(2):
        a('v_add_u32 v16, s49, v0')
        if i:
            a('v_add_u32 v16, %d, v16' % (64 * i))
        a('v_lshrrev_b32 v17, 3, v16')
        a('v_and_b32 v18, 7, v16')
        a('v_lshrrev_b32 v19, 1, v18')
        a('v_bfe_u32 v20, v17, 1, 1')
        a('v_bfe_u32 v21, v17, 3, 1')
        a('v_lshl_or_b32 v20, v21, 1, v20')
        a('v_xor_b32 v19, v19, v20')
        a('v_and_b32 v18, 1, v18')
        a('v_lshlrev_b32 v18, 4, v18')
        a('v_lshl_add_u32 v18, v19, 5, v18')
        a('v_mul_lo_u32 v17, v17, s42')
        a('v_add_u32 v%d, v17, v18' % (V_DMA + 3 + i))

    def issue_dma(t):
        p, st = divmod(t, 5)
        slot = t % 3
        a('s_mul_i32 s50, s46, %d' % st)
        if p:
            a('s_add_u32 s51, s50, s56')
            a('s_add_u32 s50, s50, 128')
        else:
            a('s_mov_b32 s51, s50')
        srd1, srd2 = (16, 20) if p == 0 else (20, 16)
        for i in range(3):
            a('s_add_u32 m0, s47, %d' % (slot * K1_SLOT + i * 1024))
            a('buffer_load_dwordx4 v%d, %s, s50 offen lds' % (V_DMA + i, sr(srd1, 4)), tag=('D', t))
        for i in range(2):
            a('s_add_u32 m0, s48, %d' % (slot * K1_SLOT + i * 1024))
            a('buffer_load_dwordx4 v%d, %s, s51 offen lds' % (V_DMA + 3 + i, sr(srd2, 4)), tag=('D', t))

    for t in range(2):
        issue_dma(t)

    a('s_lshl_b32 s57, s2, 9')
    a('s_lshl_b32 s58, s36, 6')
    a('s_add_u32 s57, s57, s58')
    a('s_cmp_lt_u32 s57, 122880')
    a('s_cselect_b32 s60, s66, s64')
    a('s_cselect_b32 s61, s67, s65')
    a('s_cselect_b32 s62, %d, s57' % 0 if False else 's_cselect_b32 s58, 0, 1')
    a('s_and_b32 s61, s61, 0xffff')
    a('s_mov_b32 s63, 0x00020000')
    a('s_mul_i32 s59, s58, 122880')
    a('s_sub_u32 s57, s57, s59')
    a('s_cmp_eq_u32 s58, 0')
    a('s_cselect_b32 s62, %d, %d' % (1536 * 1280, 0) if False else 's_mov_b32 s62, %d' % (640 * 1280))
    a('s_cselect_b32 s62, %d, s62' % (1536 * 1280))
    a('s_mov_b32 s59, 640')
    a('s_cselect_b32 s59, 1536, s59')
    a('s_mov_b32 s68, %d' % WS_WO)
    a('s_cselect_b32 s68, %d, s68' % WS_WD)

    def repack_dst(c, dst, R):
        a('s_mov_b32 s69, 53687092')
        a('v_mul_hi_u32 v24, v%d, s69' % c)
        a('v_mul_u32_u24 v25, 80, v24')
        a('v_sub_u32 v25, v%d, v25' % c)
        a('v_mul_u32_u24 v26, 205, v25')
        a('v_lshrrev_b32 v26, 11, v26')
        a('v_mul_u32_u24 v27, 10, v26')
        a('v_sub_u32 v25, v25, v27')
        a('v_mul_lo_u32 v26, v26, %s' % R)
        a('v_add_u32 v24, v24, v26')
        a('v_mul_u32_u24 v24, 160, v24')
        a('v_lshl_add_u32 v%d, v25, 4, v24' % dst)
    a('v_add_u32 v64, s57, v0')
    a('v_lshlrev_b32 v22, 4, v64')
    a('buffer_load_dwordx4 v[56:59], v22, s[60:63], 0 offen', tag='RP')
    repack_dst(64, 64, 's59')
    a('v_add_u32 v64, s68, v64')
    a('s_mov_b32 s60, s64')
    a('s_and_b32 s61, s65, 0xffff')
    a('s_mov_b32 s62, %d' % (640 * 1280))
    a('s_lshl_b32 s57, s2, 9')
    a('s_lshl_b32 s58, s36, 6')
    a('s_add_u32 s57, s57, s58')
    a('s_add_u32 s57, s57, 8192')
    a('v_add_u32 v65, s57, v0')
    a('v_lshlrev_b32 v22, 4, v65')
    a('buffer_load_dwordx4 v[60:63], v22, s[60:63], 0 offen', tag='RP')
    a('v_cmp_gt_u32 vcc, 51200, v65')
    a('s_mov_b32 s59, 640')
    repack_dst(65, 65, 's59')
    a('v_add_u32 v65, %d, v65' % WS_WO)
    a('v_mov_b32 v24, 0x40000000')
    a('v_cndmask_b32 v65, v24, v65, vcc')
    stamp(a)
    for r in range(16, 20):
        a('v_mov_b32 v%d, 0' % r)
    a('v_mov_b32 v20, 0x3f803f80')
    for j in range(10):
        for rho in range(2):
            a.wait_vm(('X', rho, j))
            base = k1_xreg(rho, j)
            for q in range(4):
                a('v_dot2_f32_bf16 v%d, v%d, v20, v%d' % (16 + rho * 2, base + q, 16 + rho * 2))
                a('v_dot2_f32_bf16 v%d, v%d, v%d, v%d' % (17 + rho * 2, base + q, base + q, 17 + rho * 2))
    stamp(a)
    for ctl in ('quad_perm:[1,0,3,2]', 'quad_perm:[2,3,0,1]', 'row_half_mirror'):
        for r in range(16, 20):
            a('v_add_f32_dpp v%d, v%d, v%d %s row_mask:0xf bank_mask:0xf' % (r, r, r, ctl))
    inv = f32hex(1.0 / 640.0)
    for tile in range(2):
        su, sq = 16 + tile * 2, 17 + tile * 2
        R, C = 28 + 4 * tile, 30 + 4 * tile
        a('v_mul_f32 v24, %s, v%d' % (inv, su))
        a('v_mul_f32 v25, %s, v%d' % (inv, sq))
        a('v_fma_f32 v25, -v24, v24, v25')
        a('v_max_f32 v25, 0, v25')
        bf16r_pair(a, 24, 25, 24, 25, 26)
        a('v_add_f32 v25, %s, v25' % f32hex(1e-5))
        a('v_cvt_pk_bf16_f32 v26, v25, v25')
        a('v_lshlrev_b32 v25, 16, v26')
        a('v_sqrt_f32 v25, v25')
        a('v_cvt_pk_bf16_f32 v26, v25, v25')
        a('v_lshlrev_b32 v25, 16, v26')
        a('v_rcp_f32 v%d, v25' % R)
        a('v_mul_f32 v%d, v24, v%d' % (C, R))
        a('v_sub_f32 v%d, 0, v%d' % (C, C))
        a('v_mov_b32 v%d, v%d' % (R + 1, R))
        a('v_mov_b32 v%d, v%d' % (C + 1, C))
    a('s_lshl_b32 s49, s36, 4')
    for rho in range(2):
        a('v_lshrrev_b32 v24, 3, v0')
        a('v_add_u32 v24, s49, v24')
        if rho:
            a('v_add_u32 v24, 8, v24')
        a('v_bfe_u32 v25, v24, 1, 3')
        a('v_xor_b32 v25, v25, v14')
        a('v_mul_u32_u24 v24, 640, v24')
        a('v_lshl_add_u32 v24, v25, 4, v24')
        a('v_add_u32 v%d, %d, v24' % (16 + rho, K1_XS))
    a('s_lshl_b32 s49, s37, 5')
    for tile in range(2):
        a('v_add_u32 v24, s49, v11')
        if tile:
            a('v_add_u32 v24, 16, v24')
        a('v_bfe_u32 v25, v24, 1, 3')
        a('v_xor_b32 v25, v25, v12')
        a('v_mul_u32_u24 v24, 640, v24')
        a('v_add_u32 v24, %d, v24' % K1_XS)
        a('v_lshl_add_u32 v%d, v25, 4, v24' % (20 + tile * 2))
        a('v_xor_b32 v25, 4, v25')
        a('v_lshl_add_u32 v%d, v25, 4, v24' % (21 + tile * 2))
    n = 0
    for half in range(2):
        for j in range(half * 5, half * 5 + 5):
            for rho in range(2):
                R, C = 28 + 4 * rho, 30 + 4 * rho
                base = k1_xreg(rho, j)
                tp = [40 + 2 * ((n + q) % 8) for q in range(4)]
                n += 4
                for q in range(4):
                    a('v_lshlrev_b32 v%d, 16, v%d' % (tp[q], base + q))
                    a('v_and_b32 v%d, 0xffff0000, v%d' % (tp[q] + 1, base + q))
                for q in range(4):
                    a('v_pk_fma_f32 %s, %s, %s, %s' % (vr(tp[q], 2), vr(tp[q], 2), vr(R, 2), vr(C, 2)))
                for q in range(4):
                    a('v_cvt_pk_bf16_f32 v%d, v%d, v%d' % (base + q, tp[q], tp[q] + 1))
                if half == 0:
                    a('ds_write_b128 v%d, %s offset:%d' % (16 + rho, vr(base, 4), (j % 5) * 128), tag='xw')
        if half == 1:
            a.wait_lg_all()
            a('s_barrier')
            for j in range(5, 10):
                for rho in range(2):
                    a('ds_write_b128 v%d, %s offset:%d' % (16 + rho, vr(k1_xreg(rho, j), 4), (j % 5) * 128), tag='xw')
        a.wait_lg_all()
        a('s_barrier')
        for sp in range(10):
            for tile in range(2):
                a('ds_read_b128 %s, v%d offset:%d' % (vr(k1_areg(tile, half * 10 + sp), 4), 20 + tile * 2 + (sp & 1), (sp >> 1) * 128),
                  tag='xr')
    a.wait_lg_all()
    stamp(a)
    L_nz = a.newlabel('k1nz')
    a('s_or_b32 s57, s2, s36')
    a('s_cmp_lg_u32 s57, 0')
    a.branch('s_cbranch_scc1 %s' % L_nz)
    sv = list(a.vm)
    a('v_mov_b32 v24, 0')
    a('v_mov_b32 v25, 0')
    a('v_mov_b32 v26, 0')
    a('v_mov_b32 v27, 0')
    a('v_lshlrev_b32 v22, 5, v0')
    a('s_mov_b32 s57, %d' % WS_CNT)
    a('buffer_store_dwordx4 v[24:27], v22, s[28:31], s57 offen')
    a('buffer_store_dwordx4 v[24:27], v22, s[28:31], s57 offen offset:16')
    a('s_waitcnt vmcnt(0)')
    a.vm = sv
    a.label(L_nz)
    a.wait_vm('RP')
    a('buffer_store_dwordx4 v[56:59], v64, s[28:31], 0 offen' + STF, tag='st')
    a('buffer_store_dwordx4 v[60:63], v65, s[28:31], 0 offen' + STF, tag='st')
    stamp(a)
    if os.environ.get('GEN_K1PRIO'):
        Lp = a.newlabel('prio')
        a('s_cmp_eq_u32 s38, %s' % os.environ['GEN_K1PRIO'])
        a.branch('s_cbranch_scc0 %s' % Lp)
        a('s_setprio 1')
        a.label(Lp)
    L_v = a.newlabel('k1v')
    L_g = a.newlabel('k1g')
    a('s_cmp_ge_u32 s35, 6')
    a.branch('s_cbranch_scc1 %s' % L_g)
    a('s_cmp_ge_u32 s35, 4')
    a.branch('s_cbranch_scc1 %s' % L_v)
    saved = (list(a.vm), list(a.lg))
    sn = _stamp_n[0]
    k1_body(a, 'qk')
    a.branch('s_branch %s' % L_end)
    a.label(L_v)
    a.vm, a.lg = list(saved[0]), list(saved[1])
    stamp_reset(sn)
    k1_body(a, 'v')
    a.branch('s_branch %s' % L_end)
    a.label(L_g)
    a.vm, a.lg = list(saved[0]), list(saved[1])
    stamp_reset(sn)
    k1_body(a, 'gu')
    a.label(L_end)
    a('s_endpgm')


def k1_body(a, kind):
    def issue_dma(t):
        p, st = divmod(t, 5)
        slot = t % 3
        a('s_mul_i32 s50, s46, %d' % st)
        if p:
            a('s_add_u32 s51, s50, s56')
            a('s_add_u32 s50, s50, 128')
        else:
            a('s_mov_b32 s51, s50')
        srd1, srd2 = (16, 20) if p == 0 else (20, 16)
        for i in range(3):
            a('s_add_u32 m0, s47, %d' % (slot * K1_SLOT + i * 1024))
            a('buffer_load_dwordx4 v%d, %s, s50 offen lds' % (V_DMA + i, sr(srd1, 4)), tag=('D', t))
        for i in range(2):
            a('s_add_u32 m0, s48, %d' % (slot * K1_SLOT + i * 1024))
            a('buffer_load_dwordx4 v%d, %s, s51 offen lds' % (V_DMA + 3 + i, sr(srd2, 4)), tag=('D', t))

    pending = []

    def dma_pieces(t):
        p, st = divmod(t, 5)
        slot = t % 3
        srd1, srd2 = (16, 20) if p == 0 else (20, 16)
        out = []

        def head():
            a('s_mul_i32 s50, s46, %d' % st)
            if p:
                a('s_add_u32 s51, s50, s56')
                a('s_add_u32 s50, s50, 128')
            else:
                a('s_mov_b32 s51, s50')
        for i in range(3):
            def piece(i=i):
                if i == 0:
                    head()
                a('s_add_u32 m0, s47, %d' % (slot * K1_SLOT + i * 1024))
                a('buffer_load_dwordx4 v%d, %s, s50 offen lds' % (V_DMA + i, sr(srd1, 4)), tag=('D', t))
            out.append(piece)
        for i in range(2):
            def piece(i=i):
                a('s_add_u32 m0, s48, %d' % (slot * K1_SLOT + i * 1024))
                a('buffer_load_dwordx4 v%d, %s, s51 offen lds' % (V_DMA + 3 + i, sr(srd2, 4)), tag=('D', t))
            out.append(piece)
        return out

    cur_slot = [0]
    R1MAP = [[(0, 2), (1, 3), (4, 5)], [(0, 1), (2, 4), (3, 5)]]

    def read_addrs(p):
        a('v_bfe_u32 v16, v0, 2, 2')
        a('v_and_b32 v17, 3, v0')
        a('v_lshl_add_u32 v18, v12, 3, v16')
        a('v_and_b32 v19, 1, v12')
        a('v_mul_u32_u24 v21, 192, v18')
        a('v_lshl_add_u32 v21, v17, 3, v21')
        base = cur_slot[0] * K1_SLOT
        if base:
            a('v_add_u32 v21, %d, v21' % base)
        for j in range(3):
            a('s_cmp_eq_u32 s38, 0')
            a('s_cselect_b32 s50, %d, %d' % R1MAP[p][j])
            a('v_xor_b32 v20, s50, v19')
            a('v_lshl_add_u32 v%d, v20, 5, v21' % (V_RD + j))
        a('v_lshrrev_b32 v20, 1, v16')
        a('v_lshl_or_b32 v19, v19, 1, v20')
        a('v_lshlrev_b32 v21, 7, v18')
        a('v_lshl_add_u32 v21, v17, 3, v21')
        a('v_add_u32 v21, %d, v21' % (base + K1_R2))
        a('s_lshl_b32 s49, s38, 1')
        for j in range(2):
            a('s_add_u32 s50, s49, %d' % j)
            a('v_xor_b32 v20, s50, v19')
            a('v_lshl_add_u32 v%d, v20, 5, v21' % (V_RD + 3 + j))

    def set_slot(slot):
        d = (slot - cur_slot[0]) * K1_SLOT
        if d:
            for j in range(5):
                if d > 0:
                    a('v_add_u32 v%d, %d, v%d' % (V_RD + j, d, V_RD + j))
                else:
                    a('v_subrev_u32 v%d, %d, v%d' % (V_RD + j, -d, V_RD + j))
        cur_slot[0] = slot

    def read_unit(n, j):
        ks = n % 4
        b = V_B + (n % 2) * 20 + j * 4
        if j < 3:
            o = ks * 6144
            a('ds_read_b64_tr_b16 %s, v%d offset:%d' % (vr(b, 2), V_RD + j, o), tag=('B', n, j))
            a('ds_read_b64_tr_b16 %s, v%d offset:%d' % (vr(b + 2, 2), V_RD + j, o + 768), tag=('B', n, j))
        else:
            o = ks * 4096
            a('ds_read_b64_tr_b16 %s, v%d offset:%d' % (vr(b, 2), V_RD + j, o), tag=('B', n, j))
            a('ds_read_b64_tr_b16 %s, v%d offset:%d' % (vr(b + 2, 2), V_RD + j, o + 512), tag=('B', n, j))

    def stage_enter(t):
        a.wait_lg_all()
        a.wait_vm(('D', t))
        a('s_barrier')
        if t + 2 <= 9:
            pending.extend(dma_pieces(t + 2))
        if t % 5 == 0:
            cur_slot[0] = t % 3
            read_addrs(t // 5)
        else:
            set_slot(t % 3)

    a('v_and_b32 v11, 15, v0')
    a('v_lshrrev_b32 v12, 4, v0')
    stage_enter(0)
    stamp(a)
    for j in range(5):
        read_unit(0, j)
    for n in range(40):
        p, s = divmod(n, 20)
        nxt = n + 1
        if nxt < 40 and nxt % 4 == 0:
            stage_enter(nxt // 4)
        for j in range(5):
            if j in (0, 2):
                a.wait_lg(('B', n, 1 if j == 0 else 4))
            b = V_B + (n % 2) * 20 + j * 4
            for tile in range(2):
                acc = vr(k1_acc(j, tile), 4)
                c = acc if s else '0'
                A = vr(k1_areg(tile, s), 4)
                B = vr(b, 4)
                if kind == 'v':
                    a('v_mfma_f32_16x16x32_bf16 %s, %s, %s, %s' % (acc, A, B, c))
                else:
                    a('v_mfma_f32_16x16x32_bf16 %s, %s, %s, %s' % (acc, B, A, c))
            if nxt < 40:
                read_unit(nxt, j)
            if pending and j in (1, 3):
                pending.pop(0)()
        if s == 19:
            stamp(a)
            k1_epilogue(a, kind, p)
            stamp(a)
    if STAMP:
        a.wait_vm_all()
        stamp(a)
    stamp_dump(a, 36)
    rt_end(a, 36, 0)


def k1_epilogue(a, kind, p):
    T = 36
    R1MAP = [[(0, 2), (1, 3), (4, 5)], [(0, 1), (2, 4), (3, 5)]]
    if p == 0:
        units = [R1MAP[0][j] for j in range(3)] + [(6, 8), (7, 9)]
    else:
        units = [(10 + R1MAP[1][j][0], 10 + R1MAP[1][j][1]) for j in range(3)] + [(16, 18), (17, 19)]
    if kind == 'qk':
        a('s_and_b32 s52, s35, 1')
        a('s_mul_i32 s52, s52, 80')
        a('s_lshr_b32 s53, s35, 1')
        a('s_mul_i32 s53, s53, %d' % WS_K)
        a('s_mul_i32 s55, s39, 40')
        a('s_add_u32 s53, s53, s55')
        a('v_lshlrev_b32 v13, 3, v11')
        for j in range(5):
            a('s_cmp_eq_u32 s38, 0')
            a('s_cselect_b32 s54, %d, %d' % (units[j][0], units[j][1]))
            a('s_lshl_b32 s54, s54, 2')
            a('s_add_u32 s54, s54, s52')
            a('v_add_u32 v%d, s54, v12' % T)
            a('v_mul_u32_u24 v%d, 205, v%d' % (T + 1, T))
            a('v_lshrrev_b32 v%d, 10, v%d' % (T + 1, T + 1))
            a('v_mul_u32_u24 v%d, 5, v%d' % (T + 2, T + 1))
            a('v_sub_u32 v%d, v%d, v%d' % (T + 2, T, T + 2))
            a('v_mul_u32_u24 v%d, 81920, v%d' % (T + 1, T + 1))
            a('v_lshl_add_u32 v%d, v%d, 7, v%d' % (T + 1, T + 2, T + 1))
            a('v_add_u32 v%d, v%d, v13' % (T + 1, T + 1))
            for tile in range(2):
                ac = k1_acc(j, tile)
                d = T + 4 + tile * 2
                a('v_cvt_pk_bf16_f32 v%d, v%d, v%d' % (d, ac, ac + 1))
                a('v_cvt_pk_bf16_f32 v%d, v%d, v%d' % (d + 1, ac + 2, ac + 3))
                a('buffer_store_dwordx2 %s, v%d, s[28:31], s53 offen offset:%d%s' % (vr(d, 2), T + 1, tile * 640, STF), tag='st')
            T = 36 + ((T - 36 + 8) % 16)
    elif kind == 'v':
        a('s_sub_u32 s52, s35, 4')
        a('s_mul_i32 s52, s52, 320')
        a('s_mul_i32 s53, s39, 40')
        a('s_add_u32 s53, s53, %d' % WS_VT)
        a('v_lshlrev_b32 v13, 8, v12')
        a('v_lshlrev_b32 v14, 6, v12')
        a('v_add_u32 v14, 1024, v14')
        for j in range(5):
            a('s_cmp_eq_u32 s38, 0')
            a('s_cselect_b32 s54, %d, %d' % (units[j][0], units[j][1]))
            a('s_lshl_b32 s54, s54, 4')
            a('s_add_u32 s54, s54, s52')
            a('v_add_u32 v%d, s54, v11' % (T + 4))
            a('v_mul_u32_u24 v%d, 3277, v%d' % (T + 5, T + 4))
            a('v_lshrrev_b32 v%d, 16, v%d' % (T + 5, T + 5))
            a('v_mul_u32_u24 v%d, 20, v%d' % (T + 6, T + 5))
            a('v_sub_u32 v%d, v%d, v%d' % (T + 6, T + 4, T + 6))
            a('v_cmp_le_u32 vcc, 16, v%d' % (T + 6))
            a('v_cndmask_b32 v%d, v13, v14, vcc' % (T + 7))
            a('v_and_b32 v%d, 15, v%d' % (T + 6, T + 6))
            a('v_mul_u32_u24 v%d, 81920, v%d' % (T + 5, T + 5))
            a('v_lshl_add_u32 v%d, v%d, 4, v%d' % (T + 5, T + 6, T + 5))
            a('v_add_u32 v%d, v%d, v%d' % (T + 5, T + 5, T + 7))
            d = T
            for tile in range(2):
                ac = k1_acc(j, tile)
                a('v_cvt_pk_bf16_f32 v%d, v%d, v%d' % (d + tile * 2, ac, ac + 1))
                a('v_cvt_pk_bf16_f32 v%d, v%d, v%d' % (d + tile * 2 + 1, ac + 2, ac + 3))
            a('buffer_store_dwordx4 %s, v%d, s[28:31], s53 offen%s' % (vr(d, 4), T + 5, STF), tag='st')
            T = 36 + ((T - 36 + 8) % 16)
    else:
        a('v_lshlrev_b32 v13, 4, v0')
        a('s_lshr_b32 s52, s39, 4')
        a('s_mul_i32 s52, s52, %d' % (48 * 1024))
        a('s_add_u32 s52, s52, %d' % WS_H)
        a('s_lshl_b32 s55, s36, 11')
        a('s_add_u32 s55, s55, %d' % K1_STASH)
        a('v_add_u32 v14, s55, v13')

        def silu_mul(g0, u0, dst):
            t = 36
            bf16r_pair(a, t, t + 1, g0, g0 + 1, t + 8)
            bf16r_pair(a, t + 2, t + 3, g0 + 2, g0 + 3, t + 9)
            bf16r_pair(a, t + 4, t + 5, u0, u0 + 1, t + 10)
            bf16r_pair(a, t + 6, t + 7, u0 + 2, u0 + 3, t + 11)
            for r in range(4):
                a('v_mul_f32 v%d, %s, v%d' % (t + 8 + r, f32hex(-LOG2E), t + r))
            for r in range(4):
                a('v_exp_f32 v%d, v%d' % (t + 8 + r, t + 8 + r))
            for r in range(4):
                a('v_add_f32 v%d, 1.0, v%d' % (t + 8 + r, t + 8 + r))
            for r in range(4):
                a('v_rcp_f32 v%d, v%d' % (t + 8 + r, t + 8 + r))
            for r in range(4):
                a('v_mul_f32 v%d, v%d, v%d' % (t + r, t + r, t + 8 + r))
            bf16r_pair(a, t, t + 1, t, t + 1, t + 8)
            bf16r_pair(a, t + 2, t + 3, t + 2, t + 3, t + 9)
            for r in range(4):
                a('v_mul_f32 v%d, v%d, v%d' % (t + r, t + r, t + 4 + r))
            a('v_cvt_pk_bf16_f32 v%d, v%d, v%d' % (dst, t, t + 1))
            a('v_cvt_pk_bf16_f32 v%d, v%d, v%d' % (dst + 1, t + 2, t + 3))

        def two_pairs(pair0, ga, ua, gb, ub):
            a('s_lshl_b32 s54, s38, 1')
            a('s_add_u32 s54, s54, s44')
            a('s_add_u32 s54, s54, %d' % pair0)
            a('s_lshl_b32 s54, s54, 9')
            a('s_add_u32 s54, s54, s52')
            a('s_add_u32 s55, s54, %d' % (48 * 1024))
            for tile in range(2):
                d = 48 if tile == 0 else 52
                silu_mul(k1_acc(ga, tile), k1_acc(ua, tile), d)
                silu_mul(k1_acc(gb, tile), k1_acc(ub, tile), d + 2)
                a('buffer_store_dwordx4 %s, v13, s[28:31], s%d offen%s' % (vr(d, 4), 54 + tile, STF), tag='st')

        if p == 0:
            a('ds_write_b128 v14, %s offset:0' % vr(k1_acc(2, 0), 4), tag='stash')
            a('ds_write_b128 v14, %s offset:1024' % vr(k1_acc(2, 1), 4), tag='stash')
            two_pairs(0, 0, 3, 1, 4)
        else:
            a('ds_read_b128 v[48:51], v14 offset:0', tag='stash')
            a('ds_read_b128 v[52:55], v14 offset:1024', tag='stash')
            a.wait_lg('stash')
            a('s_add_u32 s54, s44, s38')
            a('s_add_u32 s54, s54, 4')
            a('s_lshr_b32 s55, s54, 1')
            a('s_lshl_b32 s55, s55, 10')
            a('s_and_b32 s54, s54, 1')
            a('s_lshl_b32 s54, s54, 3')
            a('s_add_u32 s54, s54, s55')
            a('s_add_u32 s54, s54, s52')
            a('s_add_u32 s55, s54, %d' % (48 * 1024))
            for tile in range(2):
                d = k1_acc(0, tile)
                silu_mul(48 + tile * 4, k1_acc(0, tile), d)
                a('buffer_store_dwordx2 %s, v13, s[28:31], s%d offen%s' % (vr(d, 2), 54 + tile, STF), tag='st')
            L_skip = a.newlabel('k1skip')
            a('s_cmp_lt_u32 s45, 10')
            a.branch('s_cbranch_scc1 %s' % L_skip)
            two_pairs(6, 3, 1, 4, 2)
            a.label(L_skip)


def kernel_desc(name, vgpr, sgpr=96):
    return '''.section .rodata,"a"
.p2align 6
.amdhsa_kernel %s
  .amdhsa_next_free_vgpr %d
  .amdhsa_next_free_sgpr %d
  .amdhsa_accum_offset %d
  .amdhsa_group_segment_fixed_size 0
  .amdhsa_kernarg_size 80
  .amdhsa_user_sgpr_count 2
  .amdhsa_user_sgpr_kernarg_segment_ptr 1
  .amdhsa_system_sgpr_workgroup_id_x 1
.end_amdhsa_kernel
.text
''' % (name, vgpr, sgpr, (vgpr + 3) // 4 * 4)


HEADER = '''; Kernarg layout (80 bytes): A_x, A_wqkv, A_wo, B_x, B_w_gate, B_w_up, B_w_down, d_out, d_debug, d_ws
'''


def main():
    launches = []
    a = Asm()
    a.raw('.amdgcn_target "amdgcn-amd-amdhsa--gfx950"')
    a.raw('.text')
    which = os.environ.get('GEN_KERNELS', '123')
    descs = []
    if '1' in which:
        gen_k1(a)
        launches.append('; @launch kernel=k1_kernel grid=(256,1,1) block=(512,1,1) lds=%d' % K1_LDS)
        descs.append(kernel_desc('k1_kernel', 256))
    try:
        import gen2
        gen2.emit(a, launches, descs, which)
    except ImportError:
        pass
    out = HEADER + '\n'.join(launches) + '\n' + a.text() + ''.join(descs)
    path = sys.argv[1] if len(sys.argv) > 1 else 'parallel_sum__sliding_block__swiglu_ffn__prompt.s'
    open(path, 'w').write(out)
    print('wrote', path, len(out), 'bytes')


if __name__ == '__main__':
    import gen
    gen.main()
```

```python
import os
from asmlib import Asm, vr, sr
from gen import (WS_Q, WS_K, WS_VT, WS_H, WS_O, WS_F, WS_WD, WS_WO, WS_END, WS_CNT, LOG2E, f32hex, make_srd, bf16r_pair,
                 kernel_desc, rt_start, rt_end, stamp, stamp_reset, stamp_dump)

G_SLOT = 20480
K2_LDS = 81920
K3_LDS = 102400


def gemm_fused(a, wg_sreg):
    NS1, NS = 12, 17
    RING = 4
    AR = 4
    V_L16 = 1
    V_RD = 2
    V_RD2 = 3
    V_B = 16
    V_ACC = 56
    V_A = 96
    stamp_reset()
    stamp(a)
    if os.environ.get('GEN_GPRIO'):
        a('s_setprio %s' % os.environ['GEN_GPRIO'])
    a('s_load_dwordx2 s[6:7], s[0:1], 0')
    a('s_load_dwordx2 s[8:9], s[0:1], 56')
    a('s_load_dwordx2 s[10:11], s[0:1], 64')
    a('s_load_dwordx2 s[12:13], s[0:1], 72')
    a('s_and_b32 s32, s%d, 7' % wg_sreg)
    a('s_lshr_b32 s33, s%d, 3' % wg_sreg)
    a('s_and_b32 s34, s32, 3')
    a('s_lshl_b32 s34, s34, 3')
    a('s_and_b32 s35, s33, 7')
    a('s_add_u32 s34, s34, s35')
    a('s_lshr_b32 s35, s32, 2')
    a('s_lshl_b32 s35, s35, 2')
    a('s_lshr_b32 s40, s33, 3')
    a('s_add_u32 s35, s35, s40')
    a('v_lshrrev_b32 v9, 6, v0')
    a('v_readfirstlane_b32 s36, v9')
    a('v_and_b32 v0, 63, v0')
    a('v_and_b32 v9, 15, v0')
    a('v_lshrrev_b32 v10, 4, v0')
    a('s_and_b32 s37, s36, 3')
    a('s_lshr_b32 s38, s36, 2')
    a('s_lshl_b32 s39, s34, 6')
    a('s_lshl_b32 s40, s37, 4')
    a('s_add_u32 s39, s39, s40')
    a('v_lshlrev_b32 v%d, 4, v0' % V_L16)
    a.wait_lg_all()
    make_srd(a, 28, 's12', 's13', WS_END)
    make_srd(a, 20, 's6', 's7', 2048 * 1280)
    make_srd(a, 24, 's8', 's9', 2048 * 1280)
    make_srd(a, 16, 's10', 's11', 256)
    a('s_lshr_b32 s40, s39, 4')
    a('s_lshl_b32 s42, s38, 10')
    a('s_mul_i32 s41, s40, %d' % (48 * 1024))
    a('s_add_u32 s41, s41, s42')
    a('s_add_u32 s41, s41, %d' % WS_H)
    a('s_mul_i32 s48, s40, %d' % (20 * 1024))
    a('s_add_u32 s48, s48, s42')
    a('s_add_u32 s48, s48, %d' % WS_O)
    a('s_mul_i32 s44, s36, 2560')
    a('s_mul_i32 s42, s35, %d' % (1536 * 160))
    a('s_add_u32 s42, s42, s44')
    a('s_add_u32 s42, s42, %d' % WS_WD)
    a('s_mul_i32 s49, s35, %d' % (640 * 160))
    a('s_add_u32 s49, s49, s44')
    a('s_add_u32 s49, s49, %d' % WS_WO)
    a('v_bfe_u32 v11, v0, 2, 2')
    a('v_lshl_add_u32 v11, v10, 2, v11')
    a('v_mul_u32_u24 v11, 160, v11')
    a('v_and_b32 v12, 3, v0')
    a('v_lshl_add_u32 v11, v12, 3, v11')
    a('s_mul_i32 s43, s38, 5120')
    a('v_add_u32 v%d, s43, v11' % V_RD)
    a('v_add_u32 v%d, 61440, v%d' % (V_RD2, V_RD))

    def areg(t, q):
        return V_A + ((t % AR) * 2 + q) * 4

    def issue_a(slot4, fl=''):
        for q in range(2):
            a('buffer_load_dwordx4 %s, v%d, s[28:31], s45 offen offset:%d%s' % (vr(areg(slot4, q), 4), V_L16, q * 2048, fl))

    def issue_b(slot4):
        a('s_add_u32 m0, s44, %d' % (slot4 * G_SLOT))
        for i in range(3):
            if i == 2:
                a('s_mov_b64 exec, 0xffffffff')
            a('buffer_load_dwordx4 v%d, s[28:31], s46 offen offset:%d lds' % (V_L16, i * 1024))
            if i == 2:
                a('s_mov_b64 exec, -1')

    def adv_b():
        a('s_add_u32 s46, s46, %d' % G_SLOT)
        a('s_add_u32 s47, s47, 1')
        a('s_cmp_eq_u32 s47, %d' % NS1)
        a('s_cselect_b32 s46, s49, s46')
        a('s_cmp_ge_u32 s47, %d' % NS)
        a('s_cselect_b32 s46, s53, s46')

    def adv_a():
        a('s_add_u32 s45, s45, 4096')
        a('s_cmp_eq_u32 s45, s54')
        a('s_cselect_b32 s45, s53, s45')

    def poll():
        L = a.newlabel('poll')
        Lskip = a.newlabel('pollskip')
        a('s_cmp_lg_u32 s36, 0')
        a.branch('s_cbranch_scc1 %s' % Lskip)
        a('s_lshr_b32 s50, s34, 2')
        a('s_lshl_b32 s50, s50, 8')
        a('s_add_u32 s50, s50, %d' % WS_CNT)
        a('v_mov_b32 v12, 0')
        a.label(L)
        a('buffer_load_dword v11, v12, s[28:31], s50 offen sc1')
        a('s_waitcnt vmcnt(0)')
        a('v_readfirstlane_b32 s51, v11')
        a('s_cmp_ge_u32 s51, 32')
        Ld = a.newlabel('polled')
        a.branch('s_cbranch_scc1 %s' % Ld)
        a('s_sleep 16')
        a.branch('s_branch %s' % L)
        a.label(Ld)
        a.label(Lskip)
        a('s_barrier')

    a('s_mov_b32 s53, 0x70000000')
    a('s_add_u32 s54, s41, %d' % (NS1 * 4096))
    a('s_mov_b32 s45, s41')
    a('s_mov_b32 s46, s42')
    a('s_mov_b32 s47, 0')
    for t in range(2):
        issue_a(t)
        adv_a()
        issue_b(t)
        adv_b()
        if t < 1:
            a('s_barrier')
    for r in range(3):
        a('v_add_u32 v11, %d, v0' % (64 * r))
        a('v_mul_u32_u24 v12, 52429, v11')
        a('v_lshrrev_b32 v12, 19, v12')
        a('v_mul_u32_u24 v13, 10, v12')
        a('v_sub_u32 v13, v11, v13')
        a('v_add_u32 v14, s39, v12')
        a('v_mul_u32_u24 v14, 1280, v14')
        a('v_lshl_add_u32 v14, v13, 4, v14')
        a('s_mul_i32 s50, s35, 160')
        a('v_add_u32 v%d, s50, v14' % (5 + r))
        if r == 2:
            a('v_mov_b32 v14, 0x40000000')
            a('v_cmp_gt_u32 vcc, 32, v0')
            a('v_cndmask_b32 v7, v14, v7, vcc')
    X = 112
    for r in range(20):
        a('v_mov_b32 v%d, 0' % (V_ACC + r))

    def read_unit(n, j):
        t, q = divmod(n % 8, 2)
        b = V_B + (n % 2) * 20 + j * 4
        o = t * G_SLOT + q * 64 * 160 + j * 32
        rd = V_RD
        if o >= 61440:
            o -= 61440
            rd = V_RD2
        a('ds_read_b64_tr_b16 %s, v%d offset:%d' % (vr(b, 2), rd, o), tag=('B', n % 8, j))
        a('ds_read_b64_tr_b16 %s, v%d offset:%d' % (vr(b + 2, 2), rd, o + 16 * 160), tag=('B', n % 8, j))

    def kstep(n, last=False, tail=False, peel=None):
        t, q = divmod(n, 2)
        late = None
        if q == 1 and not last:
            a.wait_lg_all()
            a('s_waitcnt vmcnt(%d)' % (peel[0] if peel else 12))
            a('s_barrier')

            def late():
                issue_b(t)
                adv_b()
        if q == 0 and tail:
            a('s_waitcnt vmcnt(13)')

            def late():
                for r in range(3):
                    a('buffer_load_dwordx4 %s, v%d, s[20:23], 0 offen' % (vr(X + r * 4, 4), 5 + r))
        elif q == 0:
            if not peel:
                a('s_waitcnt vmcnt(13)')

            def late():
                issue_a((t + 3) % 4, ' sc1')
                adv_a()
        if peel:
            def late():
                for kind_, st in peel[1]:
                    if kind_ == 'A':
                        issue_a(st % 4)
                        adv_a()
                    else:
                        issue_b(st % 4)
                        adv_b()
        for j in range(5):
            if j in (0, 2):
                a.wait_lg(('B', n, 1 if j == 0 else 4))
            b = V_B + (n % 2) * 20 + j * 4
            acc = vr(V_ACC + j * 4, 4)
            a('v_mfma_f32_16x16x32_bf16 %s, %s, %s, %s' % (acc, vr(b, 4), vr(areg(t, q), 4), acc))
            if not last:
                read_unit(n + 1, j)
            if j == 4 and late:
                late()

    stamp(a)
    a('s_waitcnt vmcnt(5)')
    a('s_barrier')
    stamp(a)
    a.lg = []
    for j in range(5):
        read_unit(0, j)
    sched = [(0, [('A', 2), ('B', 2)]), (5, [('A', 3), ('B', 3)]), (0, [('A', 4), ('B', 4)]), (10, [('B', 5)]),
             (0, [('A', 5)]), (10, [('B', 6)]), (0, [('A', 6)]), (10, [('B', 7)])]
    for n in range(8):
        kstep(n, peel=sched[n])
    a('s_mov_b32 s52, 1')
    L_loop = a.newlabel('gloop')
    L_ph2 = a.newlabel('gph2')
    L_tail = a.newlabel('gtail')
    a.label(L_loop)
    a.lg = [('B', 0, j) for j in range(5) for _ in range(2)]
    for n in range(8):
        kstep(n)
    a('s_add_u32 s52, s52, 1')
    a('s_cmp_lt_u32 s52, 3')
    a.branch('s_cbranch_scc1 %s' % L_loop)
    a('s_cmp_eq_u32 s52, 4')
    a.branch('s_cbranch_scc1 %s' % L_tail)
    stamp(a)
    for r in range(20):
        a('v_mov_b32 v%d, v%d' % (V_ACC + 20 + r, V_ACC + r))
    for r in range(20):
        a('v_mov_b32 v%d, 0' % (V_ACC + r))
    poll()
    a('s_waitcnt vmcnt(0)')
    a('s_mov_b32 s45, s48')
    a('s_add_u32 s54, s48, %d' % ((NS - NS1) * 4096))
    for t in range(3):
        issue_a(t, ' sc1')
        adv_a()
    a('s_waitcnt vmcnt(0)')
    stamp(a)
    a.branch('s_branch %s' % L_loop)
    a.label(L_tail)
    a.lg = [('B', 0, j) for j in range(5) for _ in range(2)]
    kstep(0, tail=True)
    kstep(1, last=True)
    a.vm = []
    stamp(a)
    L_hi = a.newlabel('g2hi')
    L_done = a.newlabel('g2done')
    a('s_waitcnt vmcnt(0)')
    a('s_barrier')
    a('s_mul_i32 s45, s37, 10240')
    a('v_add_u32 v4, s45, v%d' % V_L16)
    a('s_cmp_eq_u32 s38, 0')
    a.branch('s_cbranch_scc1 %s' % L_hi)
    for j in range(10):
        a('ds_write_b128 v4, %s offset:%d' % (vr(V_ACC + j * 4, 4), j * 1024), tag='ex')
    a.wait_lg_all()
    a('s_barrier')
    a.branch('s_branch %s' % L_done)
    a.label(L_hi)
    a('s_barrier')
    for j in range(10):
        a('ds_read_b128 %s, v4 offset:%d' % (vr(V_B + j * 4, 4), j * 1024), tag='ex')
    a.wait_lg_all()
    a('s_mul_i32 s45, s37, 5120')
    a('s_add_u32 s45, s45, 40960')
    a('v_mul_u32_u24 v11, 160, v9')
    a('v_lshl_add_u32 v11, v10, 3, v11')
    a('v_add_u32 v11, s45, v11')
    for j in range(10):
        ac = V_ACC + j * 4
        for r in range(4):
            a('v_add_f32 v%d, v%d, v%d' % (ac + r, ac + r, V_B + j * 4 + r))
        d = 96 + (j % 4) * 2
        a('v_cvt_pk_bf16_f32 v%d, v%d, v%d' % (d, ac, ac + 1))
        a('v_cvt_pk_bf16_f32 v%d, v%d, v%d' % (d + 1, ac + 2, ac + 3))
        a('ds_write_b64 v11, %s offset:%d' % (vr(d, 2), (1 - j // 5) * 2560 + (j % 5) * 32), tag='tw')
    a.wait_lg_all()
    a('v_add_u32 v12, s45, v%d' % V_L16)
    for r in range(3):
        a('ds_read_b128 %s, v12 offset:%d' % (vr(16 + r * 4, 4), r * 1024), tag='tr')
        a('ds_read_b128 %s, v12 offset:%d' % (vr(28 + r * 4, 4), 2560 + r * 1024), tag='tr')
    a.wait_lg_all()
    for r in range(3):
        for q in range(4):
            fv, av, xv = 16 + r * 4 + q, 28 + r * 4 + q, X + r * 4 + q
            t = 56 + (q % 2) * 8
            a('v_lshlrev_b32 v%d, 16, v%d' % (t, av))
            a('v_and_b32 v%d, 0xffff0000, v%d' % (t + 1, av))
            a('v_lshlrev_b32 v%d, 16, v%d' % (t + 2, xv))
            a('v_and_b32 v%d, 0xffff0000, v%d' % (t + 3, xv))
            a('v_add_f32 v%d, v%d, v%d' % (t, t, t + 2))
            a('v_add_f32 v%d, v%d, v%d' % (t + 1, t + 1, t + 3))
            bf16r_pair(a, t, t + 1, t, t + 1, t + 4)
            a('v_lshlrev_b32 v%d, 16, v%d' % (t + 2, fv))
            a('v_and_b32 v%d, 0xffff0000, v%d' % (t + 3, fv))
            a('v_add_f32 v%d, v%d, v%d' % (t, t, t + 2))
            a('v_add_f32 v%d, v%d, v%d' % (t + 1, t + 1, t + 3))
            a('v_cvt_pk_bf16_f32 v%d, v%d, v%d' % (av, t, t + 1))
        a('buffer_store_dwordx4 %s, v%d, s[24:27], 0 offen' % (vr(28 + r * 4, 4), 5 + r), tag='st')
    a.label(L_done)


def attention(a, wg_sreg):
    V_Q = 16
    V_O = 20
    V_S = 28
    V_KV = 100

    def S(t):
        return V_S + t * 4

    stamp_reset()
    stamp(a)
    a('s_setprio 3')
    a('s_load_dwordx2 s[12:13], s[0:1], 72')
    a('s_load_dwordx2 s[10:11], s[0:1], 64')
    a('s_and_b32 s32, s%d, 7' % wg_sreg)
    a('s_lshr_b32 s33, s%d, 3' % wg_sreg)
    a('s_lshl_b32 s34, s32, 2')
    a('s_and_b32 s35, s33, 3')
    a('s_add_u32 s34, s34, s35')
    a('s_lshr_b32 s35, s33, 2')
    a('v_lshrrev_b32 v1, 6, v0')
    a('v_readfirstlane_b32 s36, v1')
    a('v_and_b32 v0, 63, v0')
    a('v_and_b32 v1, 15, v0')
    a('v_lshrrev_b32 v2, 4, v0')
    a('v_lshlrev_b32 v3, 4, v0')
    a('s_lshl_b32 s37, s35, 3')
    a('s_add_u32 s37, s37, s36')
    a('s_lshl_b32 s37, s37, 5')
    a.wait_lg_all()
    a('s_mul_i32 s38, s34, 81920')
    for d, base in ((16, WS_Q), (20, WS_K), (24, WS_VT)):
        a('s_add_u32 s39, s38, %d' % base)
        a('s_add_u32 s%d, s12, s39' % d)
        a('s_addc_u32 s%d, s13, 0' % (d + 1))
        a('s_and_b32 s%d, s%d, 0xffff' % (d + 1, d + 1))
        a('s_mov_b32 s%d, 81920' % (d + 2))
        a('s_mov_b32 s%d, 0x00020000' % (d + 3))
    make_srd(a, 28, 's12', 's13', WS_END)
    a('s_mul_i32 s43, s35, 10240')
    a('s_mul_i32 s44, s36, 1280')
    a('s_add_u32 s45, s43, s44')
    a('v_add_u32 v10, s45, v3')
    a('v_add_u32 v11, 1024, v10')
    a('s_mov_b32 m0, s44')
    a('buffer_load_dwordx4 v10, s[16:19], 0 offen lds', tag='stg')
    a('s_add_u32 m0, s44, 1024')
    a('s_mov_b64 exec, 0xffff')
    a('buffer_load_dwordx4 v11, s[16:19], 0 offen lds', tag='stg')
    a('s_mov_b64 exec, -1')
    a('s_mul_i32 s44, s36, 2560')
    a('s_sub_u32 s45, s43, 10240')
    a('s_add_u32 s45, s45, s44')
    a('v_add_u32 v10, s45, v3')
    for i in range(3):
        a('v_add_u32 v11, %d, v10' % (i * 1024))
        if i == 2:
            a('s_mov_b64 exec, 0xffffffff')
        a('s_add_u32 m0, s44, %d' % (10240 + i * 1024))
        a('buffer_load_dwordx4 v11, s[20:23], 0 offen lds', tag='stg')
        a('s_add_u32 m0, s44, %d' % (30720 + i * 1024))
        a('buffer_load_dwordx4 v11, s[24:27], 0 offen lds', tag='stg')
        if i == 2:
            a('s_mov_b64 exec, -1')
    a('v_lshlrev_b32 v4, 2, v2')
    for r in range(4):
        a('v_add_u32 v5, %d, v4' % r)
        a('v_cmp_gt_u32 s[%d:%d], v5, v1' % (48 + 2 * r, 49 + 2 * r))
        a('v_cmp_le_u32 s[%d:%d], v5, v1' % (56 + 2 * r, 57 + 2 * r))
    a('v_mov_b32 v15, %s' % f32hex(-1e30))
    a('v_cmp_eq_u32 s[66:67], 4, v1')
    a('v_mov_b32 v14, 0x3f803f80')
    a('v_cmp_eq_u32 s[64:65], 0, v2')
    a('v_xor_b32 v5, 16, v0')
    a('v_lshlrev_b32 v5, 2, v5')
    a('v_xor_b32 v6, 32, v0')
    a('v_lshlrev_b32 v6, 2, v6')
    a('v_add_u32 v7, 16, v1')
    a('v_lshlrev_b32 v7, 2, v7')
    a('s_mul_i32 s39, s34, 5')
    a('v_add_u32 v8, s39, v2')

    def gpos(dst, G, t1, t2):
        a('v_lshrrev_b32 v%d, 3, v%d' % (t1, G))
        a('v_lshlrev_b32 v%d, 10, v%d' % (t1, t1))
        a('v_and_b32 v%d, 3, v%d' % (t2, G))
        a('v_lshl_add_u32 v%d, v%d, 8, v%d' % (t1, t2, t1))
        a('v_bfe_u32 v%d, v%d, 2, 1' % (t2, G))
        a('v_lshl_add_u32 v%d, v%d, 3, v%d' % (dst, t2, t1))
    gpos(8, 8, 10, 11)
    a('s_add_u32 s39, s39, 4')
    a('v_mov_b32 v9, s39')
    gpos(9, 9, 10, 11)
    a('v_mov_b32 v10, 0x40000000')
    a('v_cndmask_b32 v9, v10, v9, s[64:65]')
    a('v_lshlrev_b32 v10, 4, v1')
    a('v_add_u32 v8, v8, v10')
    a('v_add_u32 v9, v9, v10')
    a('s_mov_b32 s40, %s' % f32hex(20 ** -0.5 * LOG2E))
    a('s_mul_i32 s46, s36, 1280')
    a('v_lshlrev_b32 v4, 3, v0')
    a('v_add_u32 v4, s46, v4')
    a('v_lshlrev_b32 v13, 3, v1')
    a('v_add_u32 v13, s46, v13')
    a('v_add_u32 v13, 512, v13')
    a('v_add_u32 v12, s46, v3')
    a('v_add_u32 v12, 30720, v12')
    a('v_and_b32 v3, 3, v1')
    a('v_lshl_add_u32 v3, v2, 2, v3')
    a('v_lshlrev_b32 v3, 4, v3')
    a('v_add_u32 v3, s46, v3')
    a('v_add_u32 v3, %d, v3' % (30720 + 1024))
    a('v_mov_b32 v2, v12')
    a('s_mul_i32 s43, s37, 1280')
    a('s_add_u32 s43, s43, %d' % WS_O)
    a('s_sub_u32 s47, 256, s37')
    a('s_lshr_b32 s47, s47, 4')
    stamp(a)
    a.wait_vm_all()
    a('s_barrier')
    stamp(a)

    a('s_mov_b32 s42, 0')
    a('s_mov_b32 s41, 0')
    L_loop = a.newlabel('aloop')
    a.label(L_loop)
    a.lg = []
    tiles = list(range(18))
    a('v_add_u32 v10, s41, v4')
    a('v_add_u32 v11, s41, v13')
    a('ds_read_b64 %s, v10' % vr(V_Q, 2), tag='Q')
    a('ds_read_b64 %s, v11' % vr(V_Q + 2, 2), tag='Q')
    NB = 6
    for k, t in enumerate(tiles[:NB - 1]):
        a('ds_read_b64 %s, v4 offset:%d' % (vr(V_KV + (k % NB) * 4, 2), 10240 + t * 640), tag=('K', t))
        a('ds_read_b64 %s, v13 offset:%d' % (vr(V_KV + (k % NB) * 4 + 2, 2), 10240 + t * 640), tag=('K', t))
    a.wait_lg('Q')
    for r in (2, 3):
        a('v_cndmask_b32 v%d, 0, v%d, s[64:65]' % (V_Q + r, V_Q + r))
    for k, t in enumerate(tiles):
        kb = V_KV + (k % NB) * 4
        a.wait_lg(('K', t))
        a('v_mfma_f32_16x16x32_bf16 %s, %s, %s, 0' % (vr(S(t), 4), vr(kb, 4), vr(V_Q, 4)))
        k2 = k + NB - 1
        if k2 < len(tiles):
            a('ds_read_b64 %s, v4 offset:%d' % (vr(V_KV + (k2 % NB) * 4, 2), 10240 + tiles[k2] * 640), tag=('K', tiles[k2]))
            a('ds_read_b64 %s, v13 offset:%d' % (vr(V_KV + (k2 % NB) * 4 + 2, 2), 10240 + tiles[k2] * 640), tag=('K', tiles[k2]))
    for b in range(2):
        for dt in range(2):
            a('ds_read_b128 %s, v%d offset:%d' % (vr(V_KV + (b % 3) * 8 + dt * 4, 4), 2 + dt, b * 1280), tag=('V', b))
    a('s_cmp_eq_u32 s42, 0')
    for k, t in enumerate((0, 1, 16, 17)):
        for r in range(4):
            F = 's[%d:%d]' % (48 + 2 * r, 49 + 2 * r)
            L = 's[%d:%d]' % (56 + 2 * r, 57 + 2 * r)
            v0_, v1_ = ((F, '0'), ('-1', F), (L, '-1'), ('0', L))[k]
            a('s_cselect_b64 s[44:45], %s, %s' % (v0_, v1_))
            a('v_cndmask_b32 v%d, v15, v%d, s[44:45]' % (S(t) + r, S(t) + r))
    L_noneg = a.newlabel('noneg')
    a('s_cmp_ge_u32 s37, 256')
    a.branch('s_cbranch_scc1 %s' % L_noneg)
    for t in range(16):
        a('s_cmp_le_u32 s47, %d' % t)
        a.branch('s_cbranch_scc1 %s' % L_noneg)
        for r in range(4):
            a('v_mov_b32 v%d, v15' % (S(t) + r))
    a.label(L_noneg)
    regs = [S(t) + r for t in tiles for r in range(4)]
    a('v_max3_f32 v10, v%d, v%d, v%d' % (regs[0], regs[1], regs[2]))
    a('v_max3_f32 v11, v%d, v%d, v%d' % (regs[3], regs[4], regs[5]))
    k = 6
    tog = 0
    while k + 1 < len(regs):
        mm = 10 + tog
        a('v_max3_f32 v%d, v%d, v%d, v%d' % (mm, mm, regs[k], regs[k + 1]))
        k += 2
        tog ^= 1
    if k < len(regs):
        a('v_max_f32 v10, v10, v%d' % regs[k])
    a('v_max_f32 v10, v10, v11')
    for addr in (5, 6):
        a('ds_bpermute_b32 v11, v%d, v10' % addr, tag='bp')
        a.wait_lg('bp')
        a('v_max_f32 v10, v10, v11')
    a('v_mul_f32 v10, s40, v10')
    a('v_sub_f32 v10, 0, v10')
    a('v_mov_b32 v11, v10')
    a('v_mov_b32 v%d, s40' % V_Q)
    a('v_mov_b32 v%d, s40' % (V_Q + 1))
    for b in range(9):
        for t in (2 * b, 2 * b + 1):
            for r in range(4):
                a('v_fma_f32 v%d, v%d, v%d, v10' % (S(t) + r, S(t) + r, V_Q))
            for r in range(4):
                a('v_exp_f32 v%d, v%d' % (S(t) + r, S(t) + r))
        p = S(2 * b)
        q = S(2 * b + 1)
        a('v_cvt_pk_bf16_f32 v%d, v%d, v%d' % (p, p, p + 1))
        a('v_cvt_pk_bf16_f32 v%d, v%d, v%d' % (p + 1, p + 2, p + 3))
        a('v_cvt_pk_bf16_f32 v%d, v%d, v%d' % (p + 2, q, q + 1))
        a('v_cvt_pk_bf16_f32 v%d, v%d, v%d' % (p + 3, q + 2, q + 3))
    for b in range(9):
        vb = V_KV + (b % 3) * 8
        a.wait_lg(('V', b))
        for r in range(4):
            a('v_cndmask_b32 v%d, v%d, v14, s[66:67]' % (vb + 4 + r, vb + 4 + r))
        for dt in range(2):
            o = vr(V_O + dt * 4, 4)
            a('v_mfma_f32_16x16x32_bf16 %s, %s, %s, %s' % (o, vr(vb + dt * 4, 4), vr(S(2 * b), 4), o if b else '0'))
        if b + 2 < 9:
            for dt in range(2):
                a('ds_read_b128 %s, v%d offset:%d' % (vr(V_KV + ((b + 2) % 3) * 8 + dt * 4, 4), 2 + dt, (b + 2) * 1280),
                  tag=('V', b + 2))
    a('ds_bpermute_b32 v10, v7, v%d' % (V_O + 4), tag='bp')
    a.wait_lg_all()
    a('v_rcp_f32 v10, v10')
    for dt in range(2):
        o = V_O + dt * 4
        for r in range(4):
            a('v_mul_f32 v%d, v%d, v10' % (o + r, o + r))
        d = V_Q if dt == 0 else o
        a('v_cvt_pk_bf16_f32 v%d, v%d, v%d' % (d, o, o + 1))
        a('v_cvt_pk_bf16_f32 v%d, v%d, v%d' % (d + 1, o + 2, o + 3))
        a('buffer_store_dwordx2 %s, v%d, s[28:31], s43 offen sc1' % (vr(d, 2), 8 + dt), tag='st')
    a('s_add_u32 s43, s43, %d' % (20 * 1024))
    a('s_add_u32 s41, s41, 640')
    a('s_add_u32 s42, s42, 1')
    a('s_cmp_lt_u32 s42, 2')
    a.branch('s_cbranch_scc1 %s' % L_loop)
    stamp(a)
    a.wait_vm_all()
    stamp(a)
    a('s_barrier')
    stamp(a)
    L_np = a.newlabel('nopub')
    a('s_cmp_lg_u32 s36, 0')
    a.branch('s_cbranch_scc1 %s' % L_np)
    a('s_lshl_b32 s44, s35, 8')
    a('s_add_u32 s44, s44, %d' % WS_CNT)
    a('v_mov_b32 v10, 1')
    a('v_mov_b32 v11, 0')
    a('s_mov_b64 exec, 1')
    a('buffer_atomic_add v10, v11, s[28:31], s44 offen sc1')
    a('s_mov_b64 exec, -1')
    a.label(L_np)


def emit(a, launches, descs, which):
    if '2' in which:
        name = 'k2_kernel'
        a.raw('.globl %s' % name)
        a.raw('.p2align 8')
        a.raw('.type %s,@function' % name)
        a.raw('%s:' % name)
        a.hist = []
        a.vm = []
        a.lg = []
        a('s_cmp_ge_u32 s2, 512')
        a.branch('s_cbranch_scc1 .k2_end')
        rt_start(a)
        a('s_cmp_ge_u32 s2, 256')
        a.branch('s_cbranch_scc1 .k2_gemm')
        attention(a, 2)
        a.wait_vm_all()
        stamp(a)
        stamp_dump(a, 36)
        rt_end(a, 36, 1)
        a.branch('s_branch .k2_end')
        a.label('.k2_gemm')
        a.vm = []
        a.lg = []
        a('s_sub_u32 s3, s2, 256')
        gemm_fused(a, 3)
        a.wait_vm_all()
        stamp(a)
        stamp_dump(a, 36)
        rt_end(a, 36, 1)
        a.label('.k2_end')
        a('s_endpgm')
        launches.append('; @launch kernel=k2_kernel grid=(512,1,1) block=(512,1,1) lds=%d' % K2_LDS)
        descs.append(kernel_desc('k2_kernel', 128))
```

```python
import os
from asmlib import Asm, vr, sr
from gen import (WS_Q, WS_K, WS_VT, WS_H, WS_O, WS_F, WS_WD, WS_WO, WS_END, WS_CNT, LOG2E, f32hex, make_srd, bf16r_pair,
                 kernel_desc, rt_start, rt_end, stamp, stamp_reset, stamp_dump)

G_SLOT = 20480
K2_LDS = 81920
K3_LDS = 102400


def gemm_fused(a, wg_sreg):
    NS1, NS = 12, 17
    RING = 4
    AR = 4
    V_L16 = 1
    V_RD = 2
    V_RD2 = 3
    V_B = 16
    V_ACC = 56
    V_A = 96
    stamp_reset()
    stamp(a)
    if os.environ.get('GEN_GPRIO'):
        a('s_setprio %s' % os.environ['GEN_GPRIO'])
    a('s_load_dwordx2 s[6:7], s[0:1], 0')
    a('s_load_dwordx2 s[8:9], s[0:1], 56')
    a('s_load_dwordx2 s[10:11], s[0:1], 64')
    a('s_load_dwordx2 s[12:13], s[0:1], 72')
    a('s_and_b32 s32, s%d, 7' % wg_sreg)
    a('s_lshr_b32 s33, s%d, 3' % wg_sreg)
    a('s_and_b32 s34, s32, 3')
    a('s_lshl_b32 s34, s34, 3')
    a('s_and_b32 s35, s33, 7')
    a('s_add_u32 s34, s34, s35')
    a('s_lshr_b32 s35, s32, 2')
    a('s_lshl_b32 s35, s35, 2')
    a('s_lshr_b32 s40, s33, 3')
    a('s_add_u32 s35, s35, s40')
    a('v_lshrrev_b32 v9, 6, v0')
    a('v_readfirstlane_b32 s36, v9')
    a('v_and_b32 v0, 63, v0')
    a('v_and_b32 v9, 15, v0')
    a('v_lshrrev_b32 v10, 4, v0')
    a('s_and_b32 s37, s36, 3')
    a('s_lshr_b32 s38, s36, 2')
    a('s_lshl_b32 s39, s34, 6')
    a('s_lshl_b32 s40, s37, 4')
    a('s_add_u32 s39, s39, s40')
    a('v_lshlrev_b32 v%d, 4, v0' % V_L16)
    a.wait_lg_all()
    make_srd(a, 28, 's12', 's13', WS_END)
    make_srd(a, 20, 's6', 's7', 2048 * 1280)
    make_srd(a, 24, 's8', 's9', 2048 * 1280)
    make_srd(a, 16, 's10', 's11', 256)
    a('s_lshr_b32 s40, s39, 4')
    a('s_lshl_b32 s42, s38, 10')
    a('s_mul_i32 s41, s40, %d' % (48 * 1024))
    a('s_add_u32 s41, s41, s42')
    a('s_add_u32 s41, s41, %d' % WS_H)
    a('s_mul_i32 s48, s40, %d' % (20 * 1024))
    a('s_add_u32 s48, s48, s42')
    a('s_add_u32 s48, s48, %d' % WS_O)
    a('s_mul_i32 s44, s36, 2560')
    a('s_mul_i32 s42, s35, %d' % (1536 * 160))
    a('s_add_u32 s42, s42, s44')
    a('s_add_u32 s42, s42, %d' % WS_WD)
    a('s_mul_i32 s49, s35, %d' % (640 * 160))
    a('s_add_u32 s49, s49, s44')
    a('s_add_u32 s49, s49, %d' % WS_WO)
    a('v_bfe_u32 v11, v0, 2, 2')
    a('v_lshl_add_u32 v11, v10, 2, v11')
    a('v_mul_u32_u24 v11, 160, v11')
    a('v_and_b32 v12, 3, v0')
    a('v_lshl_add_u32 v11, v12, 3, v11')
    a('s_mul_i32 s43, s38, 5120')
    a('v_add_u32 v%d, s43, v11' % V_RD)
    a('v_add_u32 v%d, 61440, v%d' % (V_RD2, V_RD))

    def areg(t, q):
        return V_A + ((t % AR) * 2 + q) * 4

    def issue_a(slot4, fl=''):
        for q in range(2):
            a('buffer_load_dwordx4 %s, v%d, s[28:31], s45 offen offset:%d%s' % (vr(areg(slot4, q), 4), V_L16, q * 2048, fl))

    def issue_b(slot4):
        a('s_add_u32 m0, s44, %d' % (slot4 * G_SLOT))
        for i in range(3):
            if i == 2:
                a('s_mov_b64 exec, 0xffffffff')
            a('buffer_load_dwordx4 v%d, s[28:31], s46 offen offset:%d lds' % (V_L16, i * 1024))
            if i == 2:
                a('s_mov_b64 exec, -1')

    def adv_b():
        a('s_add_u32 s46, s46, %d' % G_SLOT)
        a('s_add_u32 s47, s47, 1')
        a('s_cmp_eq_u32 s47, %d' % NS1)
        a('s_cselect_b32 s46, s49, s46')
        a('s_cmp_ge_u32 s47, %d' % NS)
        a('s_cselect_b32 s46, s53, s46')

    def adv_a():
        a('s_add_u32 s45, s45, 4096')
        a('s_cmp_eq_u32 s45, s54')
        a('s_cselect_b32 s45, s53, s45')

    def poll():
        L = a.newlabel('poll')
        Lskip = a.newlabel('pollskip')
        a('s_cmp_lg_u32 s36, 0')
        a.branch('s_cbranch_scc1 %s' % Lskip)
        a('s_lshr_b32 s50, s34, 2')
        a('s_lshl_b32 s50, s50, 8')
        a('s_add_u32 s50, s50, %d' % WS_CNT)
        a('v_mov_b32 v12, 0')
        a('s_mov_b32 s55, 0')
        a.label(L)
        a('buffer_load_dword v11, v12, s[28:31], s50 offen sc1')
        a('s_waitcnt vmcnt(0)')
        a('v_readfirstlane_b32 s51, v11')
        a('s_cmp_ge_u32 s51, 32')
        Ld = a.newlabel('polled')
        a.branch('s_cbranch_scc1 %s' % Ld)
        a('s_sleep 16')
        a('s_add_u32 s55, s55, 1')
        a('s_cmp_lt_u32 s55, 200000')
        a.branch('s_cbranch_scc1 %s' % L)
        a.label(Ld)
        a.label(Lskip)
        a('s_barrier')

    a('s_mov_b32 s53, 0x70000000')
    a('s_add_u32 s54, s41, %d' % (NS1 * 4096))
    a('s_mov_b32 s45, s41')
    a('s_mov_b32 s46, s42')
    a('s_mov_b32 s47, 0')
    for t in range(2):
        issue_a(t)
        adv_a()
        issue_b(t)
        adv_b()
        if t < 1:
            a('s_barrier')
    for r in range(3):
        a('v_add_u32 v11, %d, v0' % (64 * r))
        a('v_mul_u32_u24 v12, 52429, v11')
        a('v_lshrrev_b32 v12, 19, v12')
        a('v_mul_u32_u24 v13, 10, v12')
        a('v_sub_u32 v13, v11, v13')
        a('v_add_u32 v14, s39, v12')
        a('v_mul_u32_u24 v14, 1280, v14')
        a('v_lshl_add_u32 v14, v13, 4, v14')
        a('s_mul_i32 s50, s35, 160')
        a('v_add_u32 v%d, s50, v14' % (5 + r))
        if r == 2:
            a('v_mov_b32 v14, 0x40000000')
            a('v_cmp_gt_u32 vcc, 32, v0')
            a('v_cndmask_b32 v7, v14, v7, vcc')
    X = 112
    for r in range(20):
        a('v_mov_b32 v%d, 0' % (V_ACC + r))

    def read_unit(n, j):
        t, q = divmod(n % 8, 2)
        b = V_B + (n % 2) * 20 + j * 4
        o = t * G_SLOT + q * 64 * 160 + j * 32
        rd = V_RD
        if o >= 61440:
            o -= 61440
            rd = V_RD2
        a('ds_read_b64_tr_b16 %s, v%d offset:%d' % (vr(b, 2), rd, o), tag=('B', n % 8, j))
        a('ds_read_b64_tr_b16 %s, v%d offset:%d' % (vr(b + 2, 2), rd, o + 16 * 160), tag=('B', n % 8, j))

    def kstep(n, last=False, tail=False, peel=None):
        t, q = divmod(n, 2)
        late = None
        if q == 1 and not last:
            a.wait_lg_all()
            a('s_waitcnt vmcnt(%d)' % (peel[0] if peel else 12))
            a('s_barrier')

            def late():
                issue_b(t)
                adv_b()
        if q == 0 and tail:
            a('s_waitcnt vmcnt(13)')

            def late():
                for r in range(3):
                    a('buffer_load_dwordx4 %s, v%d, s[20:23], 0 offen' % (vr(X + r * 4, 4), 5 + r))
        elif q == 0:
            if not peel:
                a('s_waitcnt vmcnt(13)')

            def late():
                issue_a((t + 3) % 4, ' sc1')
                adv_a()
        if peel:
            def late():
                for kind_, st in peel[1]:
                    if kind_ == 'A':
                        issue_a(st % 4)
                        adv_a()
                    else:
                        issue_b(st % 4)
                        adv_b()
        for j in range(5):
            if j in (0, 2):
                a.wait_lg(('B', n, 1 if j == 0 else 4))
            b = V_B + (n % 2) * 20 + j * 4
            acc = vr(V_ACC + j * 4, 4)
            a('v_mfma_f32_16x16x32_bf16 %s, %s, %s, %s' % (acc, vr(b, 4), vr(areg(t, q), 4), acc))
            if not last:
                read_unit(n + 1, j)
            if j == 4 and late:
                late()

    stamp(a)
    a('s_waitcnt vmcnt(5)')
    a('s_barrier')
    stamp(a)
    a.lg = []
    for j in range(5):
        read_unit(0, j)
    sched = [(0, [('A', 2), ('B', 2)]), (5, [('A', 3), ('B', 3)]), (0, [('A', 4), ('B', 4)]), (10, [('B', 5)]),
             (0, [('A', 5)]), (10, [('B', 6)]), (0, [('A', 6)]), (10, [('B', 7)])]
    for n in range(8):
        kstep(n, peel=sched[n])
    a('s_mov_b32 s52, 1')
    L_loop = a.newlabel('gloop')
    L_ph2 = a.newlabel('gph2')
    L_tail = a.newlabel('gtail')
    a.label(L_loop)
    a.lg = [('B', 0, j) for j in range(5) for _ in range(2)]
    for n in range(8):
        kstep(n)
    a('s_add_u32 s52, s52, 1')
    a('s_cmp_lt_u32 s52, 3')
    a.branch('s_cbranch_scc1 %s' % L_loop)
    a('s_cmp_eq_u32 s52, 4')
    a.branch('s_cbranch_scc1 %s' % L_tail)
    stamp(a)
    for r in range(20):
        a('v_mov_b32 v%d, v%d' % (V_ACC + 20 + r, V_ACC + r))
    for r in range(20):
        a('v_mov_b32 v%d, 0' % (V_ACC + r))
    poll()
    a('s_waitcnt vmcnt(0)')
    a('s_mov_b32 s45, s48')
    a('s_add_u32 s54, s48, %d' % ((NS - NS1) * 4096))
    for t in range(3):
        issue_a(t, ' sc1')
        adv_a()
    a('s_waitcnt vmcnt(0)')
    stamp(a)
    a.branch('s_branch %s' % L_loop)
    a.label(L_tail)
    a.lg = [('B', 0, j) for j in range(5) for _ in range(2)]
    kstep(0, tail=True)
    kstep(1, last=True)
    a.vm = []
    stamp(a)
    L_hi = a.newlabel('g2hi')
    L_done = a.newlabel('g2done')
    a('s_waitcnt vmcnt(0)')
    a('s_barrier')
    a('s_mul_i32 s45, s37, 10240')
    a('v_add_u32 v4, s45, v%d' % V_L16)
    a('s_cmp_eq_u32 s38, 0')
    a.branch('s_cbranch_scc1 %s' % L_hi)
    for j in range(10):
        a('ds_write_b128 v4, %s offset:%d' % (vr(V_ACC + j * 4, 4), j * 1024), tag='ex')
    a.wait_lg_all()
    a('s_barrier')
    a.branch('s_branch %s' % L_done)
    a.label(L_hi)
    a('s_barrier')
    for j in range(10):
        a('ds_read_b128 %s, v4 offset:%d' % (vr(V_B + j * 4, 4), j * 1024), tag='ex')
    a.wait_lg_all()
    a('s_mul_i32 s45, s37, 5120')
    a('s_add_u32 s45, s45, 40960')
    a('v_mul_u32_u24 v11, 160, v9')
    a('v_lshl_add_u32 v11, v10, 3, v11')
    a('v_add_u32 v11, s45, v11')
    for j in range(10):
        ac = V_ACC + j * 4
        for r in range(4):
            a('v_add_f32 v%d, v%d, v%d' % (ac + r, ac + r, V_B + j * 4 + r))
        d = 96 + (j % 4) * 2
        a('v_cvt_pk_bf16_f32 v%d, v%d, v%d' % (d, ac, ac + 1))
        a('v_cvt_pk_bf16_f32 v%d, v%d, v%d' % (d + 1, ac + 2, ac + 3))
        a('ds_write_b64 v11, %s offset:%d' % (vr(d, 2), (1 - j // 5) * 2560 + (j % 5) * 32), tag='tw')
    a.wait_lg_all()
    a('v_add_u32 v12, s45, v%d' % V_L16)
    for r in range(3):
        a('ds_read_b128 %s, v12 offset:%d' % (vr(16 + r * 4, 4), r * 1024), tag='tr')
        a('ds_read_b128 %s, v12 offset:%d' % (vr(28 + r * 4, 4), 2560 + r * 1024), tag='tr')
    a.wait_lg_all()
    for r in range(3):
        for q in range(4):
            fv, av, xv = 16 + r * 4 + q, 28 + r * 4 + q, X + r * 4 + q
            t = 56 + (q % 2) * 8
            a('v_lshlrev_b32 v%d, 16, v%d' % (t, av))
            a('v_and_b32 v%d, 0xffff0000, v%d' % (t + 1, av))
            a('v_lshlrev_b32 v%d, 16, v%d' % (t + 2, xv))
            a('v_and_b32 v%d, 0xffff0000, v%d' % (t + 3, xv))
            a('v_add_f32 v%d, v%d, v%d' % (t, t, t + 2))
            a('v_add_f32 v%d, v%d, v%d' % (t + 1, t + 1, t + 3))
            bf16r_pair(a, t, t + 1, t, t + 1, t + 4)
            a('v_lshlrev_b32 v%d, 16, v%d' % (t + 2, fv))
            a('v_and_b32 v%d, 0xffff0000, v%d' % (t + 3, fv))
            a('v_add_f32 v%d, v%d, v%d' % (t, t, t + 2))
            a('v_add_f32 v%d, v%d, v%d' % (t + 1, t + 1, t + 3))
            a('v_cvt_pk_bf16_f32 v%d, v%d, v%d' % (av, t, t + 1))
        a('buffer_store_dwordx4 %s, v%d, s[24:27], 0 offen' % (vr(28 + r * 4, 4), 5 + r), tag='st')
    a.label(L_done)


def attention(a, wg_sreg):
    V_Q = 16
    V_O = 20
    V_S = 28
    V_KV = 100

    def S(t):
        return V_S + t * 4

    stamp_reset()
    stamp(a)
    a('s_setprio 3')
    a('s_load_dwordx2 s[12:13], s[0:1], 72')
    a('s_load_dwordx2 s[10:11], s[0:1], 64')
    a('s_and_b32 s32, s%d, 7' % wg_sreg)
    a('s_lshr_b32 s33, s%d, 3' % wg_sreg)
    a('s_lshl_b32 s34, s32, 2')
    a('s_and_b32 s35, s33, 3')
    a('s_add_u32 s34, s34, s35')
    a('s_lshr_b32 s35, s33, 2')
    a('v_lshrrev_b32 v1, 6, v0')
    a('v_readfirstlane_b32 s36, v1')
    a('v_and_b32 v0, 63, v0')
    a('v_and_b32 v1, 15, v0')
    a('v_lshrrev_b32 v2, 4, v0')
    a('v_lshlrev_b32 v3, 4, v0')
    a('s_lshl_b32 s37, s35, 3')
    a('s_add_u32 s37, s37, s36')
    a('s_lshl_b32 s37, s37, 5')
    a.wait_lg_all()
    a('s_mul_i32 s38, s34, 81920')
    for d, base in ((16, WS_Q), (20, WS_K), (24, WS_VT)):
        a('s_add_u32 s39, s38, %d' % base)
        a('s_add_u32 s%d, s12, s39' % d)
        a('s_addc_u32 s%d, s13, 0' % (d + 1))
        a('s_and_b32 s%d, s%d, 0xffff' % (d + 1, d + 1))
        a('s_mov_b32 s%d, 81920' % (d + 2))
        a('s_mov_b32 s%d, 0x00020000' % (d + 3))
    make_srd(a, 28, 's12', 's13', WS_END)
    a('s_mul_i32 s43, s35, 10240')
    a('s_mul_i32 s44, s36, 1280')
    a('s_add_u32 s45, s43, s44')
    a('v_add_u32 v10, s45, v3')
    a('v_add_u32 v11, 1024, v10')
    a('s_mov_b32 m0, s44')
    a('buffer_load_dwordx4 v10, s[16:19], 0 offen lds', tag='stg')
    a('s_add_u32 m0, s44, 1024')
    a('s_mov_b64 exec, 0xffff')
    a('buffer_load_dwordx4 v11, s[16:19], 0 offen lds', tag='stg')
    a('s_mov_b64 exec, -1')
    a('s_mul_i32 s44, s36, 2560')
    a('s_sub_u32 s45, s43, 10240')
    a('s_add_u32 s45, s45, s44')
    a('v_add_u32 v10, s45, v3')
    for i in range(3):
        a('v_add_u32 v11, %d, v10' % (i * 1024))
        if i == 2:
            a('s_mov_b64 exec, 0xffffffff')
        a('s_add_u32 m0, s44, %d' % (10240 + i * 1024))
        a('buffer_load_dwordx4 v11, s[20:23], 0 offen lds', tag='stg')
        a('s_add_u32 m0, s44, %d' % (30720 + i * 1024))
        a('buffer_load_dwordx4 v11, s[24:27], 0 offen lds', tag='stg')
        if i == 2:
            a('s_mov_b64 exec, -1')
    a('v_lshlrev_b32 v4, 2, v2')
    for r in range(4):
        a('v_add_u32 v5, %d, v4' % r)
        a('v_cmp_gt_u32 s[%d:%d], v5, v1' % (48 + 2 * r, 49 + 2 * r))
        a('v_cmp_le_u32 s[%d:%d], v5, v1' % (56 + 2 * r, 57 + 2 * r))
    a('v_mov_b32 v15, %s' % f32hex(-1e30))
    a('v_cmp_eq_u32 s[66:67], 4, v1')
    a('v_mov_b32 v14, 0x3f803f80')
    a('v_cmp_eq_u32 s[64:65], 0, v2')
    a('v_xor_b32 v5, 16, v0')
    a('v_lshlrev_b32 v5, 2, v5')
    a('v_xor_b32 v6, 32, v0')
    a('v_lshlrev_b32 v6, 2, v6')
    a('v_add_u32 v7, 16, v1')
    a('v_lshlrev_b32 v7, 2, v7')
    a('s_mul_i32 s39, s34, 5')
    a('v_add_u32 v8, s39, v2')

    def gpos(dst, G, t1, t2):
        a('v_lshrrev_b32 v%d, 3, v%d' % (t1, G))
        a('v_lshlrev_b32 v%d, 10, v%d' % (t1, t1))
        a('v_and_b32 v%d, 3, v%d' % (t2, G))
        a('v_lshl_add_u32 v%d, v%d, 8, v%d' % (t1, t2, t1))
        a('v_bfe_u32 v%d, v%d, 2, 1' % (t2, G))
        a('v_lshl_add_u32 v%d, v%d, 3, v%d' % (dst, t2, t1))
    gpos(8, 8, 10, 11)
    a('s_add_u32 s39, s39, 4')
    a('v_mov_b32 v9, s39')
    gpos(9, 9, 10, 11)
    a('v_mov_b32 v10, 0x40000000')
    a('v_cndmask_b32 v9, v10, v9, s[64:65]')
    a('v_lshlrev_b32 v10, 4, v1')
    a('v_add_u32 v8, v8, v10')
    a('v_add_u32 v9, v9, v10')
    a('s_mov_b32 s40, %s' % f32hex(20 ** -0.5 * LOG2E))
    a('s_mul_i32 s46, s36, 1280')
    a('v_lshlrev_b32 v4, 3, v0')
    a('v_add_u32 v4, s46, v4')
    a('v_lshlrev_b32 v13, 3, v1')
    a('v_add_u32 v13, s46, v13')
    a('v_add_u32 v13, 512, v13')
    a('v_add_u32 v12, s46, v3')
    a('v_add_u32 v12, 30720, v12')
    a('v_and_b32 v3, 3, v1')
    a('v_lshl_add_u32 v3, v2, 2, v3')
    a('v_lshlrev_b32 v3, 4, v3')
    a('v_add_u32 v3, s46, v3')
    a('v_add_u32 v3, %d, v3' % (30720 + 1024))
    a('v_mov_b32 v2, v12')
    a('s_mul_i32 s43, s37, 1280')
    a('s_add_u32 s43, s43, %d' % WS_O)
    a('s_sub_u32 s47, 256, s37')
    a('s_lshr_b32 s47, s47, 4')
    stamp(a)
    a.wait_vm_all()
    a('s_barrier')
    stamp(a)

    a('s_mov_b32 s42, 0')
    a('s_mov_b32 s41, 0')
    L_loop = a.newlabel('aloop')
    a.label(L_loop)
    a.lg = []
    tiles = list(range(18))
    a('v_add_u32 v10, s41, v4')
    a('v_add_u32 v11, s41, v13')
    a('ds_read_b64 %s, v10' % vr(V_Q, 2), tag='Q')
    a('ds_read_b64 %s, v11' % vr(V_Q + 2, 2), tag='Q')
    NB = 6
    for k, t in enumerate(tiles[:NB - 1]):
        a('ds_read_b64 %s, v4 offset:%d' % (vr(V_KV + (k % NB) * 4, 2), 10240 + t * 640), tag=('K', t))
        a('ds_read_b64 %s, v13 offset:%d' % (vr(V_KV + (k % NB) * 4 + 2, 2), 10240 + t * 640), tag=('K', t))
    a.wait_lg('Q')
    for r in (2, 3):
        a('v_cndmask_b32 v%d, 0, v%d, s[64:65]' % (V_Q + r, V_Q + r))
    for k, t in enumerate(tiles):
        kb = V_KV + (k % NB) * 4
        a.wait_lg(('K', t))
        a('v_mfma_f32_16x16x32_bf16 %s, %s, %s, 0' % (vr(S(t), 4), vr(kb, 4), vr(V_Q, 4)))
        k2 = k + NB - 1
        if k2 < len(tiles):
            a('ds_read_b64 %s, v4 offset:%d' % (vr(V_KV + (k2 % NB) * 4, 2), 10240 + tiles[k2] * 640), tag=('K', tiles[k2]))
            a('ds_read_b64 %s, v13 offset:%d' % (vr(V_KV + (k2 % NB) * 4 + 2, 2), 10240 + tiles[k2] * 640), tag=('K', tiles[k2]))
    for b in range(2):
        for dt in range(2):
            a('ds_read_b128 %s, v%d offset:%d' % (vr(V_KV + (b % 3) * 8 + dt * 4, 4), 2 + dt, b * 1280), tag=('V', b))
    a('s_cmp_eq_u32 s42, 0')
    for k, t in enumerate((0, 1, 16, 17)):
        for r in range(4):
            F = 's[%d:%d]' % (48 + 2 * r, 49 + 2 * r)
            L = 's[%d:%d]' % (56 + 2 * r, 57 + 2 * r)
            v0_, v1_ = ((F, '0'), ('-1', F), (L, '-1'), ('0', L))[k]
            a('s_cselect_b64 s[44:45], %s, %s' % (v0_, v1_))
            a('v_cndmask_b32 v%d, v15, v%d, s[44:45]' % (S(t) + r, S(t) + r))
    L_noneg = a.newlabel('noneg')
    a('s_cmp_ge_u32 s37, 256')
    a.branch('s_cbranch_scc1 %s' % L_noneg)
    for t in range(16):
        a('s_cmp_le_u32 s47, %d' % t)
        a.branch('s_cbranch_scc1 %s' % L_noneg)
        for r in range(4):
            a('v_mov_b32 v%d, v15' % (S(t) + r))
    a.label(L_noneg)
    regs = [S(t) + r for t in tiles for r in range(4)]
    a('v_max3_f32 v10, v%d, v%d, v%d' % (regs[0], regs[1], regs[2]))
    a('v_max3_f32 v11, v%d, v%d, v%d' % (regs[3], regs[4], regs[5]))
    k = 6
    tog = 0
    while k + 1 < len(regs):
        mm = 10 + tog
        a('v_max3_f32 v%d, v%d, v%d, v%d' % (mm, mm, regs[k], regs[k + 1]))
        k += 2
        tog ^= 1
    if k < len(regs):
        a('v_max_f32 v10, v10, v%d' % regs[k])
    a('v_max_f32 v10, v10, v11')
    for addr in (5, 6):
        a('ds_bpermute_b32 v11, v%d, v10' % addr, tag='bp')
        a.wait_lg('bp')
        a('v_max_f32 v10, v10, v11')
    a('v_mul_f32 v10, s40, v10')
    a('v_sub_f32 v10, 0, v10')
    a('v_mov_b32 v11, v10')
    a('v_mov_b32 v%d, s40' % V_Q)
    a('v_mov_b32 v%d, s40' % (V_Q + 1))
    for b in range(9):
        for t in (2 * b, 2 * b + 1):
            for r in range(4):
                a('v_fma_f32 v%d, v%d, v%d, v10' % (S(t) + r, S(t) + r, V_Q))
            for r in range(4):
                a('v_exp_f32 v%d, v%d' % (S(t) + r, S(t) + r))
        p = S(2 * b)
        q = S(2 * b + 1)
        a('v_cvt_pk_bf16_f32 v%d, v%d, v%d' % (p, p, p + 1))
        a('v_cvt_pk_bf16_f32 v%d, v%d, v%d' % (p + 1, p + 2, p + 3))
        a('v_cvt_pk_bf16_f32 v%d, v%d, v%d' % (p + 2, q, q + 1))
        a('v_cvt_pk_bf16_f32 v%d, v%d, v%d' % (p + 3, q + 2, q + 3))
    for b in range(9):
        vb = V_KV + (b % 3) * 8
        a.wait_lg(('V', b))
        for r in range(4):
            a('v_cndmask_b32 v%d, v%d, v14, s[66:67]' % (vb + 4 + r, vb + 4 + r))
        for dt in range(2):
            o = vr(V_O + dt * 4, 4)
            a('v_mfma_f32_16x16x32_bf16 %s, %s, %s, %s' % (o, vr(vb + dt * 4, 4), vr(S(2 * b), 4), o if b else '0'))
        if b + 2 < 9:
            for dt in range(2):
                a('ds_read_b128 %s, v%d offset:%d' % (vr(V_KV + ((b + 2) % 3) * 8 + dt * 4, 4), 2 + dt, (b + 2) * 1280),
                  tag=('V', b + 2))
    a('ds_bpermute_b32 v10, v7, v%d' % (V_O + 4), tag='bp')
    a.wait_lg_all()
    a('v_rcp_f32 v10, v10')
    for dt in range(2):
        o = V_O + dt * 4
        for r in range(4):
            a('v_mul_f32 v%d, v%d, v10' % (o + r, o + r))
        d = V_Q if dt == 0 else o
        a('v_cvt_pk_bf16_f32 v%d, v%d, v%d' % (d, o, o + 1))
        a('v_cvt_pk_bf16_f32 v%d, v%d, v%d' % (d + 1, o + 2, o + 3))
        a('buffer_store_dwordx2 %s, v%d, s[28:31], s43 offen sc1' % (vr(d, 2), 8 + dt), tag='st')
    a('s_add_u32 s43, s43, %d' % (20 * 1024))
    a('s_add_u32 s41, s41, 640')
    a('s_add_u32 s42, s42, 1')
    a('s_cmp_lt_u32 s42, 2')
    a.branch('s_cbranch_scc1 %s' % L_loop)
    stamp(a)
    a.wait_vm_all()
    stamp(a)
    a('s_barrier')
    stamp(a)
    L_np = a.newlabel('nopub')
    a('s_cmp_lg_u32 s36, 0')
    a.branch('s_cbranch_scc1 %s' % L_np)
    a('s_lshl_b32 s44, s35, 8')
    a('s_add_u32 s44, s44, %d' % WS_CNT)
    a('v_mov_b32 v10, 1')
    a('v_mov_b32 v11, 0')
    a('s_mov_b64 exec, 1')
    a('buffer_atomic_add v10, v11, s[28:31], s44 offen sc1')
    a('s_mov_b64 exec, -1')
    a.label(L_np)


def emit(a, launches, descs, which):
    if '2' in which:
        name = 'k2_kernel'
        a.raw('.globl %s' % name)
        a.raw('.p2align 8')
        a.raw('.type %s,@function' % name)
        a.raw('%s:' % name)
        a.hist = []
        a.vm = []
        a.lg = []
        a('s_cmp_ge_u32 s2, 512')
        a.branch('s_cbranch_scc1 .k2_end')
        rt_start(a)
        a('s_cmp_ge_u32 s2, 256')
        a.branch('s_cbranch_scc1 .k2_gemm')
        attention(a, 2)
        a.wait_vm_all()
        stamp(a)
        stamp_dump(a, 36)
        rt_end(a, 36, 1)
        a.branch('s_branch .k2_end')
        a.label('.k2_gemm')
        a.vm = []
        a.lg = []
        a('s_sub_u32 s3, s2, 256')
        gemm_fused(a, 3)
        a.wait_vm_all()
        stamp(a)
        stamp_dump(a, 36)
        rt_end(a, 36, 1)
        a.label('.k2_end')
        a('s_endpgm')
        launches.append('; @launch kernel=k2_kernel grid=(512,1,1) block=(512,1,1) lds=%d' % K2_LDS)
        descs.append(kernel_desc('k2_kernel', 128))
```
